```python
import torch

def _softmax(x, axis=-1):
    return torch.softmax(x, dim=axis)
def _gelu(x):
    return torch.nn.functional.gelu(x, approximate="tanh")
def _silu(x):
    return torch.nn.functional.silu(x)
def _sigmoid(x):
    return torch.sigmoid(x)
def _layernorm(x, axis=-1, eps=1e-5):
    m = x.mean(dim=axis, keepdim=True)
    v = x.var(dim=axis, keepdim=True, unbiased=False)
    return (x - m) / torch.sqrt(v + eps)
def _scatter_add(tgt, idx, src, axis=0):
    return tgt.clone().index_add_(axis, idx, src)
def _segment_sum(src, seg, n):
    out = torch.zeros((n,) + src.shape[1:], dtype=src.dtype)
    return out.index_add_(0, seg, src)
def _pad(x, pw):
    flat = tuple(v for pair in reversed(pw) for v in pair)
    return torch.nn.functional.pad(x, flat)

kernel_name = 'gated_mix__sliding_block_cached__glu_gated_reglu__decode'

def setup_inputs():

    _w = (lambda a: (lambda t: t.to(torch.bfloat16) if t.is_floating_point() else t)(torch.as_tensor(a)))
    def _A_setup():
        B, Sq, D = 1, 1, 640
        Hq, Hkv, Sk, Dh = 32, 32, 32768, 192
        assert Hq % Hkv == 0, (Hq, Hkv)
        return {
            "x": _w((lambda *s: torch.randn(*s, dtype=torch.bfloat16) * 0.05)(B, Sq, D)),
            "k_cache": _w((lambda *s: torch.randn(*s, dtype=torch.bfloat16) * 6.4)(B, Hkv, Sk, Dh)),
            "v_cache": _w((lambda *s: torch.randn(*s, dtype=torch.bfloat16) * 0.05)(B, Hkv, Sk, Dh)),
            "wq": _w((lambda *s: torch.randn(*s, dtype=torch.bfloat16) * 6.4)(D, Hq * Dh) * (D ** -0.5)),
            "wo": _w((lambda *s: torch.randn(*s, dtype=torch.bfloat16) * 0.05)(Hq * Dh, D) * ((Hq * Dh) ** -0.5)),
        }
    _A_in = _A_setup()

    def _B_setup():
        B, S, D, F = 1, 1, 640, 1536
        return {
            "x": _w((lambda *s: torch.randn(*s, dtype=torch.bfloat16) * 0.05)(B, S, D)),
            "W_gate": _w((lambda *s: torch.randn(*s, dtype=torch.bfloat16) * 0.4)(D, F) * (2.0 / D) ** 0.5),
            "W_up": _w((lambda *s: torch.randn(*s, dtype=torch.bfloat16) * 0.4)(D, F) * (2.0 / D) ** 0.5),
            "W_down": _w((lambda *s: torch.randn(*s, dtype=torch.bfloat16) * 0.4)(F, D) * (1.0 / F) ** 0.5),
        }
    _B_in = _B_setup()

    return {
        "A_x": _A_in["x"],
        "A_k_cache": _A_in["k_cache"],
        "A_v_cache": _A_in["v_cache"],
        "A_wq": _A_in["wq"],
        "A_wo": _A_in["wo"],
        "B_x": _B_in["x"],
        "B_W_gate": _B_in["W_gate"],
        "B_W_up": _B_in["W_up"],
        "B_W_down": _B_in["W_down"],
        "gate_w": _w((lambda *s: torch.randn(*s, dtype=torch.bfloat16) * 0.1)(640) * 16.0),
    }

def reference(A_x, A_k_cache, A_v_cache, A_wq, A_wo, B_x, B_W_gate, B_W_up, B_W_down, gate_w):
    def _A_ref(x, k_cache, v_cache, wq, wo):
        B, Sq, D = x.shape
        Hq, Dh = 32, 192
        Hkv, Sk = k_cache.shape[1], k_cache.shape[2]
        W = min(4096, max(256, Sk // 4))
        rep = Hq // Hkv
        q = (lambda x, *d: x.permute(*d))((x @ wq).reshape(B, Sq, Hq, Dh), 0, 2, 1, 3)
        k = (lambda x, n, axis: torch.repeat_interleave(x, n, dim=axis))(k_cache[:, :, Sk - W:, :], rep, axis=1)
        v = (lambda x, n, axis: torch.repeat_interleave(x, n, dim=axis))(v_cache[:, :, Sk - W:, :], rep, axis=1)
        scores = torch.einsum("bhqd,bhkd->bhqk", q, k) * (Dh ** -0.5)
        p = _softmax(scores, axis=-1)
        o = torch.einsum("bhqk,bhkd->bhqd", p, v)
        return (lambda x, *d: x.permute(*d))(o, 0, 2, 1, 3).reshape(B, Sq, Hq * Dh) @ wo

    def _B_ref(x, W_gate, W_up, W_down):
        gate = torch.einsum("bsd,df->bsf", x, W_gate)
        up = torch.einsum("bsd,df->bsf", x, W_up)
        gate = gate * (lambda x, dt: x.to(dt))(gate > 0, gate.dtype)
        h = gate * up
        return torch.einsum("bsf,fd->bsd", h, W_down)

    x = A_x
    g = _sigmoid((x * gate_w).sum(-1, keepdims=True))
    a = _A_ref(x, A_k_cache, A_v_cache, A_wq, A_wo)
    b = _B_ref(x, B_W_gate, B_W_up, B_W_down)
    return g * a + (1 - g) * b
```

```python
import sys, struct

NAME = "gated_mix__sliding_block_cached__glu_gated_reglu__decode"
out = []
def E(s): out.append("    " + s)
def L(s): out.append(s)
def C(s): out.append("    ; " + s)

HEADER = open('cdna_kernels/' + NAME + '.s.ref').read().split('\n')
hdr = []
for ln in HEADER:
    if ln.startswith('; @launch') or ln.startswith('.amdgcn_target'):
        break
    hdr.append(ln)

opts = sys.argv[2] if len(sys.argv) > 2 else ""
NT = " nt" if 'nt' in opts else ""

P_OFF   = 0
P_STR   = 800
Y_OFF   = 12800
Y_STR   = 2592
BP_OFF  = Y_OFF + 16 * Y_STR
QBF_OFF = BP_OFF + 2 * Y_STR
OBF_OFF = QBF_OFF + 384
ST_OFF  = OBF_OFF + 384
MP_OFF  = ST_OFF + 64
HBF_OFF = MP_OFF + 512
LDS_SZ  = HBF_OFF + 64
assert LDS_SZ <= 65536

WS_Y  = 0
WS_ML = 0xA0000
WS_B  = 0x100000

SCALE_LOG2E = (192.0 ** -0.5) * 1.4426950408889634
def f32bits(x): return struct.unpack('<I', struct.pack('<f', x))[0]

K1 = "mixk1_main_kernel"
K2 = "mixk2_final_kernel"

L('\n'.join(hdr))
L(f"; @launch kernel={K1} grid=(256,1,1) block=(512,1,1) lds=65536")
L(f"; @launch kernel={K2} grid=(160,1,1) block=(448,1,1) lds=1024")
L('.amdgcn_target "amdgcn-amd-amdhsa--gfx950"')
L(".text")
L(f".globl {K1}")
L(".p2align 8")
L(f".type {K1},@function")
L(f"{K1}:")

vL, vG, vJ = 1, 2, 3
vM = [4, 5, 6, 7]
vXF = 8
vXA, vXB = 13, 14
vT15 = 15
vML = 16
vTMP = 32
vKB = 40
vWQ = 136

sW, sXCD, sIDX, sH, sC, sT = 34, 35, 36, 37, 38, 39
sK, sV, sWQ, sWO, sWG, sWU, sWD, sX, sWS = 40, 44, 48, 52, 56, 60, 64, 68, 72
sSELLO, sSELHI = 76, 77
sHF = 78
sV2 = 80
sOFF = 82
sSC = 83
s160W = 84
sROW = 85
sE = 86
sR0 = 88
sMLPI = 92

def vr(a, n=4): return f"v[{a}:{a+n-1}]"
def sr(a, n=4): return f"s[{a}:{a+n-1}]"

def srd(dst, plo, off_s, nrec):
    E(f"s_add_u32 s{dst}, s{plo}, s{off_s}")
    E(f"s_addc_u32 s{dst+1}, s{plo+1}, 0")
    E(f"s_and_b32 s{dst+1}, s{dst+1}, 0xffff")
    E(f"s_mov_b32 s{dst+2}, {nrec}")
    E(f"s_mov_b32 s{dst+3}, 0x00020000")

def dpp_reduce(regs):
    for ctl in ["row_shr:1", "row_shr:2", "row_shr:4", "row_shr:8"]:
        for r in regs:
            E(f"v_add_f32_dpp v{r}, v{r}, v{r} {ctl} row_mask:0xf bank_mask:0xf bound_ctrl:0")
        if len(regs) < 3: E("s_nop 1")
    for r in regs:
        E(f"v_add_f32_dpp v{r}, v{r}, v{r} row_bcast:15 row_mask:0xa bank_mask:0xf")
    if len(regs) < 3: E("s_nop 1")
    for r in regs:
        E(f"v_add_f32_dpp v{r}, v{r}, v{r} row_bcast:31 row_mask:0xc bank_mask:0xf")

def expand(dup, dst):
    for w in range(4):
        E(f"v_and_b32 v{dst+w}, v{dup}, v{vM[w]}")

E("s_cmp_ge_u32 s2, 256")
E("s_cbranch_scc1 K1_END")
E("s_load_dwordx16 s[8:23], s[0:1], 0")
E("s_load_dwordx8 s[24:31], s[0:1], 64")
E("s_load_dwordx2 s[32:33], s[0:1], 96")
E(f"v_and_b32 v{vL}, 63, v0")
E(f"v_bfe_u32 v{vG}, v0, 4, 2")
E(f"v_and_b32 v{vJ}, 15, v0")
E(f"v_lshrrev_b32 v{vT15}, 6, v0")
E("s_nop 0")
E(f"v_readfirstlane_b32 s{sW}, v{vT15}")
E(f"s_and_b32 s{sXCD}, s2, 7")
E(f"s_lshr_b32 s{sIDX}, s2, 3")
E(f"s_and_b32 s{sH}, s{sIDX}, 3")
E(f"s_lshl_b32 s{sT}, s{sXCD}, 2")
E(f"s_add_u32 s{sH}, s{sH}, s{sT}")
E(f"s_lshr_b32 s{sC}, s{sIDX}, 2")
E(f"s_mov_b32 s{sSELLO}, 0x01000100")
E(f"s_mov_b32 s{sSELHI}, 0x03020302")
E(f"s_mov_b32 s{sHF}, 0xFF00FF00")
E(f"s_mov_b32 s{sHF+1}, 0xFF00FF00")
E(f"s_mov_b32 s{sV2}, 0x00FF00FF")
E(f"s_mov_b32 s{sV2+1}, 0xFF00FF00")
E(f"s_mov_b32 s{sSC}, 0x{f32bits(SCALE_LOG2E):08x}")
E(f"v_and_b32 v{vTMP}, 1, v{vJ}")
E(f"v_lshlrev_b32 v{vTMP}, 4, v{vTMP}")
E(f"v_mov_b32 v{vTMP+1}, 0xffff")
E(f"v_lshlrev_b32 v{vTMP+1}, v{vTMP}, v{vTMP+1}")
E(f"v_bfe_u32 v{vTMP+2}, v{vJ}, 1, 2")
for w in range(4):
    E(f"v_cmp_eq_u32 vcc, {w}, v{vTMP+2}")
    E("s_nop 1")
    E(f"v_cndmask_b32 v{vM[w]}, 0, v{vTMP+1}, vcc")
E(f"v_lshrrev_b32 v{vTMP}, 3, v{vJ}")
E(f"v_lshl_add_u32 v{vTMP+1}, v{vTMP}, 2, v{vG}")
E(f"v_mul_u32_u24 v{vTMP+2}, 20, v{vTMP+1}")
E(f"v_and_b32 v{vTMP+3}, 7, v{vJ}")
E(f"v_mul_u32_u24 v{vTMP+4}, 122880, v{vG}")
E(f"v_lshl_add_u32 v{vTMP+4}, v{vJ}, 4, v{vTMP+4}")
E(f"v_add_u32 v{vTMP+5}, 491520, v{vTMP+4}")
E(f"v_mul_u32_u24 v{vTMP+6}, 122880, v{vTMP+1}")
E(f"v_lshl_add_u32 v{vTMP+6}, v{vTMP+3}, 4, v{vTMP+6}")
E(f"v_add_u32 v{vTMP+6}, 256, v{vTMP+6}")
E(f"v_and_b32 v{vTMP+7}, 3, v{vJ}")
E(f"v_lshlrev_b32 v{vTMP+7}, 3, v{vTMP+7}")
E(f"v_lshrrev_b32 v{vT15}, 2, v{vJ}")
E(f"v_add_u32 v{vTMP+7}, v{vTMP+7}, v{vT15}")
E(f"v_mul_u32_u24 v{vTMP+7}, 384, v{vTMP+7}")
E(f"v_lshl_add_u32 v{vTMP+7}, v{vG}, 4, v{vTMP+7}")
E(f"v_mul_u32_u24 v{vT15}, 3072, v{vL}")
E(f"v_add_u32 v{vTMP+3}, 196608, v{vT15}")
E(f"v_lshlrev_b32 v{vTMP}, 1, v{vL}")
E(f"s_mul_i32 s{s160W}, s{sW}, 160")
E("s_waitcnt lgkmcnt(0)")
E(f"s_mul_i32 s{sT}, s{sH}, 12582912")
E(f"s_mul_i32 s{sOFF}, s{sC}, 196608")
E(f"s_add_u32 s{sT}, s{sT}, s{sOFF}")
E(f"s_mul_i32 s{sOFF}, s{sW}, 24576")
E(f"s_add_u32 s{sT}, s{sT}, s{sOFF}")
E(f"s_add_u32 s{sT}, s{sT}, 11010048")
srd(sK, 10, sT, 24576)
srd(sV, 12, sT, 24576)
E(f"s_mul_i32 s{sT}, s{sH}, 384")
E(f"s_mul_i32 s{sOFF}, s{sW}, 983040")
E(f"s_add_u32 s{sT}, s{sT}, s{sOFF}")
srd(sWQ, 14, sT, 79 * 12288 + 384)
E(f"s_mul_i32 s{sT}, s{sH}, 245760")
E(f"s_mul_i32 s{sOFF}, s{sW}, 30720")
E(f"s_add_u32 s{sT}, s{sT}, s{sOFF}")
srd(sWO, 16, sT, 30720)
E(f"s_min_u32 s{sOFF}, s{sIDX}, 23")
E(f"s_mul_i32 s{sMLPI}, s{sXCD}, 24")
E(f"s_add_u32 s{sMLPI}, s{sMLPI}, s{sOFF}")
E(f"s_lshl_b32 s{sT}, s{sMLPI}, 4")
E(f"s_mul_i32 s{sOFF}, s{sW}, 245760")
E(f"s_add_u32 s{sT}, s{sT}, s{sOFF}")
srd(sWG, 20, sT, 79 * 3072 + 16)
srd(sWU, 22, sT, 79 * 3072 + 16)
E(f"s_mul_i32 s{sT}, s{sMLPI}, 10240")
srd(sWD, 24, sT, 10240)
E(f"s_cmp_lt_u32 s{sIDX}, 24")
E(f"s_cselect_b32 s{sWG+2}, s{sWG+2}, 0")
E(f"s_cselect_b32 s{sWU+2}, s{sWU+2}, 0")
E(f"s_cselect_b32 s{sWD+2}, s{sWD+2}, 0")
E(f"s_cmp_lt_u32 s{sW}, 5")
E(f"s_cselect_b32 s{sWD+2}, s{sWD+2}, 0")
E(f"s_mov_b32 s{sT}, 0")
srd(sX, 8, sT, 1280)
srd(sWS, 32, sT, 0x400000)

C("x fragment, x rows, MLP rows")
E(f"buffer_load_dwordx4 {vr(vXF)}, v{vTMP+2}, {sr(sX)}, s{s160W} offen")
E(f"buffer_load_dword v{vXF+4}, v{vTMP+2}, {sr(sX)}, s{s160W} offen offset:16")
E(f"buffer_load_ushort v{vXA}, v{vTMP}, {sr(sX)}, s{s160W} offen")
E(f"buffer_load_ushort v{vXB}, v{vTMP}, {sr(sX)}, s{s160W} offen offset:128")
E(f"buffer_load_dwordx4 {vr(vML)}, v{vT15}, {sr(sWG)}, 0 offen")
E(f"buffer_load_dwordx4 {vr(vML+4)}, v{vTMP+3}, {sr(sWG)}, 0 offen")
E(f"buffer_load_dwordx4 {vr(vML+8)}, v{vT15}, {sr(sWU)}, 0 offen")
E(f"buffer_load_dwordx4 {vr(vML+12)}, v{vTMP+3}, {sr(sWU)}, 0 offen")
C("wq loads: 10 groups x 3")
for t in range(10):
    E(f"s_mov_b32 s{sOFF}, {t*12288}")
    b = vWQ + 12 * t
    E(f"buffer_load_dwordx4 {vr(b)}, v{vTMP+4}, {sr(sWQ)}, s{sOFF} offen")
    E(f"buffer_load_dwordx4 {vr(b+4)}, v{vTMP+5}, {sr(sWQ)}, s{sOFF} offen")
    E(f"buffer_load_dwordx4 {vr(b+8)}, v{vTMP+6}, {sr(sWQ)}, s{sOFF} offen")
C("K loads: 2 blk x 2 tiles x 6 steps")
for blk in range(2):
    E(f"s_mov_b32 s{sOFF}, {blk*12288}")
    for T in range(2):
        for s in range(6):
            b = vKB + ((blk * 2 + T) * 6 + s) * 4
            E(f"buffer_load_dwordx4 {vr(b)}, v{vTMP+7}, {sr(sK)}, s{sOFF} offen offset:{T*1536+s*64}{NT}")
NTOT = 8 + 30 + 24
E(f"s_waitcnt vmcnt({NTOT-8})")
E(f"v_lshlrev_b32 v{vXA}, 16, v{vXA}")
E(f"v_lshlrev_b32 v{vXB}, 16, v{vXB}")
for m in range(2):
    A = vML + 8 * m; B = A + 4
    for k in range(4):
        t0, t1, t2, t3 = vTMP, vTMP+1, vTMP+2, vTMP+3
        E(f"v_lshlrev_b32 v{t0}, 16, v{A+k}")
        E(f"v_and_b32 v{t1}, 0xffff0000, v{A+k}")
        E(f"v_lshlrev_b32 v{t2}, 16, v{B+k}")
        E(f"v_and_b32 v{t3}, 0xffff0000, v{B+k}")
        E(f"v_mul_f32 v{A+k}, v{vXA}, v{t0}")
        E(f"v_mul_f32 v{B+k}, v{vXA}, v{t1}")
        E(f"v_fmac_f32 v{A+k}, v{vXB}, v{t2}")
        E(f"v_fmac_f32 v{B+k}, v{vXB}, v{t3}")
dpp_reduce(list(range(vML, vML + 16)))
E(f"s_lshl_b32 s{sT}, s{sW}, 6")
E(f"v_mov_b32 v{vTMP}, s{sT}")
E("s_mov_b32 exec_lo, 0")
E("s_mov_b32 exec_hi, 0x80000000")
for q in range(4):
    E(f"ds_write_b128 v{vTMP}, {vr(vML+4*q)} offset:{MP_OFF + 16*q}")
E("s_mov_b64 exec, -1")
E("s_waitcnt lgkmcnt(0)")

vAC = vML
for t in range(10):
    bx = vTMP + 4 * (t & 1)
    E(f"v_perm_b32 v{vT15}, v{vXF + (t>>1)}, v{vXF + (t>>1)}, s{sSELHI if (t&1) else sSELLO}")
    expand(vT15, bx)
    E(f"s_waitcnt vmcnt({NTOT-8-3*(t+1)})")
    E("s_nop 0")
    b = vWQ + 12 * t
    c = (lambda a: "0") if t == 0 else (lambda a: vr(a))
    E(f"v_mfma_f32_16x16x32_bf16 {vr(vAC)}, {vr(b)}, {vr(bx)}, {c(vAC)}")
    E(f"v_mfma_f32_16x16x32_bf16 {vr(vAC+4)}, {vr(b+4)}, {vr(bx)}, {c(vAC+4)}")
    E(f"v_mfma_f32_16x16x32_bf16 {vr(vAC+8)}, {vr(b+8)}, {vr(bx)}, {c(vAC+8)}")

C("V loads")
vVA, vVB = vTMP, vTMP + 1
E(f"v_mul_u32_u24 v{vVA}, 384, v{vG}")
E(f"v_lshl_add_u32 v{vVA}, v{vJ}, 4, v{vVA}")
E(f"v_lshrrev_b32 v{vTMP+2}, 3, v{vJ}")
E(f"v_lshl_add_u32 v{vTMP+2}, v{vTMP+2}, 2, v{vG}")
E(f"v_mul_u32_u24 v{vVB}, 384, v{vTMP+2}")
E(f"v_and_b32 v{vTMP+2}, 7, v{vJ}")
E(f"v_lshl_add_u32 v{vVB}, v{vTMP+2}, 4, v{vVB}")
E(f"v_add_u32 v{vVB}, 256, v{vVB}")
for k in range(8):
    E(f"s_mov_b32 s{sOFF}, {k*3072}")
    b = vWQ + 12 * k
    E(f"buffer_load_dwordx4 {vr(b)}, v{vVA}, {sr(sV)}, s{sOFF} offen{NT}")
    E(f"buffer_load_dwordx4 {vr(b+4)}, v{vVA}, {sr(sV)}, s{sOFF} offen offset:1536{NT}")
    E(f"buffer_load_dwordx4 {vr(b+8)}, v{vVB}, {sr(sV)}, s{sOFF} offen{NT}")

def dump3(ac, tb):
    a1, a2, t = tb, tb + 1, tb + 2
    E(f"v_lshrrev_b32 v{t}, 3, v{vJ}")
    E(f"s_lshl_b32 s{sT}, s{sW}, 1")
    E(f"v_add_u32 v{t}, s{sT}, v{t}")
    E(f"v_mul_u32_u24 v{a1}, {P_STR}, v{t}")
    E(f"v_and_b32 v{t}, 7, v{vJ}")
    E(f"v_lshl_add_u32 v{a1}, v{t}, 2, v{a1}")
    E(f"v_and_b32 v{t}, 1, v{vG}")
    E(f"v_lshl_add_u32 v{a2}, v{t}, 7, v{a1}")
    E(f"v_lshl_add_u32 v{a1}, v{vG}, 7, v{a1}")
    E("s_nop 7")
    for r in range(4):
        E(f"v_cndmask_b32 v{ac+r}, v{ac+r}, v{ac+4+r}, s[{sHF}:{sHF+1}]")
    for r in range(4):
        E(f"ds_write_b32 v{a1}, v{ac+r} offset:{P_OFF + r*32}")
    E(f"s_mov_b64 exec, s[{sV2}:{sV2+1}]")
    for r in range(4):
        E(f"ds_write_b32 v{a2}, v{ac+8+r} offset:{P_OFF + 512 + r*32}")
    E("s_mov_b64 exec, -1")
dump3(vAC, vTMP + 2)
E("s_waitcnt lgkmcnt(0)")
E("s_barrier")
E(f"v_lshlrev_b32 v{vTMP}, 2, v0")
E("v_cmp_gt_u32 vcc, 192, v0")
E(f"s_and_saveexec_b64 s[{sE}:{sE+1}], vcc")
E("s_cbranch_execz K1_QSUM_DONE")
for s in range(16):
    E(f"ds_read_b32 v{vML+s}, v{vTMP} offset:{P_OFF + s*P_STR}")
E("s_waitcnt lgkmcnt(0)")
for st in (8, 4, 2, 1):
    for s in range(st):
        E(f"v_add_f32 v{vML+s}, v{vML+s}, v{vML+s+st}")
E(f"v_cvt_pk_bf16_f32 v{vML}, v{vML}, v{vML}")
E(f"v_lshlrev_b32 v{vTMP}, 1, v0")
E(f"ds_write_b16 v{vTMP}, v{vML} offset:{QBF_OFF}")
L("K1_QSUM_DONE:")
E(f"s_mov_b64 exec, s[{sE}:{sE+1}]")
E(f"v_subrev_u32 v{vTMP}, 192, v0")
E(f"v_cmp_gt_u32 vcc, 8, v{vTMP}")
E(f"s_and_saveexec_b64 s[{sE}:{sE+1}], vcc")
E("s_cbranch_execz K1_H_DONE")
E(f"v_and_b32 v{vTMP+1}, 1, v{vTMP}")
E(f"v_lshrrev_b32 v{vTMP+2}, 1, v{vTMP}")
E(f"v_lshl_add_u32 v{vTMP+1}, v{vTMP+1}, 2, v{vTMP+2}")
E(f"v_lshlrev_b32 v{vTMP+1}, 2, v{vTMP+1}")
for w in range(8):
    E(f"ds_read_b32 v{vML+w}, v{vTMP+1} offset:{MP_OFF + w*64}")
    E(f"ds_read_b32 v{vML+8+w}, v{vTMP+1} offset:{MP_OFF + w*64 + 32}")
E("s_waitcnt lgkmcnt(0)")
for st in (4, 2, 1):
    for s in range(st):
        E(f"v_add_f32 v{vML+s}, v{vML+s}, v{vML+s+st}")
        E(f"v_add_f32 v{vML+8+s}, v{vML+8+s}, v{vML+8+s+st}")
E(f"v_cvt_pk_bf16_f32 v{vML}, v{vML}, v{vML+8}")
E(f"v_lshlrev_b32 v{vML+1}, 16, v{vML}")
E(f"v_and_b32 v{vML+2}, 0xffff0000, v{vML}")
E(f"v_max_f32 v{vML+1}, 0, v{vML+1}")
E(f"v_mul_f32 v{vML+1}, v{vML+1}, v{vML+2}")
E(f"v_cvt_pk_bf16_f32 v{vML+1}, v{vML+1}, v{vML+1}")
E(f"v_lshlrev_b32 v{vTMP}, 1, v{vTMP}")
E(f"ds_write_b16 v{vTMP}, v{vML+1} offset:{HBF_OFF}")
L("K1_H_DONE:")
E(f"s_mov_b64 exec, s[{sE}:{sE+1}]")
E("s_waitcnt lgkmcnt(0)")
E("s_barrier")
vQ = vWQ + 96
E(f"v_lshlrev_b32 v{vTMP}, 4, v{vG}")
for s in range(6):
    E(f"ds_read_b128 {vr(vQ+4*s)}, v{vTMP} offset:{QBF_OFF + 64*s}")
E("s_waitcnt lgkmcnt(0)")
vS = vML
for tile in range(4):
    E(f"s_waitcnt vmcnt({48 - 6*(tile+1)})")
    for s in range(6):
        b = vKB + (tile * 6 + s) * 4
        c = "0" if s == 0 else vr(vS + 4*tile)
        E(f"v_mfma_f32_16x16x32_bf16 {vr(vS+4*tile)}, {vr(b)}, {vr(vQ+4*s)}, {c}")
C("wo loads into KB region + vQ region")
vWOo = vTMP
E(f"v_mul_u32_u24 v{vWOo}, 1280, v{vG}")
E(f"v_lshl_add_u32 v{vWOo}, v{vJ}, 4, v{vWOo}")
def wo_reg(G, st, c5):
    n = (G * 2 + st) * 5 + c5
    return vKB + 4*n if n < 24 else vQ + 4*(n - 24)
vWD = vXF
for G in range(3):
    for st in range(2):
        E(f"s_mov_b32 s{sOFF}, {G*10240 + st*5120}")
        for c5 in range(5):
            E(f"buffer_load_dwordx4 {vr(wo_reg(G,st,c5))}, v{vWOo}, {sr(sWO)}, s{sOFF} offen offset:{c5*256}")
E(f"s_lshl_b32 s{sOFF}, s{sW}, 8")
E(f"buffer_load_dwordx4 {vr(vWD)}, v{vWOo}, {sr(sWD)}, s{sOFF} offen")
E(f"s_add_u32 s{sOFF}, s{sOFF}, 5120")
E(f"buffer_load_dwordx4 {vr(vWD+4)}, v{vWOo}, {sr(sWD)}, s{sOFF} offen")
for r in range(4):
    E(f"v_cndmask_b32 v{vS+r}, v{vS+r}, v{vS+4+r}, s[{sHF}:{sHF+1}]")
for r in range(4):
    E(f"v_cndmask_b32 v{vS+4+r}, v{vS+8+r}, v{vS+12+r}, s[{sHF}:{sHF+1}]")
t = vTMP + 1
E(f"v_max3_f32 v{t}, v{vS}, v{vS+1}, v{vS+2}")
E(f"v_max3_f32 v{t}, v{t}, v{vS+3}, v{vS+4}")
E(f"v_max3_f32 v{t}, v{t}, v{vS+5}, v{vS+6}")
E(f"v_max_f32 v{t}, v{t}, v{vS+7}")
E("s_nop 1")
E(f"v_max_f32_dpp v{t}, v{t}, v{t} row_ror:8 row_mask:0xf bank_mask:0xf")
E("s_nop 1")
for q in range(4):
    E(f"v_readlane_b32 s{sR0+q}, v{t}, {16*q}")
E("s_nop 1")
E(f"v_mov_b32 v{t}, s{sR0}")
E(f"v_max_f32 v{t}, s{sR0+1}, v{t}")
E(f"v_max_f32 v{t}, s{sR0+2}, v{t}")
E(f"v_max_f32 v{t}, s{sR0+3}, v{t}")
E(f"s_lshl_b32 s{sT}, s{sW}, 2")
E(f"v_mov_b32 v{t+1}, s{sT}")
E(f"ds_write_b32 v{t+1}, v{t} offset:{ST_OFF}")
E(f"v_mul_f32 v{t}, s{sSC}, v{t}")
for r in range(8):
    E(f"v_fma_f32 v{vS+r}, v{vS+r}, s{sSC}, -v{t}")
for r in range(8):
    E(f"v_exp_f32 v{vS+r}, v{vS+r}")
E("s_nop 0")
t2 = vTMP + 3
E(f"v_add_f32 v{t2}, v{vS}, v{vS+1}")
for r in range(2, 8):
    E(f"v_add_f32 v{t2}, v{t2}, v{vS+r}")
E("s_nop 1")
E(f"v_add_f32_dpp v{t2}, v{t2}, v{t2} row_ror:8 row_mask:0xf bank_mask:0xf")
E("s_nop 1")
for q in range(4):
    E(f"v_readlane_b32 s{sR0+q}, v{t2}, {16*q}")
E("s_nop 1")
E(f"v_mov_b32 v{t2}, s{sR0}")
E(f"v_add_f32 v{t2}, s{sR0+1}, v{t2}")
E(f"v_add_f32 v{t2}, s{sR0+2}, v{t2}")
E(f"v_add_f32 v{t2}, s{sR0+3}, v{t2}")
E(f"ds_write_b32 v{t+1}, v{t2} offset:{ST_OFF+32}")
for r in range(8):
    E(f"v_cvt_pk_bf16_f32 v{vS+r}, v{vS+r}, v{vS+r}")
E("s_waitcnt lgkmcnt(0)")
vPA = vS + 8
vBP = vS + 20
for k in range(8):
    expand(vS + k, vBP)
    E(f"s_waitcnt vmcnt({56 - 3*(k+1)})")
    E("s_nop 0")
    b = vWQ + 12 * k
    c = (lambda a: "0") if k == 0 else (lambda a: vr(a))
    E(f"v_mfma_f32_16x16x32_bf16 {vr(vPA)}, {vr(b)}, {vr(vBP)}, {c(vPA)}")
    E(f"v_mfma_f32_16x16x32_bf16 {vr(vPA+4)}, {vr(b+4)}, {vr(vBP)}, {c(vPA+4)}")
    E(f"v_mfma_f32_16x16x32_bf16 {vr(vPA+8)}, {vr(b+8)}, {vr(vBP)}, {c(vPA+8)}")
dump3(vPA, vS)
E("s_waitcnt lgkmcnt(0)")
E("s_barrier")
vT = vWQ
E(f"v_lshlrev_b32 v{vT}, 2, v0")
E(f"v_mov_b32 v{vT+1}, 0")
E(f"ds_read_b128 {vr(vT+4)}, v{vT+1} offset:{ST_OFF}")
E(f"ds_read_b128 {vr(vT+8)}, v{vT+1} offset:{ST_OFF+16}")
E(f"ds_read_b128 {vr(vT+12)}, v{vT+1} offset:{ST_OFF+32}")
E(f"ds_read_b128 {vr(vT+16)}, v{vT+1} offset:{ST_OFF+48}")
E("v_cmp_gt_u32 vcc, 192, v0")
E(f"s_and_saveexec_b64 s[{sE}:{sE+1}], vcc")
E("s_cbranch_execz K1_OSUM_SKIP")
for s in range(16):
    E(f"ds_read_b32 v{vT+20+s}, v{vT} offset:{P_OFF + s*P_STR}")
L("K1_OSUM_SKIP:")
E(f"s_mov_b64 exec, s[{sE}:{sE+1}]")
E("s_waitcnt lgkmcnt(0)")
mm = vT + 2
E(f"v_max3_f32 v{mm}, v{vT+4}, v{vT+5}, v{vT+6}")
E(f"v_max3_f32 v{mm}, v{mm}, v{vT+7}, v{vT+8}")
E(f"v_max3_f32 v{mm}, v{mm}, v{vT+9}, v{vT+10}")
E(f"v_max_f32 v{mm}, v{mm}, v{vT+11}")
for w in range(8):
    E(f"v_sub_f32 v{vT+4+w}, v{vT+4+w}, v{mm}")
for w in range(8):
    E(f"v_mul_f32 v{vT+4+w}, s{sSC}, v{vT+4+w}")
for w in range(8):
    E(f"v_exp_f32 v{vT+4+w}, v{vT+4+w}")
E("s_nop 0")
ll = vT + 3
E(f"v_mul_f32 v{ll}, v{vT+4}, v{vT+12}")
for w in range(1, 8):
    E(f"v_fmac_f32 v{ll}, v{vT+4+w}, v{vT+12+w}")
for w in range(8):
    E(f"v_add_f32 v{vT+20+2*w}, v{vT+20+2*w}, v{vT+21+2*w}")
E(f"v_mul_f32 v{vT+36}, v{vT+4}, v{vT+20}")
for w in range(1, 8):
    E(f"v_fmac_f32 v{vT+36}, v{vT+4+w}, v{vT+20+2*w}")
E(f"v_cvt_pk_bf16_f32 v{vT+36}, v{vT+36}, v{vT+36}")
E(f"v_lshlrev_b32 v{vT+37}, 1, v0")
E("v_cmp_gt_u32 vcc, 192, v0")
E(f"s_and_saveexec_b64 s[{sE}:{sE+1}], vcc")
E(f"ds_write_b16 v{vT+37}, v{vT+36} offset:{OBF_OFF}")
E(f"s_mov_b64 exec, s[{sE}:{sE+1}]")
E(f"s_lshl_b32 s{sROW}, s{sH}, 3")
E(f"s_add_u32 s{sROW}, s{sROW}, s{sC}")
E(f"s_lshl_b32 s{sT}, s{sROW}, 3")
E(f"s_add_u32 s{sT}, s{sT}, {WS_ML}")
E(f"v_mov_b32 v{vT+37}, 0")
E("v_cmp_eq_u32 vcc, 0, v0")
E(f"s_and_saveexec_b64 s[{sE}:{sE+1}], vcc")
E(f"buffer_store_dwordx2 v[{mm}:{mm+1}], v{vT+37}, {sr(sWS)}, s{sT} offen")
E(f"s_mov_b64 exec, s[{sE}:{sE+1}]")
E("s_waitcnt lgkmcnt(0)")
E("s_barrier")
vB = vWQ + 40
vA2 = vWQ + 56
assert vA2 + 40 <= vQ
vAD = vWQ + 40 + 12 + 4
E(f"v_lshrrev_b32 v{vT}, 3, v{vJ}")
E(f"v_lshl_add_u32 v{vT}, v{vT}, 2, v{vG}")
E(f"v_lshlrev_b32 v{vT}, 1, v{vT}")
E(f"s_mul_i32 s{sT}, s{sW}, 48")
E(f"v_add_u32 v{vT+1}, s{sT}, v{vT}")
for G in range(3):
    E(f"ds_read_u16 v{vT+2+G}, v{vT+1} offset:{OBF_OFF + 16*G}")
E(f"ds_read_u16 v{vT+5}, v{vT} offset:{HBF_OFF}")
E("s_waitcnt lgkmcnt(0)")
for G in range(4):
    E(f"v_lshl_or_b32 v{vT+2+G}, v{vT+2+G}, 16, v{vT+2+G}")
for G in range(4):
    expand(vT + 2 + G, vB + 4 * G)
vWDA = vWQ + 8
for G in range(3):
    for st in range(2):
        n_done = (G * 2 + st + 1) * 5
        E(f"s_waitcnt vmcnt({33 - n_done - 0 if False else max(0, 32 - n_done)})")
        for c5 in range(5):
            a = vA2 + (st * 5 + c5) * 4
            c = "0" if G == 0 else vr(a)
            E(f"v_mfma_f32_16x16x32_bf16 {vr(a)}, {vr(wo_reg(G,st,c5))}, {vr(vB+4*G)}, {c}")
E("s_waitcnt vmcnt(0)")
E(f"v_mfma_f32_16x16x32_bf16 {vr(vWDA)}, {vr(vWD)}, {vr(vB+12)}, 0")
E(f"v_mfma_f32_16x16x32_bf16 {vr(vWDA+4)}, {vr(vWD+4)}, {vr(vB+12)}, 0")
a1 = vT
E(f"v_lshrrev_b32 v{vT+1}, 3, v{vJ}")
E(f"s_lshl_b32 s{sT}, s{sW}, 1")
E(f"v_add_u32 v{vT+2}, s{sT}, v{vT+1}")
E(f"v_mul_u32_u24 v{a1}, {Y_STR}, v{vT+2}")
E(f"v_and_b32 v{vT+2}, 7, v{vJ}")
E(f"v_lshlrev_b32 v{vT+2}, 2, v{vT+2}")
E(f"v_lshl_add_u32 v{vT+2}, v{vG}, 7, v{vT+2}")
E(f"v_add_u32 v{a1}, v{a1}, v{vT+2}")
E(f"v_mul_u32_u24 v{vT+3}, {Y_STR}, v{vT+1}")
E(f"v_add_u32 v{vT+3}, v{vT+3}, v{vT+2}")
E(f"s_lshl_b32 s{sT}, s{sW}, 9")
E(f"v_add_u32 v{vT+3}, s{sT}, v{vT+3}")
E("s_nop 7")
for c5 in range(5):
    for r in range(4):
        a = vA2 + c5 * 4 + r
        E(f"v_cndmask_b32 v{a}, v{a}, v{a+20}, s[{sHF}:{sHF+1}]")
for c5 in range(5):
    for r in range(4):
        E(f"ds_write_b32 v{a1}, v{vA2 + c5*4 + r} offset:{Y_OFF + c5*512 + r*32}")
for r in range(4):
    E(f"v_cndmask_b32 v{vWDA+r}, v{vWDA+r}, v{vWDA+4+r}, s[{sHF}:{sHF+1}]")
E(f"s_cmp_ge_u32 s{sW}, 5")
E("s_cbranch_scc1 K1_NOBD")
for r in range(4):
    E(f"ds_write_b32 v{vT+3}, v{vWDA+r} offset:{BP_OFF + r*32}")
L("K1_NOBD:")
E("s_waitcnt lgkmcnt(0)")
E("s_barrier")
E(f"v_lshlrev_b32 v{vT}, 3, v0")
E("v_cmp_gt_u32 vcc, 320, v0")
E(f"s_and_saveexec_b64 s[{sE}:{sE+1}], vcc")
E("s_cbranch_execz K1_FIN_DONE")
vF = vT + 4
for s in range(16):
    E(f"ds_read_b64 v[{vF+2*s}:{vF+2*s+1}], v{vT} offset:{Y_OFF + s*Y_STR}")
E(f"ds_read_b64 v[{vF+32}:{vF+33}], v{vT} offset:{BP_OFF}")
E(f"ds_read_b64 v[{vF+34}:{vF+35}], v{vT} offset:{BP_OFF + Y_STR}")
E("s_waitcnt lgkmcnt(0)")
for st in (8, 4, 2, 1):
    for s in range(st):
        for q in range(2):
            E(f"v_add_f32 v{vF+2*s+q}, v{vF+2*s+q}, v{vF+2*(s+st)+q}")
E(f"v_add_f32 v{vF+32}, v{vF+32}, v{vF+34}")
E(f"v_add_f32 v{vF+33}, v{vF+33}, v{vF+35}")
E(f"s_mul_i32 s{sT}, s{sROW}, 2560")
E(f"buffer_store_dwordx2 v[{vF}:{vF+1}], v{vT}, {sr(sWS)}, s{sT} offen")
E(f"s_cmp_ge_u32 s{sIDX}, 24")
E("s_cbranch_scc1 K1_FIN_DONE")
E(f"s_mul_i32 s{sT}, s{sMLPI}, 2560")
E(f"s_add_u32 s{sT}, s{sT}, {WS_B}")
E(f"buffer_store_dwordx2 v[{vF+32}:{vF+33}], v{vT}, {sr(sWS)}, s{sT} offen")
L("K1_FIN_DONE:")
L("K1_END:")
E("s_endpgm")

L(f".globl {K2}")
L(".p2align 8")
L(f".type {K2},@function")
L(f"{K2}:")
E("s_cmp_ge_u32 s2, 160")
E("s_cbranch_scc1 K2_END")
E("s_load_dwordx2 s[8:9], s[0:1], 0")
E("s_load_dwordx2 s[10:11], s[0:1], 72")
E("s_load_dwordx2 s[12:13], s[0:1], 80")
E("s_load_dwordx2 s[14:15], s[0:1], 96")
E("v_lshrrev_b32 v1, 6, v0")
E("s_nop 0")
E("v_readfirstlane_b32 s3, v1")
E(f"s_mov_b32 s33, 0x{f32bits(SCALE_LOG2E):08x}")
E("s_waitcnt lgkmcnt(0)")
for dst, p, n in ((16, 8, 1280), (20, 10, 1280), (24, 12, 1280), (28, 14, 0x400000)):
    E(f"s_mov_b32 s{dst}, s{p}")
    E(f"s_and_b32 s{dst+1}, s{p+1}, 0xffff")
    E(f"s_mov_b32 s{dst+2}, {n}")
    E(f"s_mov_b32 s{dst+3}, 0x00020000")
E("v_mul_u32_u24 v2, 2560, v0")
E(f"v_add_u32 v3, {WS_B - 256*2560}, v2")
E("v_cmp_gt_u32 vcc, 256, v0")
E("s_nop 1")
E("v_cndmask_b32 v2, v3, v2, vcc")
E("s_lshl_b32 s4, s2, 4")
E("buffer_load_dwordx4 v[4:7], v2, s[28:31], s4 offen")
E("v_lshrrev_b32 v3, 3, v0")
E("v_lshlrev_b32 v3, 6, v3")
E(f"s_mov_b32 s5, {WS_ML}")
for q in range(4):
    E(f"buffer_load_dwordx4 v[{8+4*q}:{11+4*q}], v3, s[28:31], s5 offen offset:{16*q}")
E("v_lshlrev_b32 v3, 3, v0")
E("buffer_load_dwordx2 v[24:25], v3, s[28:31], s5 offen")
E("v_lshlrev_b32 v3, 2, v0")
E("buffer_load_dword v26, v3, s[16:19], 0 offen")
E("buffer_load_dword v27, v3, s[20:23], 0 offen")
E("s_waitcnt vmcnt(0)")
E("v_lshlrev_b32 v28, 16, v26")
E("v_and_b32 v26, 0xffff0000, v26")
E("v_lshlrev_b32 v29, 16, v27")
E("v_and_b32 v27, 0xffff0000, v27")
E("v_mul_f32 v28, v28, v29")
E("v_fmac_f32 v28, v26, v27")
E("v_max3_f32 v30, v8, v10, v12")
E("v_max3_f32 v30, v30, v14, v16")
E("v_max3_f32 v30, v30, v18, v20")
E("v_max_f32 v30, v30, v22")
for c in range(8):
    E(f"v_sub_f32 v{8+2*c}, v{8+2*c}, v30")
for c in range(8):
    E(f"v_mul_f32 v{8+2*c}, s33, v{8+2*c}")
for c in range(8):
    E(f"v_exp_f32 v{8+2*c}, v{8+2*c}")
E("v_sub_f32 v24, v24, v30")
E("v_mul_f32 v24, s33, v24")
E("v_exp_f32 v24, v24")
E("v_mul_f32 v31, v8, v9")
for c in range(1, 8):
    E(f"v_fmac_f32 v31, v{8+2*c}, v{9+2*c}")
E("v_rcp_f32 v31, v31")
E("s_nop 0")
E("v_mul_f32 v24, v24, v31")
E("v_cmp_gt_u32 vcc, 256, v0")
E("s_nop 1")
E("v_cndmask_b32 v24, 1.0, v24, vcc")
for q in range(4):
    E(f"v_mul_f32 v{4+q}, v{4+q}, v24")
dpp_reduce([4, 5, 6, 7, 28])
E("s_lshl_b32 s6, s3, 5")
E("v_mov_b32 v2, s6")
E("s_mov_b32 exec_lo, 0")
E("s_mov_b32 exec_hi, 0x80000000")
E("ds_write_b128 v2, v[4:7]")
E("ds_write_b32 v2, v28 offset:16")
E("s_mov_b64 exec, -1")
E("s_waitcnt lgkmcnt(0)")
E("s_barrier")
E("s_cmp_lg_u32 s3, 0")
E("s_cbranch_scc1 K2_END")
E("v_lshlrev_b32 v2, 2, v0")
for w in range(7):
    E(f"ds_read_b32 v{8+w}, v2 offset:{32*w}")
E("v_mov_b32 v3, 0")
for w in range(7):
    E(f"ds_read_b32 v{16+w}, v3 offset:{32*w+16}")
E("s_waitcnt lgkmcnt(0)")
E("v_add_f32 v8, v8, v9")
E("v_add_f32 v10, v10, v11")
E("v_add_f32 v8, v8, v10")
E("v_add_f32 v12, v12, v13")
E("v_add_f32 v12, v12, v14")
for w in range(1, 7):
    E(f"v_add_f32 v16, v16, v{16+w}")
E("v_mul_f32 v16, 0xbfb8aa3b, v16")
E("v_exp_f32 v16, v16")
E("s_nop 0")
E("v_add_f32 v16, 1.0, v16")
E("v_rcp_f32 v16, v16")
E("s_nop 0")
E("v_sub_f32 v17, 1.0, v16")
E("v_mul_f32 v8, v8, v16")
E("v_fmac_f32 v8, v12, v17")
E("v_cvt_pk_bf16_f32 v8, v8, v8")
E("v_lshlrev_b32 v2, 1, v0")
E("s_lshl_b32 s4, s2, 3")
E("v_cmp_gt_u32 vcc, 4, v0")
E("s_and_saveexec_b64 s[6:7], vcc")
E("buffer_store_short v8, v2, s[24:27], s4 offen")
L("K2_END:")
E("s_endpgm")

L('.section .rodata,"a"')
for k, nv, ns in ((K1, 256, 96), (K2, 32, 40)):
    L(".p2align 6")
    L(f".amdhsa_kernel {k}")
    L(f"  .amdhsa_next_free_vgpr {nv}")
    L(f"  .amdhsa_next_free_sgpr {ns}")
    L(f"  .amdhsa_accum_offset {nv}")
    L("  .amdhsa_group_segment_fixed_size 0")
    L("  .amdhsa_kernarg_size 104")
    L("  .amdhsa_user_sgpr_count 2")
    L("  .amdhsa_user_sgpr_kernarg_segment_ptr 1")
    L("  .amdhsa_system_sgpr_workgroup_id_x 1")
    L(".end_amdhsa_kernel")

open(sys.argv[1], 'w').write('\n'.join(out) + '\n')
```

```python
import sys, struct

NAME = "gated_mix__sliding_block_cached__glu_gated_reglu__decode"
out = []
def E(s): out.append("    " + s)
def L(s): out.append(s)
def C(s): out.append("    ; " + s)

HEADER = open('cdna_kernels/' + NAME + '.s.ref').read().split('\n')
hdr = []
for ln in HEADER:
    if ln.startswith('; @launch') or ln.startswith('.amdgcn_target'):
        break
    hdr.append(ln)

opts = sys.argv[2] if len(sys.argv) > 2 else ""
NT = " nt" if 'nt' in opts.split(',') else ""

P_OFF   = 0
P_STR   = 800
Y_OFF   = 12800
Y_STR   = 2592
BP_OFF  = Y_OFF + 16 * Y_STR
QBF_OFF = BP_OFF + 2 * Y_STR
OBF_OFF = QBF_OFF + 384
ST_OFF  = OBF_OFF + 384
MP_OFF  = ST_OFF + 64
HBF_OFF = MP_OFF + 512
LDS_SZ  = HBF_OFF + 64
assert LDS_SZ <= 65536

WS_Y  = 0
WS_ML = 0xA0000
WS_B  = 0x100000

SCALE_LOG2E = (192.0 ** -0.5) * 1.4426950408889634
def f32bits(x): return struct.unpack('<I', struct.pack('<f', x))[0]

K1 = "mixk1_main_kernel"
K2 = "mixk2_final_kernel"

L('\n'.join(hdr))
L(f"; @launch kernel={K1} grid=(256,1,1) block=(512,1,1) lds=65536")
L(f"; @launch kernel={K2} grid=(160,1,1) block=(448,1,1) lds=1024")
L('.amdgcn_target "amdgcn-amd-amdhsa--gfx950"')
L(".text")
L(f".globl {K1}")
L(".p2align 8")
L(f".type {K1},@function")
L(f"{K1}:")

vL, vG, vJ = 1, 2, 3
vM = [4, 5, 6, 7]
vXF = 8
vXA, vXB = 13, 14
vT15 = 15
vML = 16
vTMP = 32
vKB = 40
vWQ = 136

sW, sXCD, sIDX, sH, sC, sT = 34, 35, 36, 37, 38, 39
sK, sV, sWQ, sWO, sWG, sWU, sWD, sX, sWS = 40, 44, 48, 52, 56, 60, 64, 68, 72
sSELLO, sSELHI = 76, 77
sHF = 78
sV2 = 80
sOFF = 82
sSC = 83
s160W = 84
sROW = 85
sE = 86
sR0 = 88
sMLPI = 92

ST = 'st' in opts.split(',')
STW = 0
for o in opts.split(','):
    if o.startswith('stw'): STW = int(o[3:])
stamp_regs = [94] + list(range(8, 34, 2))
stamp_n = [0]
def stamp():
    if not ST: return
    r = stamp_regs[stamp_n[0]]; stamp_n[0] += 1
    E(f"s_memrealtime s[{r}:{r+1}]")
def vr(a, n=4): return f"v[{a}:{a+n-1}]"
def sr(a, n=4): return f"s[{a}:{a+n-1}]"

def srd(dst, plo, off_s, nrec):
    E(f"s_add_u32 s{dst}, s{plo}, s{off_s}")
    E(f"s_addc_u32 s{dst+1}, s{plo+1}, 0")
    E(f"s_and_b32 s{dst+1}, s{dst+1}, 0xffff")
    E(f"s_mov_b32 s{dst+2}, {nrec}")
    E(f"s_mov_b32 s{dst+3}, 0x00020000")

def dpp_reduce(regs):
    for ctl in ["row_shr:1", "row_shr:2", "row_shr:4", "row_shr:8"]:
        for r in regs:
            E(f"v_add_f32_dpp v{r}, v{r}, v{r} {ctl} row_mask:0xf bank_mask:0xf bound_ctrl:0")
        if len(regs) < 3: E("s_nop 1")
    for r in regs:
        E(f"v_add_f32_dpp v{r}, v{r}, v{r} row_bcast:15 row_mask:0xa bank_mask:0xf")
    if len(regs) < 3: E("s_nop 1")
    for r in regs:
        E(f"v_add_f32_dpp v{r}, v{r}, v{r} row_bcast:31 row_mask:0xc bank_mask:0xf")

def expand(dup, dst):
    for w in range(4):
        E(f"v_and_b32 v{dst+w}, v{dup}, v{vM[w]}")

E("s_cmp_ge_u32 s2, 256")
E("s_cbranch_scc1 K1_END")
stamp()
E("s_load_dwordx16 s[8:23], s[0:1], 0")
E("s_load_dwordx8 s[24:31], s[0:1], 64")
E("s_load_dwordx2 s[32:33], s[0:1], 96")
E(f"v_and_b32 v{vL}, 63, v0")
E(f"v_bfe_u32 v{vG}, v0, 4, 2")
E(f"v_and_b32 v{vJ}, 15, v0")
E(f"v_lshrrev_b32 v{vT15}, 6, v0")
E("s_nop 0")
E(f"v_readfirstlane_b32 s{sW}, v{vT15}")
E(f"s_and_b32 s{sXCD}, s2, 7")
E(f"s_lshr_b32 s{sIDX}, s2, 3")
E(f"s_and_b32 s{sH}, s{sIDX}, 3")
E(f"s_lshl_b32 s{sT}, s{sXCD}, 2")
E(f"s_add_u32 s{sH}, s{sH}, s{sT}")
E(f"s_lshr_b32 s{sC}, s{sIDX}, 2")
E(f"s_mov_b32 s{sSELLO}, 0x01000100")
E(f"s_mov_b32 s{sSELHI}, 0x03020302")
E(f"s_mov_b32 s{sHF}, 0xFF00FF00")
E(f"s_mov_b32 s{sHF+1}, 0xFF00FF00")
E(f"s_mov_b32 s{sV2}, 0x00FF00FF")
E(f"s_mov_b32 s{sV2+1}, 0xFF00FF00")
E(f"s_mov_b32 s{sSC}, 0x{f32bits(SCALE_LOG2E):08x}")
E(f"v_and_b32 v{vTMP}, 1, v{vJ}")
E(f"v_lshlrev_b32 v{vTMP}, 4, v{vTMP}")
E(f"v_mov_b32 v{vTMP+1}, 0xffff")
E(f"v_lshlrev_b32 v{vTMP+1}, v{vTMP}, v{vTMP+1}")
E(f"v_bfe_u32 v{vTMP+2}, v{vJ}, 1, 2")
for w in range(4):
    E(f"v_cmp_eq_u32 vcc, {w}, v{vTMP+2}")
    E("s_nop 1")
    E(f"v_cndmask_b32 v{vM[w]}, 0, v{vTMP+1}, vcc")
E(f"v_lshrrev_b32 v{vTMP}, 3, v{vJ}")
E(f"v_lshl_add_u32 v{vTMP+1}, v{vTMP}, 2, v{vG}")
E(f"v_mul_u32_u24 v{vTMP+2}, 20, v{vTMP+1}")
E(f"v_and_b32 v{vTMP+3}, 7, v{vJ}")
E(f"v_mul_u32_u24 v{vTMP+4}, 122880, v{vG}")
E(f"v_lshl_add_u32 v{vTMP+4}, v{vJ}, 4, v{vTMP+4}")
E(f"v_add_u32 v{vTMP+5}, 491520, v{vTMP+4}")
E(f"v_mul_u32_u24 v{vTMP+6}, 122880, v{vTMP+1}")
E(f"v_lshl_add_u32 v{vTMP+6}, v{vTMP+3}, 4, v{vTMP+6}")
E(f"v_add_u32 v{vTMP+6}, 256, v{vTMP+6}")
E(f"v_and_b32 v{vTMP+7}, 3, v{vJ}")
E(f"v_lshlrev_b32 v{vTMP+7}, 3, v{vTMP+7}")
E(f"v_bfe_u32 v{vT15}, v{vJ}, 2, 1")
E(f"v_add_u32 v{vTMP+7}, v{vTMP+7}, v{vT15}")
E(f"v_mul_u32_u24 v{vTMP+7}, 384, v{vTMP+7}")
E(f"v_lshl_add_u32 v{vTMP+7}, v{vG}, 4, v{vTMP+7}")
E(f"v_lshlrev_b32 v{vT15}, 6, v{vTMP}")
E(f"v_sub_u32 v{vKB+95}, v{vTMP+7}, v{vT15}")
E(f"v_add_u32 v{vKB+95}, 64, v{vKB+95}")
E(f"v_add_u32 v{vTMP+7}, v{vTMP+7}, v{vT15}")
E(f"v_mul_u32_u24 v{vT15}, 3072, v{vL}")
E(f"v_add_u32 v{vTMP+3}, 196608, v{vT15}")
E(f"v_lshlrev_b32 v{vTMP}, 1, v{vL}")
E(f"s_mul_i32 s{s160W}, s{sW}, 160")
E("s_waitcnt lgkmcnt(0)")
E(f"s_mul_i32 s{sT}, s{sH}, 12582912")
E(f"s_mul_i32 s{sOFF}, s{sC}, 196608")
E(f"s_add_u32 s{sT}, s{sT}, s{sOFF}")
E(f"s_mul_i32 s{sOFF}, s{sW}, 24576")
E(f"s_add_u32 s{sT}, s{sT}, s{sOFF}")
E(f"s_add_u32 s{sT}, s{sT}, 11010048")
srd(sK, 10, sT, 24576)
srd(sV, 12, sT, 24576)
E(f"s_mul_i32 s{sT}, s{sH}, 384")
E(f"s_mul_i32 s{sOFF}, s{sW}, 983040")
E(f"s_add_u32 s{sT}, s{sT}, s{sOFF}")
srd(sWQ, 14, sT, 79 * 12288 + 384)
E(f"s_mul_i32 s{sT}, s{sH}, 245760")
E(f"s_mul_i32 s{sOFF}, s{sW}, 30720")
E(f"s_add_u32 s{sT}, s{sT}, s{sOFF}")
srd(sWO, 16, sT, 30720)
E(f"s_min_u32 s{sOFF}, s{sIDX}, 23")
E(f"s_mul_i32 s{sMLPI}, s{sXCD}, 24")
E(f"s_add_u32 s{sMLPI}, s{sMLPI}, s{sOFF}")
E(f"s_lshl_b32 s{sT}, s{sMLPI}, 4")
E(f"s_mul_i32 s{sOFF}, s{sW}, 245760")
E(f"s_add_u32 s{sT}, s{sT}, s{sOFF}")
srd(sWG, 20, sT, 79 * 3072 + 16)
srd(sWU, 22, sT, 79 * 3072 + 16)
E(f"s_mul_i32 s{sT}, s{sMLPI}, 10240")
srd(sWD, 24, sT, 10240)
E(f"s_cmp_lt_u32 s{sIDX}, 24")
E(f"s_cselect_b32 s{sWG+2}, s{sWG+2}, 0")
E(f"s_cselect_b32 s{sWU+2}, s{sWU+2}, 0")
E(f"s_cselect_b32 s{sWD+2}, s{sWD+2}, 0")
E(f"s_cmp_lt_u32 s{sW}, 5")
E(f"s_cselect_b32 s{sWD+2}, s{sWD+2}, 0")
E(f"s_mov_b32 s{sT}, 0")
srd(sX, 8, sT, 1280)
srd(sWS, 32, sT, 0x400000)

C("x fragment, x rows, MLP rows")
E(f"buffer_load_dwordx4 {vr(vXF)}, v{vTMP+2}, {sr(sX)}, s{s160W} offen")
E(f"buffer_load_dword v{vXF+4}, v{vTMP+2}, {sr(sX)}, s{s160W} offen offset:16")
E(f"buffer_load_ushort v{vXA}, v{vTMP}, {sr(sX)}, s{s160W} offen")
E(f"buffer_load_ushort v{vXB}, v{vTMP}, {sr(sX)}, s{s160W} offen offset:128")
E(f"buffer_load_dwordx4 {vr(vML)}, v{vT15}, {sr(sWG)}, 0 offen")
E(f"buffer_load_dwordx4 {vr(vML+4)}, v{vTMP+3}, {sr(sWG)}, 0 offen")
E(f"buffer_load_dwordx4 {vr(vML+8)}, v{vT15}, {sr(sWU)}, 0 offen")
E(f"buffer_load_dwordx4 {vr(vML+12)}, v{vTMP+3}, {sr(sWU)}, 0 offen")
C("wq loads: 10 groups x 3")
for t in range(10):
    E(f"s_mov_b32 s{sOFF}, {t*12288}")
    b = vWQ + 12 * t
    E(f"buffer_load_dwordx4 {vr(b)}, v{vTMP+4}, {sr(sWQ)}, s{sOFF} offen")
    E(f"buffer_load_dwordx4 {vr(b+4)}, v{vTMP+5}, {sr(sWQ)}, s{sOFF} offen")
    E(f"buffer_load_dwordx4 {vr(b+8)}, v{vTMP+6}, {sr(sWQ)}, s{sOFF} offen")
C("K loads: 2 quads x 4 groups (a,b,c,d) x 3 steps")
GOFF = [0, 2, 6, 4]
for Q in range(2):
    E(f"s_mov_b32 s{sOFF}, {Q*12288}")
    for gi in range(4):
        for s in range(3):
            b = vKB + ((Q * 4 + gi) * 3 + s) * 4
            va = vTMP + 7 if gi in (0, 2) else vKB + 95
            E(f"buffer_load_dwordx4 {vr(b)}, v{va}, {sr(sK)}, s{sOFF} offen offset:{GOFF[gi]*384+s*128}{NT}")
NTOT = 8 + 30 + 24
stamp()
E(f"s_waitcnt vmcnt({NTOT-8})")
stamp()
E(f"v_lshlrev_b32 v{vXA}, 16, v{vXA}")
E(f"v_lshlrev_b32 v{vXB}, 16, v{vXB}")
for m in range(2):
    A = vML + 8 * m; B = A + 4
    for k in range(4):
        t0, t1, t2, t3 = vTMP, vTMP+1, vTMP+2, vTMP+3
        E(f"v_lshlrev_b32 v{t0}, 16, v{A+k}")
        E(f"v_and_b32 v{t1}, 0xffff0000, v{A+k}")
        E(f"v_lshlrev_b32 v{t2}, 16, v{B+k}")
        E(f"v_and_b32 v{t3}, 0xffff0000, v{B+k}")
        E(f"v_mul_f32 v{A+k}, v{vXA}, v{t0}")
        E(f"v_mul_f32 v{B+k}, v{vXA}, v{t1}")
        E(f"v_fmac_f32 v{A+k}, v{vXB}, v{t2}")
        E(f"v_fmac_f32 v{B+k}, v{vXB}, v{t3}")
dpp_reduce(list(range(vML, vML + 16)))
E(f"s_lshl_b32 s{sT}, s{sW}, 6")
E(f"v_mov_b32 v{vTMP}, s{sT}")
E("s_mov_b32 exec_lo, 0")
E("s_mov_b32 exec_hi, 0x80000000")
for q in range(4):
    E(f"ds_write_b128 v{vTMP}, {vr(vML+4*q)} offset:{MP_OFF + 16*q}")
E("s_mov_b64 exec, -1")
E("s_waitcnt lgkmcnt(0)")

vAC = vML
for t in range(10):
    bx = vTMP + 4 * (t & 1)
    E(f"v_perm_b32 v{vT15}, v{vXF + (t>>1)}, v{vXF + (t>>1)}, s{sSELHI if (t&1) else sSELLO}")
    expand(vT15, bx)
    E(f"s_waitcnt vmcnt({NTOT-8-3*(t+1)})")
    E("s_nop 0")
    b = vWQ + 12 * t
    c = (lambda a: "0") if t == 0 else (lambda a: vr(a))
    E(f"v_mfma_f32_16x16x32_bf16 {vr(vAC)}, {vr(b)}, {vr(bx)}, {c(vAC)}")
    E(f"v_mfma_f32_16x16x32_bf16 {vr(vAC+4)}, {vr(b+4)}, {vr(bx)}, {c(vAC+4)}")
    E(f"v_mfma_f32_16x16x32_bf16 {vr(vAC+8)}, {vr(b+8)}, {vr(bx)}, {c(vAC+8)}")

stamp()
C("V loads")
vVA, vVB = vTMP, vTMP + 1
E(f"v_mul_u32_u24 v{vVA}, 384, v{vG}")
E(f"v_lshl_add_u32 v{vVA}, v{vJ}, 4, v{vVA}")
E(f"v_lshrrev_b32 v{vTMP+2}, 3, v{vJ}")
E(f"v_lshl_add_u32 v{vTMP+2}, v{vTMP+2}, 2, v{vG}")
E(f"v_mul_u32_u24 v{vVB}, 384, v{vTMP+2}")
E(f"v_and_b32 v{vTMP+2}, 7, v{vJ}")
E(f"v_lshl_add_u32 v{vVB}, v{vTMP+2}, 4, v{vVB}")
E(f"v_add_u32 v{vVB}, 256, v{vVB}")
for k in range(8):
    E(f"s_mov_b32 s{sOFF}, {k*3072}")
    b = vWQ + 12 * k
    E(f"buffer_load_dwordx4 {vr(b)}, v{vVA}, {sr(sV)}, s{sOFF} offen{NT}")
    E(f"buffer_load_dwordx4 {vr(b+4)}, v{vVA}, {sr(sV)}, s{sOFF} offen offset:1536{NT}")
    E(f"buffer_load_dwordx4 {vr(b+8)}, v{vVB}, {sr(sV)}, s{sOFF} offen{NT}")

def dump3(ac, tb):
    a1, a2, t = tb, tb + 1, tb + 2
    E(f"v_lshrrev_b32 v{t}, 3, v{vJ}")
    E(f"s_lshl_b32 s{sT}, s{sW}, 1")
    E(f"v_add_u32 v{t}, s{sT}, v{t}")
    E(f"v_mul_u32_u24 v{a1}, {P_STR}, v{t}")
    E(f"v_and_b32 v{t}, 7, v{vJ}")
    E(f"v_lshl_add_u32 v{a1}, v{t}, 2, v{a1}")
    E(f"v_and_b32 v{t}, 1, v{vG}")
    E(f"v_lshl_add_u32 v{a2}, v{t}, 7, v{a1}")
    E(f"v_lshl_add_u32 v{a1}, v{vG}, 7, v{a1}")
    E("s_nop 7")
    for r in range(4):
        E(f"v_cndmask_b32 v{ac+r}, v{ac+r}, v{ac+4+r}, s[{sHF}:{sHF+1}]")
    for r in range(4):
        E(f"ds_write_b32 v{a1}, v{ac+r} offset:{P_OFF + r*32}")
    E(f"s_mov_b64 exec, s[{sV2}:{sV2+1}]")
    for r in range(4):
        E(f"ds_write_b32 v{a2}, v{ac+8+r} offset:{P_OFF + 512 + r*32}")
    E("s_mov_b64 exec, -1")
dump3(vAC, vTMP + 2)
E("s_waitcnt lgkmcnt(0)")
E("s_barrier")
stamp()
E(f"v_lshlrev_b32 v{vTMP}, 2, v0")
E("v_cmp_gt_u32 vcc, 192, v0")
E(f"s_and_saveexec_b64 s[{sE}:{sE+1}], vcc")
E("s_cbranch_execz K1_QSUM_DONE")
for s in range(16):
    E(f"ds_read_b32 v{vML+s}, v{vTMP} offset:{P_OFF + s*P_STR}")
E("s_waitcnt lgkmcnt(0)")
for st in (8, 4, 2, 1):
    for s in range(st):
        E(f"v_add_f32 v{vML+s}, v{vML+s}, v{vML+s+st}")
E(f"v_cvt_pk_bf16_f32 v{vML}, v{vML}, v{vML}")
E(f"v_lshlrev_b32 v{vTMP}, 1, v0")
E(f"ds_write_b16 v{vTMP}, v{vML} offset:{QBF_OFF}")
L("K1_QSUM_DONE:")
E(f"s_mov_b64 exec, s[{sE}:{sE+1}]")
E(f"v_subrev_u32 v{vTMP}, 192, v0")
E(f"v_cmp_gt_u32 vcc, 8, v{vTMP}")
E(f"s_and_saveexec_b64 s[{sE}:{sE+1}], vcc")
E("s_cbranch_execz K1_H_DONE")
E(f"v_and_b32 v{vTMP+1}, 1, v{vTMP}")
E(f"v_lshrrev_b32 v{vTMP+2}, 1, v{vTMP}")
E(f"v_lshl_add_u32 v{vTMP+1}, v{vTMP+1}, 2, v{vTMP+2}")
E(f"v_lshlrev_b32 v{vTMP+1}, 2, v{vTMP+1}")
for w in range(8):
    E(f"ds_read_b32 v{vML+w}, v{vTMP+1} offset:{MP_OFF + w*64}")
    E(f"ds_read_b32 v{vML+8+w}, v{vTMP+1} offset:{MP_OFF + w*64 + 32}")
E("s_waitcnt lgkmcnt(0)")
for st in (4, 2, 1):
    for s in range(st):
        E(f"v_add_f32 v{vML+s}, v{vML+s}, v{vML+s+st}")
        E(f"v_add_f32 v{vML+8+s}, v{vML+8+s}, v{vML+8+s+st}")
E(f"v_cvt_pk_bf16_f32 v{vML}, v{vML}, v{vML+8}")
E(f"v_lshlrev_b32 v{vML+1}, 16, v{vML}")
E(f"v_and_b32 v{vML+2}, 0xffff0000, v{vML}")
E(f"v_max_f32 v{vML+1}, 0, v{vML+1}")
E(f"v_mul_f32 v{vML+1}, v{vML+1}, v{vML+2}")
E(f"v_cvt_pk_bf16_f32 v{vML+1}, v{vML+1}, v{vML+1}")
E(f"v_lshlrev_b32 v{vTMP}, 1, v{vTMP}")
E(f"ds_write_b16 v{vTMP}, v{vML+1} offset:{HBF_OFF}")
L("K1_H_DONE:")
E(f"s_mov_b64 exec, s[{sE}:{sE+1}]")
E("s_waitcnt lgkmcnt(0)")
E("s_barrier")
stamp()
vQ = vWQ + 96
E(f"v_lshrrev_b32 v{vTMP+1}, 3, v{vJ}")
E(f"v_lshlrev_b32 v{vTMP+1}, 6, v{vTMP+1}")
E(f"v_lshl_add_u32 v{vTMP}, v{vG}, 4, v{vTMP+1}")
for s in range(3):
    E(f"ds_read_b128 {vr(vQ+4*s)}, v{vTMP} offset:{QBF_OFF + 128*s}")
E(f"v_xor_b32 v{vTMP+2}, 40, v{vL}")
E(f"v_lshlrev_b32 v{vTMP+2}, 2, v{vTMP+2}")
E("s_waitcnt lgkmcnt(0)")
vS = vML
vD = vML
vF = vQ + 12
for Q in range(2):
    for gi in range(4):
        E(f"s_waitcnt vmcnt({48 - 3*(Q*4+gi+1)})")
        for s in range(3):
            b = vKB + ((Q * 4 + gi) * 3 + s) * 4
            c = "0" if s == 0 else vr(vD + 4*gi)
            E(f"v_mfma_f32_16x16x32_bf16 {vr(vD+4*gi)}, {vr(b)}, {vr(vQ+4*s)}, {c}")
    E("s_nop 7")
    for r in range(4):
        a, b_, c_, d = vD + r, vD + 4 + r, vD + 8 + r, vD + 12 + r
        u1, u2 = vTMP + 4, vTMP + 5
        E(f"v_cndmask_b32 v{u1}, v{b_}, v{a}, s[{sV2}:{sV2+1}]")
        E(f"v_cndmask_b32 v{u2}, v{d}, v{c_}, s[{sV2}:{sV2+1}]")
        E(f"v_cndmask_b32 v{vF+4*Q+r}, v{u1}, v{u2}, s[{sHF}:{sHF+1}]")
        E(f"v_cndmask_b32 v{a}, v{u2}, v{u1}, s[{sHF}:{sHF+1}]")
    for r in range(4):
        E(f"ds_bpermute_b32 v{vD+4+r}, v{vTMP+2}, v{vD+r}")
    E("s_waitcnt lgkmcnt(0)")
    for r in range(4):
        E(f"v_add_f32 v{vF+4*Q+r}, v{vF+4*Q+r}, v{vD+4+r}")
for r in range(8):
    E(f"v_mov_b32 v{vS+r}, v{vF+r}")
stamp()
C("wo loads into KB region + vQ region")
vWOo = vTMP
E(f"v_mul_u32_u24 v{vWOo}, 1280, v{vG}")
E(f"v_lshl_add_u32 v{vWOo}, v{vJ}, 4, v{vWOo}")
def wo_reg(G, st, c5):
    n = (G * 2 + st) * 5 + c5
    return vKB + 4*n if n < 24 else vQ + 4*(n - 24)
vWD = vXF
for G in range(3):
    for st in range(2):
        E(f"s_mov_b32 s{sOFF}, {G*10240 + st*5120}")
        for c5 in range(5):
            E(f"buffer_load_dwordx4 {vr(wo_reg(G,st,c5))}, v{vWOo}, {sr(sWO)}, s{sOFF} offen offset:{c5*256}")
E(f"s_lshl_b32 s{sOFF}, s{sW}, 8")
E(f"buffer_load_dwordx4 {vr(vWD)}, v{vWOo}, {sr(sWD)}, s{sOFF} offen")
E(f"s_add_u32 s{sOFF}, s{sOFF}, 5120")
E(f"buffer_load_dwordx4 {vr(vWD+4)}, v{vWOo}, {sr(sWD)}, s{sOFF} offen")
stamp()
t = vTMP + 1
E(f"v_max3_f32 v{t}, v{vS}, v{vS+1}, v{vS+2}")
E(f"v_max3_f32 v{t}, v{t}, v{vS+3}, v{vS+4}")
E(f"v_max3_f32 v{t}, v{t}, v{vS+5}, v{vS+6}")
E(f"v_max_f32 v{t}, v{t}, v{vS+7}")
E("s_nop 1")
E(f"v_max_f32_dpp v{t}, v{t}, v{t} row_ror:8 row_mask:0xf bank_mask:0xf")
E("s_nop 1")
for q in range(4):
    E(f"v_readlane_b32 s{sR0+q}, v{t}, {16*q}")
E("s_nop 1")
E(f"v_mov_b32 v{t}, s{sR0}")
E(f"v_max_f32 v{t}, s{sR0+1}, v{t}")
E(f"v_max_f32 v{t}, s{sR0+2}, v{t}")
E(f"v_max_f32 v{t}, s{sR0+3}, v{t}")
E(f"s_lshl_b32 s{sT}, s{sW}, 2")
E(f"v_mov_b32 v{t+1}, s{sT}")
E(f"ds_write_b32 v{t+1}, v{t} offset:{ST_OFF}")
E(f"v_mul_f32 v{t}, s{sSC}, v{t}")
for r in range(8):
    E(f"v_fma_f32 v{vS+r}, v{vS+r}, s{sSC}, -v{t}")
for r in range(8):
    E(f"v_exp_f32 v{vS+r}, v{vS+r}")
E("s_nop 0")
t2 = vTMP + 3
E(f"v_add_f32 v{t2}, v{vS}, v{vS+1}")
for r in range(2, 8):
    E(f"v_add_f32 v{t2}, v{t2}, v{vS+r}")
E("s_nop 1")
E(f"v_add_f32_dpp v{t2}, v{t2}, v{t2} row_ror:8 row_mask:0xf bank_mask:0xf")
E("s_nop 1")
for q in range(4):
    E(f"v_readlane_b32 s{sR0+q}, v{t2}, {16*q}")
E("s_nop 1")
E(f"v_mov_b32 v{t2}, s{sR0}")
E(f"v_add_f32 v{t2}, s{sR0+1}, v{t2}")
E(f"v_add_f32 v{t2}, s{sR0+2}, v{t2}")
E(f"v_add_f32 v{t2}, s{sR0+3}, v{t2}")
E(f"ds_write_b32 v{t+1}, v{t2} offset:{ST_OFF+32}")
for r in range(8):
    E(f"v_cvt_pk_bf16_f32 v{vS+r}, v{vS+r}, v{vS+r}")
E("s_waitcnt lgkmcnt(0)")
vPA = vS + 8
vBP = vS + 20
for k in range(8):
    expand(vS + k, vBP)
    E(f"s_waitcnt vmcnt({56 - 3*(k+1)})")
    E("s_nop 0")
    b = vWQ + 12 * k
    c = (lambda a: "0") if k == 0 else (lambda a: vr(a))
    E(f"v_mfma_f32_16x16x32_bf16 {vr(vPA)}, {vr(b)}, {vr(vBP)}, {c(vPA)}")
    E(f"v_mfma_f32_16x16x32_bf16 {vr(vPA+4)}, {vr(b+4)}, {vr(vBP)}, {c(vPA+4)}")
    E(f"v_mfma_f32_16x16x32_bf16 {vr(vPA+8)}, {vr(b+8)}, {vr(vBP)}, {c(vPA+8)}")
stamp()
dump3(vPA, vS)
E("s_waitcnt lgkmcnt(0)")
E("s_barrier")
stamp()
vT = vWQ
E(f"v_lshlrev_b32 v{vT}, 2, v0")
E(f"v_mov_b32 v{vT+1}, 0")
E(f"ds_read_b128 {vr(vT+4)}, v{vT+1} offset:{ST_OFF}")
E(f"ds_read_b128 {vr(vT+8)}, v{vT+1} offset:{ST_OFF+16}")
E(f"ds_read_b128 {vr(vT+12)}, v{vT+1} offset:{ST_OFF+32}")
E(f"ds_read_b128 {vr(vT+16)}, v{vT+1} offset:{ST_OFF+48}")
E("v_cmp_gt_u32 vcc, 192, v0")
E(f"s_and_saveexec_b64 s[{sE}:{sE+1}], vcc")
E("s_cbranch_execz K1_OSUM_SKIP")
for s in range(16):
    E(f"ds_read_b32 v{vT+20+s}, v{vT} offset:{P_OFF + s*P_STR}")
L("K1_OSUM_SKIP:")
E(f"s_mov_b64 exec, s[{sE}:{sE+1}]")
E("s_waitcnt lgkmcnt(0)")
mm = vT + 2
E(f"v_max3_f32 v{mm}, v{vT+4}, v{vT+5}, v{vT+6}")
E(f"v_max3_f32 v{mm}, v{mm}, v{vT+7}, v{vT+8}")
E(f"v_max3_f32 v{mm}, v{mm}, v{vT+9}, v{vT+10}")
E(f"v_max_f32 v{mm}, v{mm}, v{vT+11}")
for w in range(8):
    E(f"v_sub_f32 v{vT+4+w}, v{vT+4+w}, v{mm}")
for w in range(8):
    E(f"v_mul_f32 v{vT+4+w}, s{sSC}, v{vT+4+w}")
for w in range(8):
    E(f"v_exp_f32 v{vT+4+w}, v{vT+4+w}")
E("s_nop 0")
ll = vT + 3
E(f"v_mul_f32 v{ll}, v{vT+4}, v{vT+12}")
for w in range(1, 8):
    E(f"v_fmac_f32 v{ll}, v{vT+4+w}, v{vT+12+w}")
for w in range(8):
    E(f"v_add_f32 v{vT+20+2*w}, v{vT+20+2*w}, v{vT+21+2*w}")
E(f"v_mul_f32 v{vT+36}, v{vT+4}, v{vT+20}")
for w in range(1, 8):
    E(f"v_fmac_f32 v{vT+36}, v{vT+4+w}, v{vT+20+2*w}")
E(f"v_cvt_pk_bf16_f32 v{vT+36}, v{vT+36}, v{vT+36}")
E(f"v_lshlrev_b32 v{vT+37}, 1, v0")
E("v_cmp_gt_u32 vcc, 192, v0")
E(f"s_and_saveexec_b64 s[{sE}:{sE+1}], vcc")
E(f"ds_write_b16 v{vT+37}, v{vT+36} offset:{OBF_OFF}")
E(f"s_mov_b64 exec, s[{sE}:{sE+1}]")
E(f"s_lshl_b32 s{sROW}, s{sH}, 3")
E(f"s_add_u32 s{sROW}, s{sROW}, s{sC}")
E(f"s_lshl_b32 s{sT}, s{sROW}, 3")
E(f"s_add_u32 s{sT}, s{sT}, {WS_ML}")
E(f"v_mov_b32 v{vT+37}, 0")
E("v_cmp_eq_u32 vcc, 0, v0")
E(f"s_and_saveexec_b64 s[{sE}:{sE+1}], vcc")
E(f"buffer_store_dwordx2 v[{mm}:{mm+1}], v{vT+37}, {sr(sWS)}, s{sT} offen")
E(f"s_mov_b64 exec, s[{sE}:{sE+1}]")
E("s_waitcnt lgkmcnt(0)")
E("s_barrier")
stamp()
vB = vWQ + 40
vA2 = vWQ + 56
assert vA2 + 40 <= vQ
vAD = vWQ + 40 + 12 + 4
E(f"v_lshrrev_b32 v{vT}, 3, v{vJ}")
E(f"v_lshl_add_u32 v{vT}, v{vT}, 2, v{vG}")
E(f"v_lshlrev_b32 v{vT}, 1, v{vT}")
E(f"s_mul_i32 s{sT}, s{sW}, 48")
E(f"v_add_u32 v{vT+1}, s{sT}, v{vT}")
for G in range(3):
    E(f"ds_read_u16 v{vT+2+G}, v{vT+1} offset:{OBF_OFF + 16*G}")
E(f"ds_read_u16 v{vT+5}, v{vT} offset:{HBF_OFF}")
E("s_waitcnt lgkmcnt(0)")
for G in range(4):
    E(f"v_lshl_or_b32 v{vT+2+G}, v{vT+2+G}, 16, v{vT+2+G}")
for G in range(4):
    expand(vT + 2 + G, vB + 4 * G)
vWDA = vWQ + 8
for G in range(3):
    for st in range(2):
        n_done = (G * 2 + st + 1) * 5
        E(f"s_waitcnt vmcnt({33 - n_done - 0 if False else max(0, 32 - n_done)})")
        for c5 in range(5):
            a = vA2 + (st * 5 + c5) * 4
            c = "0" if G == 0 else vr(a)
            E(f"v_mfma_f32_16x16x32_bf16 {vr(a)}, {vr(wo_reg(G,st,c5))}, {vr(vB+4*G)}, {c}")
E("s_waitcnt vmcnt(0)")
E(f"v_mfma_f32_16x16x32_bf16 {vr(vWDA)}, {vr(vWD)}, {vr(vB+12)}, 0")
E(f"v_mfma_f32_16x16x32_bf16 {vr(vWDA+4)}, {vr(vWD+4)}, {vr(vB+12)}, 0")
stamp()
a1 = vT
E(f"v_lshrrev_b32 v{vT+1}, 3, v{vJ}")
E(f"s_lshl_b32 s{sT}, s{sW}, 1")
E(f"v_add_u32 v{vT+2}, s{sT}, v{vT+1}")
E(f"v_mul_u32_u24 v{a1}, {Y_STR}, v{vT+2}")
E(f"v_and_b32 v{vT+2}, 7, v{vJ}")
E(f"v_lshlrev_b32 v{vT+2}, 2, v{vT+2}")
E(f"v_lshl_add_u32 v{vT+2}, v{vG}, 7, v{vT+2}")
E(f"v_add_u32 v{a1}, v{a1}, v{vT+2}")
E(f"v_mul_u32_u24 v{vT+3}, {Y_STR}, v{vT+1}")
E(f"v_add_u32 v{vT+3}, v{vT+3}, v{vT+2}")
E(f"s_lshl_b32 s{sT}, s{sW}, 9")
E(f"v_add_u32 v{vT+3}, s{sT}, v{vT+3}")
E("s_nop 7")
for c5 in range(5):
    for r in range(4):
        a = vA2 + c5 * 4 + r
        E(f"v_cndmask_b32 v{a}, v{a}, v{a+20}, s[{sHF}:{sHF+1}]")
for c5 in range(5):
    for r in range(4):
        E(f"ds_write_b32 v{a1}, v{vA2 + c5*4 + r} offset:{Y_OFF + c5*512 + r*32}")
for r in range(4):
    E(f"v_cndmask_b32 v{vWDA+r}, v{vWDA+r}, v{vWDA+4+r}, s[{sHF}:{sHF+1}]")
E(f"s_cmp_ge_u32 s{sW}, 5")
E("s_cbranch_scc1 K1_NOBD")
for r in range(4):
    E(f"ds_write_b32 v{vT+3}, v{vWDA+r} offset:{BP_OFF + r*32}")
L("K1_NOBD:")
E("s_waitcnt lgkmcnt(0)")
E("s_barrier")
E(f"v_lshlrev_b32 v{vT}, 3, v0")
E("v_cmp_gt_u32 vcc, 320, v0")
E(f"s_and_saveexec_b64 s[{sE}:{sE+1}], vcc")
E("s_cbranch_execz K1_FIN_DONE")
vF = vT + 4
for s in range(16):
    E(f"ds_read_b64 v[{vF+2*s}:{vF+2*s+1}], v{vT} offset:{Y_OFF + s*Y_STR}")
E(f"ds_read_b64 v[{vF+32}:{vF+33}], v{vT} offset:{BP_OFF}")
E(f"ds_read_b64 v[{vF+34}:{vF+35}], v{vT} offset:{BP_OFF + Y_STR}")
E("s_waitcnt lgkmcnt(0)")
for st in (8, 4, 2, 1):
    for s in range(st):
        for q in range(2):
            E(f"v_add_f32 v{vF+2*s+q}, v{vF+2*s+q}, v{vF+2*(s+st)+q}")
E(f"v_add_f32 v{vF+32}, v{vF+32}, v{vF+34}")
E(f"v_add_f32 v{vF+33}, v{vF+33}, v{vF+35}")
E(f"s_mul_i32 s{sT}, s{sROW}, 2560")
E(f"buffer_store_dwordx2 v[{vF}:{vF+1}], v{vT}, {sr(sWS)}, s{sT} offen")
E(f"s_cmp_ge_u32 s{sIDX}, 24")
E("s_cbranch_scc1 K1_FIN_DONE")
E(f"s_mul_i32 s{sT}, s{sMLPI}, 2560")
E(f"s_add_u32 s{sT}, s{sT}, {WS_B}")
E(f"buffer_store_dwordx2 v[{vF+32}:{vF+33}], v{vT}, {sr(sWS)}, s{sT} offen")
L("K1_FIN_DONE:")
if ST:
    E("s_mov_b64 exec, -1")
    stamp()
    E("s_waitcnt vmcnt(0) lgkmcnt(0)")
    E(f"s_cmp_lg_u32 s{sW}, {STW}")
    E("s_cbranch_scc1 K1_END")
    for i, r in enumerate(stamp_regs[:stamp_n[0]]):
        E(f"v_writelane_b32 v10, s{r}, {2*i}")
        E(f"v_writelane_b32 v10, s{r+1}, {2*i+1}")
    E("v_lshlrev_b32 v11, 2, v1")
    E("s_lshl_b32 s39, s2, 7")
    E("s_add_u32 s39, s39, 0x300000")
    E(f"v_cmp_gt_u32 vcc, {2*stamp_n[0]}, v1")
    E("s_and_saveexec_b64 s[86:87], vcc")
    E(f"buffer_store_dword v10, v11, {sr(sWS)}, s39 offen")
L("K1_END:")
E("s_endpgm")

L(f".globl {K2}")
L(".p2align 8")
L(f".type {K2},@function")
L(f"{K2}:")
E("s_cmp_ge_u32 s2, 160")
E("s_cbranch_scc1 K2_END")
E("s_load_dwordx2 s[8:9], s[0:1], 0")
E("s_load_dwordx2 s[10:11], s[0:1], 72")
E("s_load_dwordx2 s[12:13], s[0:1], 80")
E("s_load_dwordx2 s[14:15], s[0:1], 96")
E("v_lshrrev_b32 v1, 6, v0")
E("s_nop 0")
E("v_readfirstlane_b32 s3, v1")
E(f"s_mov_b32 s33, 0x{f32bits(SCALE_LOG2E):08x}")
E("s_waitcnt lgkmcnt(0)")
for dst, p, n in ((16, 8, 1280), (20, 10, 1280), (24, 12, 1280), (28, 14, 0x400000)):
    E(f"s_mov_b32 s{dst}, s{p}")
    E(f"s_and_b32 s{dst+1}, s{p+1}, 0xffff")
    E(f"s_mov_b32 s{dst+2}, {n}")
    E(f"s_mov_b32 s{dst+3}, 0x00020000")
E("v_mul_u32_u24 v2, 2560, v0")
E(f"v_add_u32 v3, {WS_B - 256*2560}, v2")
E("v_cmp_gt_u32 vcc, 256, v0")
E("s_nop 1")
E("v_cndmask_b32 v2, v3, v2, vcc")
E("s_lshl_b32 s4, s2, 4")
E("buffer_load_dwordx4 v[4:7], v2, s[28:31], s4 offen")
E("v_lshrrev_b32 v3, 3, v0")
E("v_lshlrev_b32 v3, 6, v3")
E(f"s_mov_b32 s5, {WS_ML}")
for q in range(4):
    E(f"buffer_load_dwordx4 v[{8+4*q}:{11+4*q}], v3, s[28:31], s5 offen offset:{16*q}")
E("v_lshlrev_b32 v3, 3, v0")
E("buffer_load_dwordx2 v[24:25], v3, s[28:31], s5 offen")
E("v_lshlrev_b32 v3, 2, v0")
E("buffer_load_dword v26, v3, s[16:19], 0 offen")
E("buffer_load_dword v27, v3, s[20:23], 0 offen")
E("s_waitcnt vmcnt(0)")
E("v_lshlrev_b32 v28, 16, v26")
E("v_and_b32 v26, 0xffff0000, v26")
E("v_lshlrev_b32 v29, 16, v27")
E("v_and_b32 v27, 0xffff0000, v27")
E("v_mul_f32 v28, v28, v29")
E("v_fmac_f32 v28, v26, v27")
E("v_max3_f32 v30, v8, v10, v12")
E("v_max3_f32 v30, v30, v14, v16")
E("v_max3_f32 v30, v30, v18, v20")
E("v_max_f32 v30, v30, v22")
for c in range(8):
    E(f"v_sub_f32 v{8+2*c}, v{8+2*c}, v30")
for c in range(8):
    E(f"v_mul_f32 v{8+2*c}, s33, v{8+2*c}")
for c in range(8):
    E(f"v_exp_f32 v{8+2*c}, v{8+2*c}")
E("v_sub_f32 v24, v24, v30")
E("v_mul_f32 v24, s33, v24")
E("v_exp_f32 v24, v24")
E("v_mul_f32 v31, v8, v9")
for c in range(1, 8):
    E(f"v_fmac_f32 v31, v{8+2*c}, v{9+2*c}")
E("v_rcp_f32 v31, v31")
E("s_nop 0")
E("v_mul_f32 v24, v24, v31")
E("v_cmp_gt_u32 vcc, 256, v0")
E("s_nop 1")
E("v_cndmask_b32 v24, 1.0, v24, vcc")
for q in range(4):
    E(f"v_mul_f32 v{4+q}, v{4+q}, v24")
dpp_reduce([4, 5, 6, 7, 28])
E("s_lshl_b32 s6, s3, 5")
E("v_mov_b32 v2, s6")
E("s_mov_b32 exec_lo, 0")
E("s_mov_b32 exec_hi, 0x80000000")
E("ds_write_b128 v2, v[4:7]")
E("ds_write_b32 v2, v28 offset:16")
E("s_mov_b64 exec, -1")
E("s_waitcnt lgkmcnt(0)")
E("s_barrier")
E("s_cmp_lg_u32 s3, 0")
E("s_cbranch_scc1 K2_END")
E("v_lshlrev_b32 v2, 2, v0")
for w in range(7):
    E(f"ds_read_b32 v{8+w}, v2 offset:{32*w}")
E("v_mov_b32 v3, 0")
for w in range(7):
    E(f"ds_read_b32 v{16+w}, v3 offset:{32*w+16}")
E("s_waitcnt lgkmcnt(0)")
E("v_add_f32 v8, v8, v9")
E("v_add_f32 v10, v10, v11")
E("v_add_f32 v8, v8, v10")
E("v_add_f32 v12, v12, v13")
E("v_add_f32 v12, v12, v14")
for w in range(1, 7):
    E(f"v_add_f32 v16, v16, v{16+w}")
E("v_mul_f32 v16, 0xbfb8aa3b, v16")
E("v_exp_f32 v16, v16")
E("s_nop 0")
E("v_add_f32 v16, 1.0, v16")
E("v_rcp_f32 v16, v16")
E("s_nop 0")
E("v_sub_f32 v17, 1.0, v16")
E("v_mul_f32 v8, v8, v16")
E("v_fmac_f32 v8, v12, v17")
E("v_cvt_pk_bf16_f32 v8, v8, v8")
E("v_lshlrev_b32 v2, 1, v0")
E("s_lshl_b32 s4, s2, 3")
E("v_cmp_gt_u32 vcc, 4, v0")
E("s_and_saveexec_b64 s[6:7], vcc")
E("buffer_store_short v8, v2, s[24:27], s4 offen")
L("K2_END:")
E("s_endpgm")

L('.section .rodata,"a"')
for k, nv, ns in ((K1, 256, 102), (K2, 32, 40)):
    L(".p2align 6")
    L(f".amdhsa_kernel {k}")
    L(f"  .amdhsa_next_free_vgpr {nv}")
    L(f"  .amdhsa_next_free_sgpr {ns}")
    L(f"  .amdhsa_accum_offset {nv}")
    L("  .amdhsa_group_segment_fixed_size 0")
    L("  .amdhsa_kernarg_size 104")
    L("  .amdhsa_user_sgpr_count 2")
    L("  .amdhsa_user_sgpr_kernarg_segment_ptr 1")
    L("  .amdhsa_system_sgpr_workgroup_id_x 1")
    L(".end_amdhsa_kernel")

open(sys.argv[1], 'w').write('\n'.join(out) + '\n')
```

```python
import sys, struct

NAME = "gated_mix__sliding_block_cached__glu_gated_reglu__decode"
out = []
def E(s): out.append("    " + s)
def L(s): out.append(s)
def C(s): out.append("    ; " + s)

HEADER = open('cdna_kernels/' + NAME + '.s.ref').read().split('\n')
hdr = []
for ln in HEADER:
    if ln.startswith('; @launch') or ln.startswith('.amdgcn_target'):
        break
    hdr.append(ln)

opts = (sys.argv[2] if len(sys.argv) > 2 else "").split(',')
def opt(name, default=None):
    for o in opts:
        if o == name: return True
        if o.startswith(name + '='): return o.split('=')[1]
    return default
NT = " nt" if opt('nt') else ""
WNT = " nt" if opt('wnt') else ""
ST = opt('st')
STW = int(opt('stw', 0))

P_OFF   = 0
P_STR   = 800
Y_OFF   = 12800
Y_STR   = 2592
BP_OFF  = Y_OFF + 16 * Y_STR
QBF_OFF = BP_OFF + 2 * Y_STR
OBF_OFF = QBF_OFF + 384
ST_OFF  = OBF_OFF + 384
MP_OFF  = ST_OFF + 64
HBF_OFF = MP_OFF + 512
FR_OFF  = HBF_OFF + 64
LDS_SZ  = FR_OFF + 256
assert LDS_SZ <= 65536

WS_Y  = 0
WS_ML = 0xA0000
WS_B  = 0x100000

SCALE_LOG2E = (192.0 ** -0.5) * 1.4426950408889634
def f32bits(x): return struct.unpack('<I', struct.pack('<f', x))[0]

K1 = NAME + "_kernel"

L('\n'.join(hdr))
L(f"; @launch grid=(256,1,1) block=(512,1,1) lds=65536")
L('.amdgcn_target "amdgcn-amd-amdhsa--gfx950"')
L(".text")
L(f".globl {K1}")
L(".p2align 8")
L(f".type {K1},@function")
L(f"{K1}:")

vL, vG, vJ = 1, 2, 3
vM = [4, 5, 6, 7]
vXF = 8
vXA, vXB = 13, 14
vT15 = 15
vML = 16
vTMP = 32
vKB = 40
vWQ = 136

sW, sXCD, sIDX, sH, sC, sT = 34, 35, 36, 37, 38, 39
sK, sV, sWQ, sWO, sWG, sWU, sWD, sX, sWS = 40, 44, 48, 52, 56, 60, 64, 68, 72
sSELLO, sSELHI = 76, 77
sHF = 78
sV2 = 80
sOFF = 82
sSC = 83
s160W = 84
sROW = 85
sE = 86
sR0 = 88
sMLPI = 92
stamp_regs = [94] + [10, 12, 14, 16, 18, 20, 22, 24, 96, 98, 100, 32]
stamp_n = [0]
def stamp():
    if not ST: return
    r = stamp_regs[stamp_n[0]]; stamp_n[0] += 1
    E(f"s_memrealtime s[{r}:{r+1}]")
def vr(a, n=4): return f"v[{a}:{a+n-1}]"
def sr(a, n=4): return f"s[{a}:{a+n-1}]"

vmq = []
def VM(s, tag):
    E(s); vmq.append(tag)
def WAIT(tag):
    idx = max(i for i, t in enumerate(vmq) if t == tag)
    n = len(vmq) - 1 - idx
    assert n <= 63
    E(f"s_waitcnt vmcnt({n})")

def srd(dst, plo, off_s, nrec):
    E(f"s_add_u32 s{dst}, s{plo}, s{off_s}")
    E(f"s_addc_u32 s{dst+1}, s{plo+1}, 0")
    E(f"s_and_b32 s{dst+1}, s{dst+1}, 0xffff")
    E(f"s_mov_b32 s{dst+2}, {nrec}")
    E(f"s_mov_b32 s{dst+3}, 0x00020000")

def dpp_reduce(regs):
    for ctl in ["row_shr:1", "row_shr:2", "row_shr:4", "row_shr:8"]:
        for r in regs:
            E(f"v_add_f32_dpp v{r}, v{r}, v{r} {ctl} row_mask:0xf bank_mask:0xf bound_ctrl:0")
        if len(regs) < 3: E("s_nop 1")
    for r in regs:
        E(f"v_add_f32_dpp v{r}, v{r}, v{r} row_bcast:15 row_mask:0xa bank_mask:0xf")
    if len(regs) < 3: E("s_nop 1")
    for r in regs:
        E(f"v_add_f32_dpp v{r}, v{r}, v{r} row_bcast:31 row_mask:0xc bank_mask:0xf")

def expand(dup, dst):
    for w in range(4):
        E(f"v_and_b32 v{dst+w}, v{dup}, v{vM[w]}")

E("s_cmp_ge_u32 s2, 256")
E("s_cbranch_scc1 K1_END")
stamp()
E("s_load_dwordx16 s[8:23], s[0:1], 0")
E("s_load_dwordx8 s[24:31], s[0:1], 64")
E("s_load_dwordx2 s[32:33], s[0:1], 96")
E(f"v_and_b32 v{vL}, 63, v0")
E(f"v_bfe_u32 v{vG}, v0, 4, 2")
E(f"v_and_b32 v{vJ}, 15, v0")
E(f"v_lshrrev_b32 v{vT15}, 6, v0")
E("s_nop 0")
E(f"v_readfirstlane_b32 s{sW}, v{vT15}")
E(f"s_and_b32 s{sXCD}, s2, 7")
E(f"s_lshr_b32 s{sIDX}, s2, 3")
E(f"s_and_b32 s{sH}, s{sIDX}, 3")
E(f"s_lshl_b32 s{sT}, s{sXCD}, 2")
E(f"s_add_u32 s{sH}, s{sH}, s{sT}")
E(f"s_lshr_b32 s{sC}, s{sIDX}, 2")
E(f"s_mov_b32 s{sSELLO}, 0x01000100")
E(f"s_mov_b32 s{sSELHI}, 0x03020302")
E(f"s_mov_b32 s{sHF}, 0xFF00FF00")
E(f"s_mov_b32 s{sHF+1}, 0xFF00FF00")
E(f"s_mov_b32 s{sV2}, 0x00FF00FF")
E(f"s_mov_b32 s{sV2+1}, 0xFF00FF00")
E(f"s_mov_b32 s{sSC}, 0x{f32bits(SCALE_LOG2E):08x}")
E(f"v_and_b32 v{vTMP}, 1, v{vJ}")
E(f"v_lshlrev_b32 v{vTMP}, 4, v{vTMP}")
E(f"v_mov_b32 v{vTMP+1}, 0xffff")
E(f"v_lshlrev_b32 v{vTMP+1}, v{vTMP}, v{vTMP+1}")
E(f"v_bfe_u32 v{vTMP+2}, v{vJ}, 1, 2")
for w in range(4):
    E(f"v_cmp_eq_u32 vcc, {w}, v{vTMP+2}")
    E("s_nop 1")
    E(f"v_cndmask_b32 v{vM[w]}, 0, v{vTMP+1}, vcc")
E(f"v_lshrrev_b32 v{vTMP}, 3, v{vJ}")
E(f"v_lshl_add_u32 v{vTMP+1}, v{vTMP}, 2, v{vG}")
E(f"v_mul_u32_u24 v{vTMP+2}, 20, v{vTMP+1}")
E(f"v_and_b32 v{vTMP+3}, 7, v{vJ}")
E(f"v_mul_u32_u24 v{vTMP+4}, 122880, v{vG}")
E(f"v_lshl_add_u32 v{vTMP+4}, v{vJ}, 4, v{vTMP+4}")
E(f"v_add_u32 v{vTMP+5}, 491520, v{vTMP+4}")
E(f"v_mul_u32_u24 v{vTMP+6}, 122880, v{vTMP+1}")
E(f"v_lshl_add_u32 v{vTMP+6}, v{vTMP+3}, 4, v{vTMP+6}")
E(f"v_add_u32 v{vTMP+6}, 256, v{vTMP+6}")
E(f"v_and_b32 v{vTMP+7}, 3, v{vJ}")
E(f"v_lshlrev_b32 v{vTMP+7}, 3, v{vTMP+7}")
E(f"v_bfe_u32 v{vT15}, v{vJ}, 2, 1")
E(f"v_add_u32 v{vTMP+7}, v{vTMP+7}, v{vT15}")
E(f"v_mul_u32_u24 v{vTMP+7}, 384, v{vTMP+7}")
E(f"v_lshl_add_u32 v{vTMP+7}, v{vG}, 4, v{vTMP+7}")
E(f"v_lshlrev_b32 v{vT15}, 6, v{vTMP}")
E(f"v_sub_u32 v{vKB+95}, v{vTMP+7}, v{vT15}")
E(f"v_add_u32 v{vKB+95}, 64, v{vKB+95}")
E(f"v_add_u32 v{vTMP+7}, v{vTMP+7}, v{vT15}")
E(f"v_mul_u32_u24 v{vT15}, 3072, v{vL}")
E(f"v_add_u32 v{vTMP+3}, 196608, v{vT15}")
E(f"v_lshlrev_b32 v{vTMP}, 1, v{vL}")
E(f"s_mul_i32 s{s160W}, s{sW}, 160")
E("s_waitcnt lgkmcnt(0)")
E(f"s_mul_i32 s{sT}, s{sH}, 12582912")
E(f"s_mul_i32 s{sOFF}, s{sC}, 196608")
E(f"s_add_u32 s{sT}, s{sT}, s{sOFF}")
E(f"s_mul_i32 s{sOFF}, s{sW}, 24576")
E(f"s_add_u32 s{sT}, s{sT}, s{sOFF}")
E(f"s_add_u32 s{sT}, s{sT}, 11010048")
srd(sK, 10, sT, 24576)
srd(sV, 12, sT, 24576)
E(f"s_mul_i32 s{sT}, s{sH}, 384")
E(f"s_mul_i32 s{sOFF}, s{sW}, 983040")
E(f"s_add_u32 s{sT}, s{sT}, s{sOFF}")
srd(sWQ, 14, sT, 79 * 12288 + 384)
E(f"s_mov_b32 s{sT}, 0")
srd(sX, 8, sT, 1280)
GOFF = [0, 2, 6, 4]
def kload(n):
    Q, gi, s = n // 12, (n // 3) % 4, n % 3
    b = vKB + n * 4
    va = vTMP + 7 if gi in (0, 2) else vKB + 95
    so = f"s{sR0}" if Q else "0"
    VM(f"buffer_load_dwordx4 {vr(b)}, v{va}, {sr(sK)}, {so} offen offset:{GOFF[gi]*384+s*128}{NT}", f"K{Q}{gi}")
E(f"s_mov_b32 s{sR0}, 12288")
kload(0); kload(1)
VM(f"buffer_load_dwordx4 {vr(vXF)}, v{vTMP+2}, {sr(sX)}, s{s160W} offen", "X")
VM(f"buffer_load_dword v{vXF+4}, v{vTMP+2}, {sr(sX)}, s{s160W} offen offset:16", "X")
VM(f"buffer_load_ushort v{vXA}, v{vTMP}, {sr(sX)}, s{s160W} offen", "X")
VM(f"buffer_load_ushort v{vXB}, v{vTMP}, {sr(sX)}, s{s160W} offen offset:128", "X")
E(f"s_mul_i32 s{sT}, s{sH}, 245760")
E(f"s_mul_i32 s{sOFF}, s{sW}, 30720")
E(f"s_add_u32 s{sT}, s{sT}, s{sOFF}")
srd(sWO, 16, sT, 30720)
E(f"s_min_u32 s{sOFF}, s{sIDX}, 23")
E(f"s_mul_i32 s{sMLPI}, s{sXCD}, 24")
E(f"s_add_u32 s{sMLPI}, s{sMLPI}, s{sOFF}")
E(f"s_lshl_b32 s{sT}, s{sMLPI}, 4")
E(f"s_mul_i32 s{sOFF}, s{sW}, 245760")
E(f"s_add_u32 s{sT}, s{sT}, s{sOFF}")
srd(sWG, 20, sT, 79 * 3072 + 16)
srd(sWU, 22, sT, 79 * 3072 + 16)
E(f"s_mul_i32 s{sT}, s{sMLPI}, 10240")
srd(sWD, 24, sT, 10240)
E(f"s_cmp_lt_u32 s{sIDX}, 24")
E(f"s_cselect_b32 s{sWG+2}, s{sWG+2}, 0")
E(f"s_cselect_b32 s{sWU+2}, s{sWU+2}, 0")
E(f"s_cselect_b32 s{sWD+2}, s{sWD+2}, 0")
E(f"s_cmp_lt_u32 s{sW}, 5")
E(f"s_cselect_b32 s{sWD+2}, s{sWD+2}, 0")
E(f"s_mov_b32 s{sT}, 0")
srd(sWS, 32, sT, 0x400000)
VM(f"buffer_load_dwordx4 {vr(vML)}, v{vT15}, {sr(sWG)}, 0 offen", "M")
VM(f"buffer_load_dwordx4 {vr(vML+4)}, v{vTMP+3}, {sr(sWG)}, 0 offen", "M")
VM(f"buffer_load_dwordx4 {vr(vML+8)}, v{vT15}, {sr(sWU)}, 0 offen", "M")
VM(f"buffer_load_dwordx4 {vr(vML+12)}, v{vTMP+3}, {sr(sWU)}, 0 offen", "M")
kn = 2
for t in range(10):
    E(f"s_mov_b32 s{sOFF}, {t*12288}")
    b = vWQ + 12 * t
    VM(f"buffer_load_dwordx4 {vr(b)}, v{vTMP+4}, {sr(sWQ)}, s{sOFF} offen{WNT}", f"Q{t}")
    VM(f"buffer_load_dwordx4 {vr(b+4)}, v{vTMP+5}, {sr(sWQ)}, s{sOFF} offen{WNT}", f"Q{t}")
    VM(f"buffer_load_dwordx4 {vr(b+8)}, v{vTMP+6}, {sr(sWQ)}, s{sOFF} offen{WNT}", f"Q{t}")
    kload(kn); kn += 1
while kn < 24:
    kload(kn); kn += 1
stamp()
WAIT("M")
E(f"v_lshlrev_b32 v{vXA}, 16, v{vXA}")
E(f"v_lshlrev_b32 v{vXB}, 16, v{vXB}")
for m in range(2):
    A = vML + 8 * m; B = A + 4
    for k in range(4):
        t0, t1, t2, t3 = vTMP, vTMP+1, vTMP+2, vTMP+3
        E(f"v_lshlrev_b32 v{t0}, 16, v{A+k}")
        E(f"v_and_b32 v{t1}, 0xffff0000, v{A+k}")
        E(f"v_lshlrev_b32 v{t2}, 16, v{B+k}")
        E(f"v_and_b32 v{t3}, 0xffff0000, v{B+k}")
        E(f"v_mul_f32 v{A+k}, v{vXA}, v{t0}")
        E(f"v_mul_f32 v{B+k}, v{vXA}, v{t1}")
        E(f"v_fmac_f32 v{A+k}, v{vXB}, v{t2}")
        E(f"v_fmac_f32 v{B+k}, v{vXB}, v{t3}")
dpp_reduce(list(range(vML, vML + 16)))
E(f"s_lshl_b32 s{sT}, s{sW}, 6")
E(f"v_mov_b32 v{vTMP}, s{sT}")
E("s_mov_b32 exec_lo, 0")
E("s_mov_b32 exec_hi, 0x80000000")
for q in range(4):
    E(f"ds_write_b128 v{vTMP}, {vr(vML+4*q)} offset:{MP_OFF + 16*q}")
E("s_mov_b64 exec, -1")
E("s_waitcnt lgkmcnt(0)")

vAC = vML
for t in range(10):
    bx = vTMP + 4 * (t & 1)
    E(f"v_perm_b32 v{vT15}, v{vXF + (t>>1)}, v{vXF + (t>>1)}, s{sSELHI if (t&1) else sSELLO}")
    expand(vT15, bx)
    WAIT(f"Q{t}")
    E("s_nop 0")
    b = vWQ + 12 * t
    c = (lambda a: "0") if t == 0 else (lambda a: vr(a))
    E(f"v_mfma_f32_16x16x32_bf16 {vr(vAC)}, {vr(b)}, {vr(bx)}, {c(vAC)}")
    E(f"v_mfma_f32_16x16x32_bf16 {vr(vAC+4)}, {vr(b+4)}, {vr(bx)}, {c(vAC+4)}")
    E(f"v_mfma_f32_16x16x32_bf16 {vr(vAC+8)}, {vr(b+8)}, {vr(bx)}, {c(vAC+8)}")
stamp()
vVA, vVB = vXA, vXB
E(f"v_mul_u32_u24 v{vVA}, 384, v{vG}")
E(f"v_lshl_add_u32 v{vVA}, v{vJ}, 4, v{vVA}")
E(f"v_lshrrev_b32 v{vTMP+2}, 3, v{vJ}")
E(f"v_lshl_add_u32 v{vTMP+2}, v{vTMP+2}, 2, v{vG}")
E(f"v_mul_u32_u24 v{vVB}, 384, v{vTMP+2}")
E(f"v_and_b32 v{vTMP+2}, 7, v{vJ}")
E(f"v_lshl_add_u32 v{vVB}, v{vTMP+2}, 4, v{vVB}")
E(f"v_add_u32 v{vVB}, 256, v{vVB}")
def vload(n):
    k, q = n // 3, n % 3
    b = vWQ + 12 * k + 4 * q
    E(f"s_mov_b32 s{sOFF}, {k*3072}")
    if q < 2:
        VM(f"buffer_load_dwordx4 {vr(b)}, v{vVA}, {sr(sV)}, s{sOFF} offen offset:{q*1536}{NT}", f"V{k}")
    else:
        VM(f"buffer_load_dwordx4 {vr(b)}, v{vVB}, {sr(sV)}, s{sOFF} offen{NT}", f"V{k}")
NV1 = int(opt('nv1', 12))
for n in range(NV1): vload(n)

def dump3(ac, tb):
    a1, a2, t = tb, tb + 1, tb + 2
    E(f"v_lshrrev_b32 v{t}, 3, v{vJ}")
    E(f"s_lshl_b32 s{sT}, s{sW}, 1")
    E(f"v_add_u32 v{t}, s{sT}, v{t}")
    E(f"v_mul_u32_u24 v{a1}, {P_STR}, v{t}")
    E(f"v_and_b32 v{t}, 7, v{vJ}")
    E(f"v_lshl_add_u32 v{a1}, v{t}, 2, v{a1}")
    E(f"v_and_b32 v{t}, 1, v{vG}")
    E(f"v_lshl_add_u32 v{a2}, v{t}, 7, v{a1}")
    E(f"v_lshl_add_u32 v{a1}, v{vG}, 7, v{a1}")
    E("s_nop 7")
    for r in range(4):
        E(f"v_cndmask_b32 v{ac+r}, v{ac+r}, v{ac+4+r}, s[{sHF}:{sHF+1}]")
    for r in range(4):
        E(f"ds_write_b32 v{a1}, v{ac+r} offset:{P_OFF + r*32}")
    E(f"s_mov_b64 exec, s[{sV2}:{sV2+1}]")
    for r in range(4):
        E(f"ds_write_b32 v{a2}, v{ac+8+r} offset:{P_OFF + 512 + r*32}")
    E("s_mov_b64 exec, -1")
dump3(vAC, vTMP + 2)
E("s_waitcnt lgkmcnt(0)")
E("s_barrier")
stamp()
E(f"v_lshlrev_b32 v{vTMP}, 2, v0")
E("v_cmp_gt_u32 vcc, 192, v0")
E(f"s_and_saveexec_b64 s[{sE}:{sE+1}], vcc")
E("s_cbranch_execz K1_QSUM_DONE")
for s in range(16):
    E(f"ds_read_b32 v{vML+s}, v{vTMP} offset:{P_OFF + s*P_STR}")
E("s_waitcnt lgkmcnt(0)")
for st in (8, 4, 2, 1):
    for s in range(st):
        E(f"v_add_f32 v{vML+s}, v{vML+s}, v{vML+s+st}")
E(f"v_cvt_pk_bf16_f32 v{vML}, v{vML}, v{vML}")
E(f"v_lshlrev_b32 v{vTMP}, 1, v0")
E(f"ds_write_b16 v{vTMP}, v{vML} offset:{QBF_OFF}")
L("K1_QSUM_DONE:")
E(f"s_mov_b64 exec, s[{sE}:{sE+1}]")
E(f"v_subrev_u32 v{vTMP}, 192, v0")
E(f"v_cmp_gt_u32 vcc, 8, v{vTMP}")
E(f"s_and_saveexec_b64 s[{sE}:{sE+1}], vcc")
E("s_cbranch_execz K1_H_DONE")
E(f"v_and_b32 v{vTMP+1}, 1, v{vTMP}")
E(f"v_lshrrev_b32 v{vTMP+2}, 1, v{vTMP}")
E(f"v_lshl_add_u32 v{vTMP+1}, v{vTMP+1}, 2, v{vTMP+2}")
E(f"v_lshlrev_b32 v{vTMP+1}, 2, v{vTMP+1}")
for w in range(8):
    E(f"ds_read_b32 v{vML+w}, v{vTMP+1} offset:{MP_OFF + w*64}")
    E(f"ds_read_b32 v{vML+8+w}, v{vTMP+1} offset:{MP_OFF + w*64 + 32}")
E("s_waitcnt lgkmcnt(0)")
for st in (4, 2, 1):
    for s in range(st):
        E(f"v_add_f32 v{vML+s}, v{vML+s}, v{vML+s+st}")
        E(f"v_add_f32 v{vML+8+s}, v{vML+8+s}, v{vML+8+s+st}")
E(f"v_cvt_pk_bf16_f32 v{vML}, v{vML}, v{vML+8}")
E(f"v_lshlrev_b32 v{vML+1}, 16, v{vML}")
E(f"v_and_b32 v{vML+2}, 0xffff0000, v{vML}")
E(f"v_max_f32 v{vML+1}, 0, v{vML+1}")
E(f"v_mul_f32 v{vML+1}, v{vML+1}, v{vML+2}")
E(f"v_cvt_pk_bf16_f32 v{vML+1}, v{vML+1}, v{vML+1}")
E(f"v_lshlrev_b32 v{vTMP}, 1, v{vTMP}")
E(f"ds_write_b16 v{vTMP}, v{vML+1} offset:{HBF_OFF}")
L("K1_H_DONE:")
E(f"s_mov_b64 exec, s[{sE}:{sE+1}]")
E("s_waitcnt lgkmcnt(0)")
E("s_barrier")
stamp()
vQ = vWQ + 96
E(f"v_lshrrev_b32 v{vTMP+1}, 3, v{vJ}")
E(f"v_lshlrev_b32 v{vTMP+1}, 6, v{vTMP+1}")
E(f"v_lshl_add_u32 v{vTMP}, v{vG}, 4, v{vTMP+1}")
for s in range(3):
    E(f"ds_read_b128 {vr(vQ+4*s)}, v{vTMP} offset:{QBF_OFF + 128*s}")
E(f"v_xor_b32 v{vTMP+2}, 40, v{vL}")
E(f"v_lshlrev_b32 v{vTMP+2}, 2, v{vTMP+2}")
E("s_waitcnt lgkmcnt(0)")
vS = vML
vD = vML
vF = vQ + 12
for Q in range(2):
    for gi in range(4):
        WAIT(f"K{Q}{gi}")
        for s in range(3):
            b = vKB + ((Q * 4 + gi) * 3 + s) * 4
            c = "0" if s == 0 else vr(vD + 4*gi)
            E(f"v_mfma_f32_16x16x32_bf16 {vr(vD+4*gi)}, {vr(b)}, {vr(vQ+4*s)}, {c}")
    E("s_nop 7")
    for r in range(4):
        a, b_, c_, d = vD + r, vD + 4 + r, vD + 8 + r, vD + 12 + r
        u1, u2 = vTMP + 4, vTMP + 5
        E(f"v_cndmask_b32 v{u1}, v{b_}, v{a}, s[{sV2}:{sV2+1}]")
        E(f"v_cndmask_b32 v{u2}, v{d}, v{c_}, s[{sV2}:{sV2+1}]")
        E(f"v_cndmask_b32 v{vF+4*Q+r}, v{u1}, v{u2}, s[{sHF}:{sHF+1}]")
        E(f"v_cndmask_b32 v{a}, v{u2}, v{u1}, s[{sHF}:{sHF+1}]")
    for r in range(4):
        E(f"ds_bpermute_b32 v{vD+4+r}, v{vTMP+2}, v{vD+r}")
    E("s_waitcnt lgkmcnt(0)")
    for r in range(4):
        E(f"v_add_f32 v{vF+4*Q+r}, v{vF+4*Q+r}, v{vD+4+r}")
for r in range(8):
    E(f"v_mov_b32 v{vS+r}, v{vF+r}")
stamp()
vWOo = vTMP
E(f"v_mul_u32_u24 v{vWOo}, 1280, v{vG}")
E(f"v_lshl_add_u32 v{vWOo}, v{vJ}, 4, v{vWOo}")
def wo_reg(G, st, c5):
    n = (G * 2 + st) * 5 + c5
    return vKB + 4*n if n < 24 else vQ + 4*(n - 24)
vWD = vXF
vWD2 = vTMP + 4
vn = NV1
nrem = 24 - NV1
for G in range(3):
    for st in range(2):
        E(f"s_mov_b32 s{sR0}, {G*10240 + st*5120}")
        for c5 in range(5):
            VM(f"buffer_load_dwordx4 {vr(wo_reg(G,st,c5))}, v{vWOo}, {sr(sWO)}, s{sR0} offen offset:{c5*256}{WNT}", f"O{G}{st}")
        step = G * 2 + st
        tgt = NV1 + (nrem * (step + 1)) // 6
        while vn < tgt:
            vload(vn); vn += 1
stamp()
t = vTMP + 1
E(f"v_max3_f32 v{t}, v{vS}, v{vS+1}, v{vS+2}")
E(f"v_max3_f32 v{t}, v{t}, v{vS+3}, v{vS+4}")
E(f"v_max3_f32 v{t}, v{t}, v{vS+5}, v{vS+6}")
E(f"v_max_f32 v{t}, v{t}, v{vS+7}")
E("s_nop 1")
E(f"v_max_f32_dpp v{t}, v{t}, v{t} row_ror:8 row_mask:0xf bank_mask:0xf")
E("s_nop 1")
for q in range(4):
    E(f"v_readlane_b32 s{sR0+q}, v{t}, {16*q}")
E("s_nop 1")
E(f"v_mov_b32 v{t}, s{sR0}")
E(f"v_max_f32 v{t}, s{sR0+1}, v{t}")
E(f"v_max_f32 v{t}, s{sR0+2}, v{t}")
E(f"v_max_f32 v{t}, s{sR0+3}, v{t}")
E(f"s_lshl_b32 s{sT}, s{sW}, 2")
E(f"v_mov_b32 v{t+1}, s{sT}")
E(f"ds_write_b32 v{t+1}, v{t} offset:{ST_OFF}")
E(f"v_mul_f32 v{t}, s{sSC}, v{t}")
for r in range(8):
    E(f"v_fma_f32 v{vS+r}, v{vS+r}, s{sSC}, -v{t}")
for r in range(8):
    E(f"v_exp_f32 v{vS+r}, v{vS+r}")
E("s_nop 0")
t2 = vTMP + 3
E(f"v_add_f32 v{t2}, v{vS}, v{vS+1}")
for r in range(2, 8):
    E(f"v_add_f32 v{t2}, v{t2}, v{vS+r}")
E("s_nop 1")
E(f"v_add_f32_dpp v{t2}, v{t2}, v{t2} row_ror:8 row_mask:0xf bank_mask:0xf")
E("s_nop 1")
for q in range(4):
    E(f"v_readlane_b32 s{sR0+q}, v{t2}, {16*q}")
E("s_nop 1")
E(f"v_mov_b32 v{t2}, s{sR0}")
E(f"v_add_f32 v{t2}, s{sR0+1}, v{t2}")
E(f"v_add_f32 v{t2}, s{sR0+2}, v{t2}")
E(f"v_add_f32 v{t2}, s{sR0+3}, v{t2}")
E(f"ds_write_b32 v{t+1}, v{t2} offset:{ST_OFF+32}")
for r in range(8):
    E(f"v_cvt_pk_bf16_f32 v{vS+r}, v{vS+r}, v{vS+r}")
E("s_waitcnt lgkmcnt(0)")
E(f"s_lshl_b32 s{sOFF}, s{sW}, 8")
VM(f"buffer_load_dwordx4 {vr(vWD)}, v{vWOo}, {sr(sWD)}, s{sOFF} offen", "D")
E(f"s_add_u32 s{sOFF}, s{sOFF}, 5120")
VM(f"buffer_load_dwordx4 {vr(vWD+4)}, v{vWOo}, {sr(sWD)}, s{sOFF} offen", "D")
vPA = vS + 8
vBP = vS + 20
for k in range(8):
    expand(vS + k, vBP)
    WAIT(f"V{k}")
    E("s_nop 0")
    b = vWQ + 12 * k
    c = (lambda a: "0") if k == 0 else (lambda a: vr(a))
    E(f"v_mfma_f32_16x16x32_bf16 {vr(vPA)}, {vr(b)}, {vr(vBP)}, {c(vPA)}")
    E(f"v_mfma_f32_16x16x32_bf16 {vr(vPA+4)}, {vr(b+4)}, {vr(vBP)}, {c(vPA+4)}")
    E(f"v_mfma_f32_16x16x32_bf16 {vr(vPA+8)}, {vr(b+8)}, {vr(vBP)}, {c(vPA+8)}")
stamp()
dump3(vPA, vS)
E("s_waitcnt lgkmcnt(0)")
E("s_barrier")
stamp()
vT = vWQ
E(f"v_lshlrev_b32 v{vT}, 2, v0")
E(f"v_mov_b32 v{vT+1}, 0")
E(f"ds_read_b128 {vr(vT+4)}, v{vT+1} offset:{ST_OFF}")
E(f"ds_read_b128 {vr(vT+8)}, v{vT+1} offset:{ST_OFF+16}")
E(f"ds_read_b128 {vr(vT+12)}, v{vT+1} offset:{ST_OFF+32}")
E(f"ds_read_b128 {vr(vT+16)}, v{vT+1} offset:{ST_OFF+48}")
E("v_cmp_gt_u32 vcc, 192, v0")
E(f"s_and_saveexec_b64 s[{sE}:{sE+1}], vcc")
E("s_cbranch_execz K1_OSUM_SKIP")
for s in range(16):
    E(f"ds_read_b32 v{vT+20+s}, v{vT} offset:{P_OFF + s*P_STR}")
L("K1_OSUM_SKIP:")
E(f"s_mov_b64 exec, s[{sE}:{sE+1}]")
E("s_waitcnt lgkmcnt(0)")
mm = vT + 2
E(f"v_max3_f32 v{mm}, v{vT+4}, v{vT+5}, v{vT+6}")
E(f"v_max3_f32 v{mm}, v{mm}, v{vT+7}, v{vT+8}")
E(f"v_max3_f32 v{mm}, v{mm}, v{vT+9}, v{vT+10}")
E(f"v_max_f32 v{mm}, v{mm}, v{vT+11}")
for w in range(8):
    E(f"v_sub_f32 v{vT+4+w}, v{vT+4+w}, v{mm}")
for w in range(8):
    E(f"v_mul_f32 v{vT+4+w}, s{sSC}, v{vT+4+w}")
for w in range(8):
    E(f"v_exp_f32 v{vT+4+w}, v{vT+4+w}")
E("s_nop 0")
ll = vT + 3
E(f"v_mul_f32 v{ll}, v{vT+4}, v{vT+12}")
for w in range(1, 8):
    E(f"v_fmac_f32 v{ll}, v{vT+4+w}, v{vT+12+w}")
for w in range(8):
    E(f"v_add_f32 v{vT+20+2*w}, v{vT+20+2*w}, v{vT+21+2*w}")
E(f"v_mul_f32 v{vT+36}, v{vT+4}, v{vT+20}")
for w in range(1, 8):
    E(f"v_fmac_f32 v{vT+36}, v{vT+4+w}, v{vT+20+2*w}")
E(f"v_cvt_pk_bf16_f32 v{vT+36}, v{vT+36}, v{vT+36}")
E(f"v_lshlrev_b32 v{vT+37}, 1, v0")
E("v_cmp_gt_u32 vcc, 192, v0")
E(f"s_and_saveexec_b64 s[{sE}:{sE+1}], vcc")
E(f"ds_write_b16 v{vT+37}, v{vT+36} offset:{OBF_OFF}")
E(f"s_mov_b64 exec, s[{sE}:{sE+1}]")
E(f"s_lshl_b32 s{sROW}, s{sH}, 3")
E(f"s_add_u32 s{sROW}, s{sROW}, s{sC}")
E(f"s_lshl_b32 s{sT}, s{sROW}, 3")
E(f"s_add_u32 s{sT}, s{sT}, {WS_ML}")
E(f"v_mov_b32 v{vT+37}, 0")
E("v_cmp_eq_u32 vcc, 0, v0")
E(f"s_and_saveexec_b64 s[{sE}:{sE+1}], vcc")
E(f"buffer_store_dwordx2 v[{mm}:{mm+1}], v{vT+37}, {sr(sWS)}, s{sT} offen sc1")
E(f"s_mov_b64 exec, s[{sE}:{sE+1}]")
E("s_waitcnt lgkmcnt(0)")
E("s_barrier")
stamp()
vB = vWQ + 40
vA2 = vWQ + 56
assert vA2 + 40 <= vQ
E(f"v_lshrrev_b32 v{vT}, 3, v{vJ}")
E(f"v_lshl_add_u32 v{vT}, v{vT}, 2, v{vG}")
E(f"v_lshlrev_b32 v{vT}, 1, v{vT}")
E(f"s_mul_i32 s{sT}, s{sW}, 48")
E(f"v_add_u32 v{vT+1}, s{sT}, v{vT}")
for G in range(3):
    E(f"ds_read_u16 v{vT+2+G}, v{vT+1} offset:{OBF_OFF + 16*G}")
E(f"ds_read_u16 v{vT+5}, v{vT} offset:{HBF_OFF}")
E("s_waitcnt lgkmcnt(0)")
for G in range(4):
    E(f"v_lshl_or_b32 v{vT+2+G}, v{vT+2+G}, 16, v{vT+2+G}")
for G in range(4):
    expand(vT + 2 + G, vB + 4 * G)
vWDA = vWQ + 8
for G in range(3):
    for st in range(2):
        WAIT(f"O{G}{st}")
        for c5 in range(5):
            a = vA2 + (st * 5 + c5) * 4
            c = "0" if G == 0 else vr(a)
            E(f"v_mfma_f32_16x16x32_bf16 {vr(a)}, {vr(wo_reg(G,st,c5))}, {vr(vB+4*G)}, {c}")
E("s_waitcnt vmcnt(0)")
E(f"v_mfma_f32_16x16x32_bf16 {vr(vWDA)}, {vr(vWD)}, {vr(vB+12)}, 0")
E(f"v_mfma_f32_16x16x32_bf16 {vr(vWDA+4)}, {vr(vWD+4)}, {vr(vB+12)}, 0")
stamp()
a1 = vT
E(f"v_lshrrev_b32 v{vT+1}, 3, v{vJ}")
E(f"s_lshl_b32 s{sT}, s{sW}, 1")
E(f"v_add_u32 v{vT+2}, s{sT}, v{vT+1}")
E(f"v_mul_u32_u24 v{a1}, {Y_STR}, v{vT+2}")
E(f"v_and_b32 v{vT+2}, 7, v{vJ}")
E(f"v_lshlrev_b32 v{vT+2}, 2, v{vT+2}")
E(f"v_lshl_add_u32 v{vT+2}, v{vG}, 7, v{vT+2}")
E(f"v_add_u32 v{a1}, v{a1}, v{vT+2}")
E(f"v_mul_u32_u24 v{vT+3}, {Y_STR}, v{vT+1}")
E(f"v_add_u32 v{vT+3}, v{vT+3}, v{vT+2}")
E(f"s_lshl_b32 s{sT}, s{sW}, 9")
E(f"v_add_u32 v{vT+3}, s{sT}, v{vT+3}")
E("s_nop 7")
for c5 in range(5):
    for r in range(4):
        a = vA2 + c5 * 4 + r
        E(f"v_cndmask_b32 v{a}, v{a}, v{a+20}, s[{sHF}:{sHF+1}]")
for c5 in range(5):
    for r in range(4):
        E(f"ds_write_b32 v{a1}, v{vA2 + c5*4 + r} offset:{Y_OFF + c5*512 + r*32}")
for r in range(4):
    E(f"v_cndmask_b32 v{vWDA+r}, v{vWDA+r}, v{vWDA+4+r}, s[{sHF}:{sHF+1}]")
E(f"s_cmp_ge_u32 s{sW}, 5")
E("s_cbranch_scc1 K1_NOBD")
for r in range(4):
    E(f"ds_write_b32 v{vT+3}, v{vWDA+r} offset:{BP_OFF + r*32}")
L("K1_NOBD:")
E("s_waitcnt lgkmcnt(0)")
E("s_barrier")
E(f"v_lshlrev_b32 v{vT}, 3, v0")
E("v_cmp_gt_u32 vcc, 320, v0")
E(f"s_and_saveexec_b64 s[{sE}:{sE+1}], vcc")
E("s_cbranch_execz K1_FIN_DONE")
vFs = vT + 4
for s in range(16):
    E(f"ds_read_b64 v[{vFs+2*s}:{vFs+2*s+1}], v{vT} offset:{Y_OFF + s*Y_STR}")
E(f"ds_read_b64 v[{vFs+32}:{vFs+33}], v{vT} offset:{BP_OFF}")
E(f"ds_read_b64 v[{vFs+34}:{vFs+35}], v{vT} offset:{BP_OFF + Y_STR}")
E("s_waitcnt lgkmcnt(0)")
for st in (8, 4, 2, 1):
    for s in range(st):
        for q in range(2):
            E(f"v_add_f32 v{vFs+2*s+q}, v{vFs+2*s+q}, v{vFs+2*(s+st)+q}")
E(f"v_add_f32 v{vFs+32}, v{vFs+32}, v{vFs+34}")
E(f"v_add_f32 v{vFs+33}, v{vFs+33}, v{vFs+35}")
E(f"s_mul_i32 s{sT}, s{sROW}, 2560")
E(f"buffer_store_dwordx2 v[{vFs}:{vFs+1}], v{vT}, {sr(sWS)}, s{sT} offen sc1")
E(f"s_cmp_ge_u32 s{sIDX}, 24")
E("s_cbranch_scc1 K1_FIN_DONE")
E(f"s_mul_i32 s{sT}, s{sMLPI}, 2560")
E(f"s_add_u32 s{sT}, s{sT}, {WS_B}")
E(f"buffer_store_dwordx2 v[{vFs+32}:{vFs+33}], v{vT}, {sr(sWS)}, s{sT} offen sc1")
L("K1_FIN_DONE:")
E(f"s_mov_b64 exec, s[{sE}:{sE+1}]")
E(f"v_lshlrev_b32 v{vT+1}, 2, v0")
E(f"s_mov_b32 s{sWG}, s26")
E(f"s_and_b32 s{sWG+1}, s27, 0xffff")
E(f"s_mov_b32 s{sWG+2}, 1280")
E(f"s_mov_b32 s{sWG+3}, 0x00020000")
E(f"s_waitcnt vmcnt(0)")
E(f"s_barrier")
stamp()
E(f"s_cmp_lg_u32 s{sW}, 0")
E("s_cbranch_scc1 K1_NOSIG")
E(f"s_and_b32 s{sT}, s2, 15")
E(f"s_lshl_b32 s{sT}, s{sT}, 4")
E(f"v_mov_b32 v{vT+2}, s{sT}")
E(f"v_mov_b32 v{vT+3}, 1")
E("s_mov_b64 exec, 1")
E(f"global_atomic_add v{vT+2}, v{vT+3}, s[30:31] sc1")
E("s_mov_b64 exec, -1")
L("K1_NOSIG:")
E("s_cmp_ge_u32 s2, 160")
E("s_cbranch_scc1 K1_STAMPS")
E(f"buffer_load_dword v26, v{vT+1}, {sr(sX)}, 0 offen")
E(f"buffer_load_dword v27, v{vT+1}, {sr(sWG)}, 0 offen")
E("v_mul_u32_u24 v2, 2560, v0")
E(f"v_add_u32 v3, {WS_B - 256*2560}, v2")
E("v_cmp_gt_u32 vcc, 256, v0")
E("s_nop 1")
E("v_cndmask_b32 v2, v3, v2, vcc")
E("s_lshl_b32 s4, s2, 4")
E(f"s_cmp_lg_u32 s{sW}, 0")
E("s_cbranch_scc1 K1_POLLED")
E("v_and_b32 v3, 15, v0")
E("v_lshlrev_b32 v3, 4, v3")
L("K1_POLL:")
E("global_load_dword v4, v3, s[30:31] sc1")
E("s_waitcnt vmcnt(0)")
E("v_cmp_ne_u32 vcc, 16, v4")
E("s_cbranch_vccz K1_POLLED")
E("s_sleep 1")
E("s_branch K1_POLL")
L("K1_POLLED:")
E("s_barrier")
stamp()
E("v_cmp_gt_u32 vcc, 448, v0")
E("v_lshrrev_b32 v3, 3, v0")
E("v_lshlrev_b32 v3, 6, v3")
E(f"s_mov_b32 s5, {WS_ML}")
E(f"buffer_load_dwordx4 v[4:7], v2, {sr(sWS)}, s4 offen sc1")
for q in range(4):
    E(f"buffer_load_dwordx4 v[{8+4*q}:{11+4*q}], v3, {sr(sWS)}, s5 offen offset:{16*q} sc1")
E("v_lshlrev_b32 v3, 3, v0")
E(f"buffer_load_dwordx2 v[24:25], v3, {sr(sWS)}, s5 offen sc1")
E("s_waitcnt vmcnt(0)")
E("v_lshlrev_b32 v28, 16, v26")
E("v_and_b32 v26, 0xffff0000, v26")
E("v_lshlrev_b32 v29, 16, v27")
E("v_and_b32 v27, 0xffff0000, v27")
E("v_mul_f32 v28, v28, v29")
E("v_fmac_f32 v28, v26, v27")
E("v_max3_f32 v30, v8, v10, v12")
E("v_max3_f32 v30, v30, v14, v16")
E("v_max3_f32 v30, v30, v18, v20")
E("v_max_f32 v30, v30, v22")
for c in range(8):
    E(f"v_sub_f32 v{8+2*c}, v{8+2*c}, v30")
for c in range(8):
    E(f"v_mul_f32 v{8+2*c}, s{sSC}, v{8+2*c}")
for c in range(8):
    E(f"v_exp_f32 v{8+2*c}, v{8+2*c}")
E("v_sub_f32 v24, v24, v30")
E(f"v_mul_f32 v24, s{sSC}, v24")
E("v_exp_f32 v24, v24")
E("v_mul_f32 v31, v8, v9")
for c in range(1, 8):
    E(f"v_fmac_f32 v31, v{8+2*c}, v{9+2*c}")
E("v_rcp_f32 v31, v31")
E("s_nop 0")
E("v_mul_f32 v24, v24, v31")
E("v_cmp_gt_u32 vcc, 256, v0")
E("s_nop 1")
E("v_cndmask_b32 v24, 1.0, v24, vcc")
E("v_cmp_gt_u32 vcc, 448, v0")
for q in range(4):
    E(f"v_mul_f32 v{4+q}, v{4+q}, v24")
for q in range(4):
    E(f"v_cndmask_b32 v{4+q}, 0, v{4+q}, vcc")
dpp_reduce([4, 5, 6, 7, 28])
E(f"s_lshl_b32 s6, s{sW}, 5")
E("v_mov_b32 v2, s6")
E("s_mov_b32 exec_lo, 0")
E("s_mov_b32 exec_hi, 0x80000000")
E(f"ds_write_b128 v2, v[4:7] offset:{FR_OFF}")
E(f"ds_write_b32 v2, v28 offset:{FR_OFF+16}")
E("s_mov_b64 exec, -1")
E("s_waitcnt lgkmcnt(0)")
E("s_barrier")
E(f"s_cmp_lg_u32 s{sW}, 0")
E("s_cbranch_scc1 K1_STAMPS")
E("v_lshlrev_b32 v2, 2, v0")
for w in range(7):
    E(f"ds_read_b32 v{8+w}, v2 offset:{FR_OFF+32*w}")
E("v_mov_b32 v3, 0")
for w in range(5):
    E(f"ds_read_b32 v{16+w}, v3 offset:{FR_OFF+32*w+16}")
E(f"s_mov_b32 s{sWG}, s28")
E(f"s_and_b32 s{sWG+1}, s29, 0xffff")
E(f"s_mov_b32 s{sWG+2}, 1280")
E(f"s_mov_b32 s{sWG+3}, 0x00020000")
E("s_waitcnt lgkmcnt(0)")
E("v_add_f32 v8, v8, v9")
E("v_add_f32 v10, v10, v11")
E("v_add_f32 v8, v8, v10")
E("v_add_f32 v12, v12, v13")
E("v_add_f32 v12, v12, v14")
for w in range(1, 5):
    E(f"v_add_f32 v16, v16, v{16+w}")
E("v_mul_f32 v16, 0xbfb8aa3b, v16")
E("v_exp_f32 v16, v16")
E("s_nop 0")
E("v_add_f32 v16, 1.0, v16")
E("v_rcp_f32 v16, v16")
E("s_nop 0")
E("v_sub_f32 v17, 1.0, v16")
E("v_mul_f32 v8, v8, v16")
E("v_fmac_f32 v8, v12, v17")
E("v_cvt_pk_bf16_f32 v8, v8, v8")
E("v_lshlrev_b32 v2, 1, v0")
E("s_lshl_b32 s4, s2, 3")
E("v_cmp_gt_u32 vcc, 4, v0")
E("s_and_saveexec_b64 s[6:7], vcc")
E(f"buffer_store_short v8, v2, {sr(sWG)}, s4 offen")
E("s_mov_b64 exec, -1")
L("K1_STAMPS:")
if ST:
    E("s_mov_b64 exec, -1")
    E("s_waitcnt vmcnt(0) lgkmcnt(0)")
    E(f"s_cmp_lg_u32 s{sW}, {STW}")
    E("s_cbranch_scc1 K1_END")
    E("s_memrealtime s[2:3]")
    E("s_waitcnt lgkmcnt(0)")
    regs = stamp_regs[:stamp_n[0]]
    for i, r in enumerate(regs):
        E(f"v_writelane_b32 v10, s{r}, {2*i}")
        E(f"v_writelane_b32 v10, s{r+1}, {2*i+1}")
    n = len(regs)
    E(f"v_writelane_b32 v10, s2, {2*n}")
    E(f"v_writelane_b32 v10, s3, {2*n+1}")
    E("v_lshlrev_b32 v11, 2, v1")
    E(f"s_lshl_b32 s39, s93, 7")
    E("s_add_u32 s39, s39, 0x300000")
    E(f"v_cmp_gt_u32 vcc, {2*n+2}, v1")
    E("s_and_saveexec_b64 s[86:87], vcc")
    E(f"buffer_store_dword v10, v11, {sr(sWS)}, s39 offen")
L("K1_END:")
E("s_endpgm")

L('.section .rodata,"a"')
L(".p2align 6")
L(f".amdhsa_kernel {K1}")
L(f"  .amdhsa_next_free_vgpr 256")
L(f"  .amdhsa_next_free_sgpr 102")
L(f"  .amdhsa_accum_offset 256")
L("  .amdhsa_group_segment_fixed_size 0")
L("  .amdhsa_kernarg_size 104")
L("  .amdhsa_user_sgpr_count 2")
L("  .amdhsa_user_sgpr_kernarg_segment_ptr 1")
L("  .amdhsa_system_sgpr_workgroup_id_x 1")
L(".end_amdhsa_kernel")
txt = '\n'.join(out) + '\n'
if ST:
    txt = txt.replace("s_cbranch_scc1 K1_END\n", "s_cbranch_scc1 K1_END\n    s_mov_b32 s93, s2\n", 1)
open(sys.argv[1], 'w').write(txt)
```

```python
import sys, struct

NAME = "gated_mix__sliding_block_cached__glu_gated_reglu__decode"
out = []
def E(s): out.append("    " + s)
def L(s): out.append(s)
def C(s): out.append("    ; " + s)

HEADER = open('cdna_kernels/' + NAME + '.s.ref').read().split('\n')
hdr = []
for ln in HEADER:
    if ln.startswith('; @launch') or ln.startswith('.amdgcn_target'):
        break
    hdr.append(ln)

opts = (sys.argv[2] if len(sys.argv) > 2 else "").split(',')
def opt(name, default=None):
    for o in opts:
        if o == name: return True
        if o.startswith(name + '='): return o.split('=')[1]
    return default
NT = " nt" if opt('nt') else ""
WNT = " nt" if opt('wnt') else ""
ST = opt('st') or opt('dbg')
DBG = opt('dbg')
STW = int(opt('stw', 0))

P_OFF   = 0
P_STR   = 800
Y_OFF   = 12800
Y_STR   = 2592
BP_OFF  = Y_OFF + 16 * Y_STR
QBF_OFF = BP_OFF + 2 * Y_STR
OBF_OFF = QBF_OFF + 384
ST_OFF  = OBF_OFF + 384
MP_OFF  = ST_OFF + 64
HBF_OFF = MP_OFF + 512
FR_OFF  = HBF_OFF + 64
LDS_SZ  = FR_OFF + 256
assert LDS_SZ <= 65536

WS_Y  = 0
WS_ML = 0xA0000
WS_B  = 0x100000

SCALE_LOG2E = (192.0 ** -0.5) * 1.4426950408889634
def f32bits(x): return struct.unpack('<I', struct.pack('<f', x))[0]

K1 = NAME + "_kernel"

L('\n'.join(hdr))
L(f"; @launch grid=(256,1,1) block=(512,1,1) lds=65536")
L('.amdgcn_target "amdgcn-amd-amdhsa--gfx950"')
L(".text")
L(f".globl {K1}")
L(".p2align 8")
L(f".type {K1},@function")
L(f"{K1}:")

vL, vG, vJ = 1, 2, 3
vM = [4, 5, 6, 7]
vXF = 8
vXA, vXB = 13, 14
vT15 = 15
vML = 16
vTMP = 32
vKB = 40
vWQ = 136

sW, sXCD, sIDX, sH, sC, sT = 34, 35, 36, 37, 38, 39
sK, sV, sWQ, sWO, sWG, sWU, sWD, sX, sWS = 40, 44, 48, 52, 56, 60, 64, 68, 72
sSELLO, sSELHI = 76, 77
sHF = 78
sV2 = 80
sOFF = 82
sSC = 83
s160W = 84
sROW = 85
sE = 86
sR0 = 88
sMLPI = 92
stamp_regs = [94] + [10, 12, 14, 16, 18, 20, 22, 24, 96, 98, 100, 32]
stamp_n = [0]
def stamp():
    if not ST: return
    r = stamp_regs[stamp_n[0]]; stamp_n[0] += 1
    E(f"s_memrealtime s[{r}:{r+1}]")
def vr(a, n=4): return f"v[{a}:{a+n-1}]"
def sr(a, n=4): return f"s[{a}:{a+n-1}]"

vmq = []
def VM(s, tag):
    E(s); vmq.append(tag)
def WAIT(tag):
    idx = max(i for i, t in enumerate(vmq) if t == tag)
    n = len(vmq) - 1 - idx
    assert n <= 63
    E(f"s_waitcnt vmcnt({n})")

def srd(dst, plo, off_s, nrec):
    E(f"s_add_u32 s{dst}, s{plo}, s{off_s}")
    E(f"s_addc_u32 s{dst+1}, s{plo+1}, 0")
    E(f"s_and_b32 s{dst+1}, s{dst+1}, 0xffff")
    E(f"s_mov_b32 s{dst+2}, {nrec}")
    E(f"s_mov_b32 s{dst+3}, 0x00020000")

def dpp_reduce(regs):
    for ctl in ["row_shr:1", "row_shr:2", "row_shr:4", "row_shr:8"]:
        for r in regs:
            E(f"v_add_f32_dpp v{r}, v{r}, v{r} {ctl} row_mask:0xf bank_mask:0xf bound_ctrl:0")
        if len(regs) < 3: E("s_nop 1")
    for r in regs:
        E(f"v_add_f32_dpp v{r}, v{r}, v{r} row_bcast:15 row_mask:0xa bank_mask:0xf")
    if len(regs) < 3: E("s_nop 1")
    for r in regs:
        E(f"v_add_f32_dpp v{r}, v{r}, v{r} row_bcast:31 row_mask:0xc bank_mask:0xf")

def expand(dup, dst):
    for w in range(4):
        E(f"v_and_b32 v{dst+w}, v{dup}, v{vM[w]}")

E("s_cmp_ge_u32 s2, 256")
E("s_cbranch_scc1 K1_END")
stamp()
if DBG: E("s_memtime s[4:5]")
E("s_load_dwordx16 s[8:23], s[0:1], 0")
E("s_load_dwordx8 s[24:31], s[0:1], 64")
E("s_load_dwordx2 s[32:33], s[0:1], 96")
E(f"v_and_b32 v{vL}, 63, v0")
E(f"v_bfe_u32 v{vG}, v0, 4, 2")
E(f"v_and_b32 v{vJ}, 15, v0")
E(f"v_lshrrev_b32 v{vT15}, 6, v0")
E("s_nop 0")
E(f"v_readfirstlane_b32 s{sW}, v{vT15}")
E(f"s_and_b32 s{sXCD}, s2, 7")
E(f"s_lshr_b32 s{sIDX}, s2, 3")
E(f"s_and_b32 s{sH}, s{sIDX}, 3")
E(f"s_lshl_b32 s{sT}, s{sXCD}, 2")
E(f"s_add_u32 s{sH}, s{sH}, s{sT}")
E(f"s_lshr_b32 s{sC}, s{sIDX}, 2")
E(f"s_mov_b32 s{sSELLO}, 0x01000100")
E(f"s_mov_b32 s{sSELHI}, 0x03020302")
E(f"s_mov_b32 s{sHF}, 0xFF00FF00")
E(f"s_mov_b32 s{sHF+1}, 0xFF00FF00")
E(f"s_mov_b32 s{sV2}, 0x00FF00FF")
E(f"s_mov_b32 s{sV2+1}, 0xFF00FF00")
E(f"s_mov_b32 s{sSC}, 0x{f32bits(SCALE_LOG2E):08x}")
E(f"v_and_b32 v{vTMP}, 1, v{vJ}")
E(f"v_lshlrev_b32 v{vTMP}, 4, v{vTMP}")
E(f"v_mov_b32 v{vTMP+1}, 0xffff")
E(f"v_lshlrev_b32 v{vTMP+1}, v{vTMP}, v{vTMP+1}")
E(f"v_bfe_u32 v{vTMP+2}, v{vJ}, 1, 2")
for w in range(4):
    E(f"v_cmp_eq_u32 vcc, {w}, v{vTMP+2}")
    E("s_nop 1")
    E(f"v_cndmask_b32 v{vM[w]}, 0, v{vTMP+1}, vcc")
E(f"v_lshrrev_b32 v{vTMP}, 3, v{vJ}")
E(f"v_lshl_add_u32 v{vTMP+1}, v{vTMP}, 2, v{vG}")
E(f"v_mul_u32_u24 v{vTMP+2}, 20, v{vTMP+1}")
E(f"v_and_b32 v{vTMP+3}, 7, v{vJ}")
E(f"v_mul_u32_u24 v{vTMP+4}, 122880, v{vG}")
E(f"v_lshl_add_u32 v{vTMP+4}, v{vJ}, 4, v{vTMP+4}")
E(f"v_add_u32 v{vTMP+5}, 491520, v{vTMP+4}")
E(f"v_mul_u32_u24 v{vTMP+6}, 122880, v{vTMP+1}")
E(f"v_lshl_add_u32 v{vTMP+6}, v{vTMP+3}, 4, v{vTMP+6}")
E(f"v_add_u32 v{vTMP+6}, 256, v{vTMP+6}")
E(f"v_and_b32 v{vTMP+7}, 3, v{vJ}")
E(f"v_lshlrev_b32 v{vTMP+7}, 3, v{vTMP+7}")
E(f"v_bfe_u32 v{vT15}, v{vJ}, 2, 1")
E(f"v_add_u32 v{vTMP+7}, v{vTMP+7}, v{vT15}")
E(f"v_mul_u32_u24 v{vTMP+7}, 384, v{vTMP+7}")
E(f"v_lshl_add_u32 v{vTMP+7}, v{vG}, 4, v{vTMP+7}")
E(f"v_lshlrev_b32 v{vT15}, 6, v{vTMP}")
E(f"v_sub_u32 v{vKB+95}, v{vTMP+7}, v{vT15}")
E(f"v_add_u32 v{vKB+95}, 64, v{vKB+95}")
E(f"v_add_u32 v{vTMP+7}, v{vTMP+7}, v{vT15}")
E(f"v_mul_u32_u24 v{vT15}, 3072, v{vL}")
E(f"v_add_u32 v{vTMP+3}, 196608, v{vT15}")
E(f"v_lshlrev_b32 v{vTMP}, 1, v{vL}")
E(f"s_mul_i32 s{s160W}, s{sW}, 160")
E("s_waitcnt lgkmcnt(0)")
if DBG: E("s_mov_b32 s95, s4")
E(f"s_mul_i32 s{sT}, s{sH}, 12582912")
E(f"s_mul_i32 s{sOFF}, s{sC}, 196608")
E(f"s_add_u32 s{sT}, s{sT}, s{sOFF}")
E(f"s_mul_i32 s{sOFF}, s{sW}, 24576")
E(f"s_add_u32 s{sT}, s{sT}, s{sOFF}")
E(f"s_add_u32 s{sT}, s{sT}, 11010048")
srd(sK, 10, sT, 24576)
srd(sV, 12, sT, 24576)
E(f"s_mul_i32 s{sT}, s{sH}, 384")
E(f"s_mul_i32 s{sOFF}, s{sW}, 983040")
E(f"s_add_u32 s{sT}, s{sT}, s{sOFF}")
srd(sWQ, 14, sT, 79 * 12288 + 384)
E(f"s_mov_b32 s{sT}, 0")
srd(sX, 8, sT, 1280)
GOFF = [0, 2, 6, 4]
def kload(n):
    Q, gi, s = n // 12, (n // 3) % 4, n % 3
    b = vKB + n * 4
    va = vTMP + 7 if gi in (0, 2) else vKB + 95
    so = f"s{sR0}" if Q else "0"
    VM(f"buffer_load_dwordx4 {vr(b)}, v{va}, {sr(sK)}, {so} offen offset:{GOFF[gi]*384+s*128}{NT}", f"K{Q}{gi}")
E(f"s_mov_b32 s{sR0}, 12288")
kload(0); kload(1)
VM(f"buffer_load_dwordx4 {vr(vXF)}, v{vTMP+2}, {sr(sX)}, s{s160W} offen", "X")
VM(f"buffer_load_dword v{vXF+4}, v{vTMP+2}, {sr(sX)}, s{s160W} offen offset:16", "X")
VM(f"buffer_load_ushort v{vXA}, v{vTMP}, {sr(sX)}, s{s160W} offen", "X")
VM(f"buffer_load_ushort v{vXB}, v{vTMP}, {sr(sX)}, s{s160W} offen offset:128", "X")
E(f"s_mul_i32 s{sT}, s{sH}, 245760")
E(f"s_mul_i32 s{sOFF}, s{sW}, 30720")
E(f"s_add_u32 s{sT}, s{sT}, s{sOFF}")
srd(sWO, 16, sT, 30720)
E(f"s_min_u32 s{sOFF}, s{sIDX}, 23")
E(f"s_mul_i32 s{sMLPI}, s{sXCD}, 24")
E(f"s_add_u32 s{sMLPI}, s{sMLPI}, s{sOFF}")
E(f"s_lshl_b32 s{sT}, s{sMLPI}, 4")
E(f"s_mul_i32 s{sOFF}, s{sW}, 245760")
E(f"s_add_u32 s{sT}, s{sT}, s{sOFF}")
srd(sWG, 20, sT, 79 * 3072 + 16)
srd(sWU, 22, sT, 79 * 3072 + 16)
E(f"s_mul_i32 s{sT}, s{sMLPI}, 10240")
srd(sWD, 24, sT, 10240)
E(f"s_cmp_lt_u32 s{sIDX}, 24")
E(f"s_cselect_b32 s{sWG+2}, s{sWG+2}, 0")
E(f"s_cselect_b32 s{sWU+2}, s{sWU+2}, 0")
E(f"s_cselect_b32 s{sWD+2}, s{sWD+2}, 0")
E(f"s_cmp_lt_u32 s{sW}, 5")
E(f"s_cselect_b32 s{sWD+2}, s{sWD+2}, 0")
E(f"s_mov_b32 s{sT}, 0")
srd(sWS, 32, sT, 0x400000)
VM(f"buffer_load_dwordx4 {vr(vML)}, v{vT15}, {sr(sWG)}, 0 offen", "M")
VM(f"buffer_load_dwordx4 {vr(vML+4)}, v{vTMP+3}, {sr(sWG)}, 0 offen", "M")
VM(f"buffer_load_dwordx4 {vr(vML+8)}, v{vT15}, {sr(sWU)}, 0 offen", "M")
VM(f"buffer_load_dwordx4 {vr(vML+12)}, v{vTMP+3}, {sr(sWU)}, 0 offen", "M")
kn = 2
for t in range(10):
    E(f"s_mov_b32 s{sOFF}, {t*12288}")
    b = vWQ + 12 * t
    VM(f"buffer_load_dwordx4 {vr(b)}, v{vTMP+4}, {sr(sWQ)}, s{sOFF} offen{WNT}", f"Q{t}")
    VM(f"buffer_load_dwordx4 {vr(b+4)}, v{vTMP+5}, {sr(sWQ)}, s{sOFF} offen{WNT}", f"Q{t}")
    VM(f"buffer_load_dwordx4 {vr(b+8)}, v{vTMP+6}, {sr(sWQ)}, s{sOFF} offen{WNT}", f"Q{t}")
    kload(kn); kn += 1
while kn < 24:
    kload(kn); kn += 1
stamp()
WAIT("M")
E(f"v_lshlrev_b32 v{vXA}, 16, v{vXA}")
E(f"v_lshlrev_b32 v{vXB}, 16, v{vXB}")
for m in range(2):
    A = vML + 8 * m; B = A + 4
    for k in range(4):
        t0, t1, t2, t3 = vTMP, vTMP+1, vTMP+2, vTMP+3
        E(f"v_lshlrev_b32 v{t0}, 16, v{A+k}")
        E(f"v_and_b32 v{t1}, 0xffff0000, v{A+k}")
        E(f"v_lshlrev_b32 v{t2}, 16, v{B+k}")
        E(f"v_and_b32 v{t3}, 0xffff0000, v{B+k}")
        E(f"v_mul_f32 v{A+k}, v{vXA}, v{t0}")
        E(f"v_mul_f32 v{B+k}, v{vXA}, v{t1}")
        E(f"v_fmac_f32 v{A+k}, v{vXB}, v{t2}")
        E(f"v_fmac_f32 v{B+k}, v{vXB}, v{t3}")
dpp_reduce(list(range(vML, vML + 16)))
E(f"s_lshl_b32 s{sT}, s{sW}, 6")
E(f"v_mov_b32 v{vTMP}, s{sT}")
E("s_mov_b32 exec_lo, 0")
E("s_mov_b32 exec_hi, 0x80000000")
for q in range(4):
    E(f"ds_write_b128 v{vTMP}, {vr(vML+4*q)} offset:{MP_OFF + 16*q}")
E("s_mov_b64 exec, -1")
E("s_waitcnt lgkmcnt(0)")

vAC = vML
for t in range(10):
    bx = vTMP + 4 * (t & 1)
    E(f"v_perm_b32 v{vT15}, v{vXF + (t>>1)}, v{vXF + (t>>1)}, s{sSELHI if (t&1) else sSELLO}")
    expand(vT15, bx)
    WAIT(f"Q{t}")
    E("s_nop 0")
    b = vWQ + 12 * t
    c = (lambda a: "0") if t == 0 else (lambda a: vr(a))
    E(f"v_mfma_f32_16x16x32_bf16 {vr(vAC)}, {vr(b)}, {vr(bx)}, {c(vAC)}")
    E(f"v_mfma_f32_16x16x32_bf16 {vr(vAC+4)}, {vr(b+4)}, {vr(bx)}, {c(vAC+4)}")
    E(f"v_mfma_f32_16x16x32_bf16 {vr(vAC+8)}, {vr(b+8)}, {vr(bx)}, {c(vAC+8)}")
stamp()
vVA, vVB = vXA, vXB
E(f"v_mul_u32_u24 v{vVA}, 384, v{vG}")
E(f"v_lshl_add_u32 v{vVA}, v{vJ}, 4, v{vVA}")
E(f"v_lshrrev_b32 v{vTMP+2}, 3, v{vJ}")
E(f"v_lshl_add_u32 v{vTMP+2}, v{vTMP+2}, 2, v{vG}")
E(f"v_mul_u32_u24 v{vVB}, 384, v{vTMP+2}")
E(f"v_and_b32 v{vTMP+2}, 7, v{vJ}")
E(f"v_lshl_add_u32 v{vVB}, v{vTMP+2}, 4, v{vVB}")
E(f"v_add_u32 v{vVB}, 256, v{vVB}")
def vload(n):
    k, q = n // 3, n % 3
    b = vWQ + 12 * k + 4 * q
    E(f"s_mov_b32 s{sOFF}, {k*3072}")
    if q < 2:
        VM(f"buffer_load_dwordx4 {vr(b)}, v{vVA}, {sr(sV)}, s{sOFF} offen offset:{q*1536}{NT}", f"V{k}")
    else:
        VM(f"buffer_load_dwordx4 {vr(b)}, v{vVB}, {sr(sV)}, s{sOFF} offen{NT}", f"V{k}")
NV1 = int(opt('nv1', 12))
for n in range(NV1): vload(n)

def dump3(ac, tb):
    a1, a2, t = tb, tb + 1, tb + 2
    E(f"v_lshrrev_b32 v{t}, 3, v{vJ}")
    E(f"s_lshl_b32 s{sT}, s{sW}, 1")
    E(f"v_add_u32 v{t}, s{sT}, v{t}")
    E(f"v_mul_u32_u24 v{a1}, {P_STR}, v{t}")
    E(f"v_and_b32 v{t}, 7, v{vJ}")
    E(f"v_lshl_add_u32 v{a1}, v{t}, 2, v{a1}")
    E(f"v_and_b32 v{t}, 1, v{vG}")
    E(f"v_lshl_add_u32 v{a2}, v{t}, 7, v{a1}")
    E(f"v_lshl_add_u32 v{a1}, v{vG}, 7, v{a1}")
    E("s_nop 7")
    for r in range(4):
        E(f"v_cndmask_b32 v{ac+r}, v{ac+r}, v{ac+4+r}, s[{sHF}:{sHF+1}]")
    for r in range(4):
        E(f"ds_write_b32 v{a1}, v{ac+r} offset:{P_OFF + r*32}")
    E(f"s_mov_b64 exec, s[{sV2}:{sV2+1}]")
    for r in range(4):
        E(f"ds_write_b32 v{a2}, v{ac+8+r} offset:{P_OFF + 512 + r*32}")
    E("s_mov_b64 exec, -1")
dump3(vAC, vTMP + 2)
E("s_waitcnt lgkmcnt(0)")
E("s_barrier")
stamp()
E(f"v_lshlrev_b32 v{vTMP}, 2, v0")
E("v_cmp_gt_u32 vcc, 192, v0")
E(f"s_and_saveexec_b64 s[{sE}:{sE+1}], vcc")
E("s_cbranch_execz K1_QSUM_DONE")
for s in range(16):
    E(f"ds_read_b32 v{vML+s}, v{vTMP} offset:{P_OFF + s*P_STR}")
E("s_waitcnt lgkmcnt(0)")
for st in (8, 4, 2, 1):
    for s in range(st):
        E(f"v_add_f32 v{vML+s}, v{vML+s}, v{vML+s+st}")
E(f"v_cvt_pk_bf16_f32 v{vML}, v{vML}, v{vML}")
E(f"v_lshlrev_b32 v{vTMP}, 1, v0")
E(f"ds_write_b16 v{vTMP}, v{vML} offset:{QBF_OFF}")
L("K1_QSUM_DONE:")
E(f"s_mov_b64 exec, s[{sE}:{sE+1}]")
E(f"v_subrev_u32 v{vTMP}, 192, v0")
E(f"v_cmp_gt_u32 vcc, 8, v{vTMP}")
E(f"s_and_saveexec_b64 s[{sE}:{sE+1}], vcc")
E("s_cbranch_execz K1_H_DONE")
E(f"v_and_b32 v{vTMP+1}, 1, v{vTMP}")
E(f"v_lshrrev_b32 v{vTMP+2}, 1, v{vTMP}")
E(f"v_lshl_add_u32 v{vTMP+1}, v{vTMP+1}, 2, v{vTMP+2}")
E(f"v_lshlrev_b32 v{vTMP+1}, 2, v{vTMP+1}")
for w in range(8):
    E(f"ds_read_b32 v{vML+w}, v{vTMP+1} offset:{MP_OFF + w*64}")
    E(f"ds_read_b32 v{vML+8+w}, v{vTMP+1} offset:{MP_OFF + w*64 + 32}")
E("s_waitcnt lgkmcnt(0)")
for st in (4, 2, 1):
    for s in range(st):
        E(f"v_add_f32 v{vML+s}, v{vML+s}, v{vML+s+st}")
        E(f"v_add_f32 v{vML+8+s}, v{vML+8+s}, v{vML+8+s+st}")
E(f"v_cvt_pk_bf16_f32 v{vML}, v{vML}, v{vML+8}")
E(f"v_lshlrev_b32 v{vML+1}, 16, v{vML}")
E(f"v_and_b32 v{vML+2}, 0xffff0000, v{vML}")
E(f"v_max_f32 v{vML+1}, 0, v{vML+1}")
E(f"v_mul_f32 v{vML+1}, v{vML+1}, v{vML+2}")
E(f"v_cvt_pk_bf16_f32 v{vML+1}, v{vML+1}, v{vML+1}")
E(f"v_lshlrev_b32 v{vTMP}, 1, v{vTMP}")
E(f"ds_write_b16 v{vTMP}, v{vML+1} offset:{HBF_OFF}")
L("K1_H_DONE:")
E(f"s_mov_b64 exec, s[{sE}:{sE+1}]")
E("s_waitcnt lgkmcnt(0)")
E("s_barrier")
stamp()
vQ = vWQ + 96
E(f"v_lshrrev_b32 v{vTMP+1}, 3, v{vJ}")
E(f"v_lshlrev_b32 v{vTMP+1}, 6, v{vTMP+1}")
E(f"v_lshl_add_u32 v{vTMP}, v{vG}, 4, v{vTMP+1}")
for s in range(3):
    E(f"ds_read_b128 {vr(vQ+4*s)}, v{vTMP} offset:{QBF_OFF + 128*s}")
E(f"v_xor_b32 v{vTMP+2}, 40, v{vL}")
E(f"v_lshlrev_b32 v{vTMP+2}, 2, v{vTMP+2}")
E("s_waitcnt lgkmcnt(0)")
vS = vML
vD = vML
vF = vQ + 12
for Q in range(2):
    for gi in range(4):
        WAIT(f"K{Q}{gi}")
        for s in range(3):
            b = vKB + ((Q * 4 + gi) * 3 + s) * 4
            c = "0" if s == 0 else vr(vD + 4*gi)
            E(f"v_mfma_f32_16x16x32_bf16 {vr(vD+4*gi)}, {vr(b)}, {vr(vQ+4*s)}, {c}")
    E("s_nop 7")
    for r in range(4):
        a, b_, c_, d = vD + r, vD + 4 + r, vD + 8 + r, vD + 12 + r
        u1, u2 = vTMP + 4, vTMP + 5
        E(f"v_cndmask_b32 v{u1}, v{b_}, v{a}, s[{sV2}:{sV2+1}]")
        E(f"v_cndmask_b32 v{u2}, v{d}, v{c_}, s[{sV2}:{sV2+1}]")
        E(f"v_cndmask_b32 v{vF+4*Q+r}, v{u1}, v{u2}, s[{sHF}:{sHF+1}]")
        E(f"v_cndmask_b32 v{a}, v{u2}, v{u1}, s[{sHF}:{sHF+1}]")
    for r in range(4):
        E(f"ds_bpermute_b32 v{vD+4+r}, v{vTMP+2}, v{vD+r}")
    E("s_waitcnt lgkmcnt(0)")
    for r in range(4):
        E(f"v_add_f32 v{vF+4*Q+r}, v{vF+4*Q+r}, v{vD+4+r}")
for r in range(8):
    E(f"v_mov_b32 v{vS+r}, v{vF+r}")
stamp()
vWOo = vTMP
E(f"v_mul_u32_u24 v{vWOo}, 1280, v{vG}")
E(f"v_lshl_add_u32 v{vWOo}, v{vJ}, 4, v{vWOo}")
def wo_reg(G, st, c5):
    n = (G * 2 + st) * 5 + c5
    return vKB + 4*n if n < 24 else vQ + 4*(n - 24)
vWD = vXF
vWD2 = vTMP + 4
vn = NV1
nrem = 24 - NV1
for G in range(3):
    for st in range(2):
        E(f"s_mov_b32 s{sR0}, {G*10240 + st*5120}")
        for c5 in range(5):
            VM(f"buffer_load_dwordx4 {vr(wo_reg(G,st,c5))}, v{vWOo}, {sr(sWO)}, s{sR0} offen offset:{c5*256}{WNT}", f"O{G}{st}")
        step = G * 2 + st
        tgt = NV1 + (nrem * (step + 1)) // 6
        while vn < tgt:
            vload(vn); vn += 1
stamp()
t = vTMP + 1
E(f"v_max3_f32 v{t}, v{vS}, v{vS+1}, v{vS+2}")
E(f"v_max3_f32 v{t}, v{t}, v{vS+3}, v{vS+4}")
E(f"v_max3_f32 v{t}, v{t}, v{vS+5}, v{vS+6}")
E(f"v_max_f32 v{t}, v{t}, v{vS+7}")
E("s_nop 1")
E(f"v_max_f32_dpp v{t}, v{t}, v{t} row_ror:8 row_mask:0xf bank_mask:0xf")
E("s_nop 1")
for q in range(4):
    E(f"v_readlane_b32 s{sR0+q}, v{t}, {16*q}")
E("s_nop 1")
E(f"v_mov_b32 v{t}, s{sR0}")
E(f"v_max_f32 v{t}, s{sR0+1}, v{t}")
E(f"v_max_f32 v{t}, s{sR0+2}, v{t}")
E(f"v_max_f32 v{t}, s{sR0+3}, v{t}")
E(f"s_lshl_b32 s{sT}, s{sW}, 2")
E(f"v_mov_b32 v{t+1}, s{sT}")
E(f"ds_write_b32 v{t+1}, v{t} offset:{ST_OFF}")
E(f"v_mul_f32 v{t}, s{sSC}, v{t}")
for r in range(8):
    E(f"v_fma_f32 v{vS+r}, v{vS+r}, s{sSC}, -v{t}")
for r in range(8):
    E(f"v_exp_f32 v{vS+r}, v{vS+r}")
E("s_nop 0")
t2 = vTMP + 3
E(f"v_add_f32 v{t2}, v{vS}, v{vS+1}")
for r in range(2, 8):
    E(f"v_add_f32 v{t2}, v{t2}, v{vS+r}")
E("s_nop 1")
E(f"v_add_f32_dpp v{t2}, v{t2}, v{t2} row_ror:8 row_mask:0xf bank_mask:0xf")
E("s_nop 1")
for q in range(4):
    E(f"v_readlane_b32 s{sR0+q}, v{t2}, {16*q}")
E("s_nop 1")
E(f"v_mov_b32 v{t2}, s{sR0}")
E(f"v_add_f32 v{t2}, s{sR0+1}, v{t2}")
E(f"v_add_f32 v{t2}, s{sR0+2}, v{t2}")
E(f"v_add_f32 v{t2}, s{sR0+3}, v{t2}")
E(f"ds_write_b32 v{t+1}, v{t2} offset:{ST_OFF+32}")
for r in range(8):
    E(f"v_cvt_pk_bf16_f32 v{vS+r}, v{vS+r}, v{vS+r}")
E("s_waitcnt lgkmcnt(0)")
E(f"s_lshl_b32 s{sOFF}, s{sW}, 8")
VM(f"buffer_load_dwordx4 {vr(vWD)}, v{vWOo}, {sr(sWD)}, s{sOFF} offen", "D")
E(f"s_add_u32 s{sOFF}, s{sOFF}, 5120")
VM(f"buffer_load_dwordx4 {vr(vWD+4)}, v{vWOo}, {sr(sWD)}, s{sOFF} offen", "D")
vPA = vS + 8
vBP = vS + 20
for k in range(8):
    expand(vS + k, vBP)
    WAIT(f"V{k}")
    E("s_nop 0")
    b = vWQ + 12 * k
    c = (lambda a: "0") if k == 0 else (lambda a: vr(a))
    E(f"v_mfma_f32_16x16x32_bf16 {vr(vPA)}, {vr(b)}, {vr(vBP)}, {c(vPA)}")
    E(f"v_mfma_f32_16x16x32_bf16 {vr(vPA+4)}, {vr(b+4)}, {vr(vBP)}, {c(vPA+4)}")
    E(f"v_mfma_f32_16x16x32_bf16 {vr(vPA+8)}, {vr(b+8)}, {vr(vBP)}, {c(vPA+8)}")
stamp()
dump3(vPA, vS)
E("s_waitcnt lgkmcnt(0)")
E("s_barrier")
stamp()
vT = vWQ
E(f"v_lshlrev_b32 v{vT}, 2, v0")
E(f"v_mov_b32 v{vT+1}, 0")
E(f"ds_read_b128 {vr(vT+4)}, v{vT+1} offset:{ST_OFF}")
E(f"ds_read_b128 {vr(vT+8)}, v{vT+1} offset:{ST_OFF+16}")
E(f"ds_read_b128 {vr(vT+12)}, v{vT+1} offset:{ST_OFF+32}")
E(f"ds_read_b128 {vr(vT+16)}, v{vT+1} offset:{ST_OFF+48}")
E("v_cmp_gt_u32 vcc, 192, v0")
E(f"s_and_saveexec_b64 s[{sE}:{sE+1}], vcc")
E("s_cbranch_execz K1_OSUM_SKIP")
for s in range(16):
    E(f"ds_read_b32 v{vT+20+s}, v{vT} offset:{P_OFF + s*P_STR}")
L("K1_OSUM_SKIP:")
E(f"s_mov_b64 exec, s[{sE}:{sE+1}]")
E("s_waitcnt lgkmcnt(0)")
mm = vT + 2
E(f"v_max3_f32 v{mm}, v{vT+4}, v{vT+5}, v{vT+6}")
E(f"v_max3_f32 v{mm}, v{mm}, v{vT+7}, v{vT+8}")
E(f"v_max3_f32 v{mm}, v{mm}, v{vT+9}, v{vT+10}")
E(f"v_max_f32 v{mm}, v{mm}, v{vT+11}")
for w in range(8):
    E(f"v_sub_f32 v{vT+4+w}, v{vT+4+w}, v{mm}")
for w in range(8):
    E(f"v_mul_f32 v{vT+4+w}, s{sSC}, v{vT+4+w}")
for w in range(8):
    E(f"v_exp_f32 v{vT+4+w}, v{vT+4+w}")
E("s_nop 0")
ll = vT + 3
E(f"v_mul_f32 v{ll}, v{vT+4}, v{vT+12}")
for w in range(1, 8):
    E(f"v_fmac_f32 v{ll}, v{vT+4+w}, v{vT+12+w}")
for w in range(8):
    E(f"v_add_f32 v{vT+20+2*w}, v{vT+20+2*w}, v{vT+21+2*w}")
E(f"v_mul_f32 v{vT+36}, v{vT+4}, v{vT+20}")
for w in range(1, 8):
    E(f"v_fmac_f32 v{vT+36}, v{vT+4+w}, v{vT+20+2*w}")
E(f"v_cvt_pk_bf16_f32 v{vT+36}, v{vT+36}, v{vT+36}")
E(f"v_lshlrev_b32 v{vT+37}, 1, v0")
E("v_cmp_gt_u32 vcc, 192, v0")
E(f"s_and_saveexec_b64 s[{sE}:{sE+1}], vcc")
E(f"ds_write_b16 v{vT+37}, v{vT+36} offset:{OBF_OFF}")
E(f"s_mov_b64 exec, s[{sE}:{sE+1}]")
E(f"s_lshl_b32 s{sROW}, s{sH}, 3")
E(f"s_add_u32 s{sROW}, s{sROW}, s{sC}")
E(f"s_lshl_b32 s{sT}, s{sROW}, 3")
E(f"s_add_u32 s{sT}, s{sT}, {WS_ML}")
E(f"v_mov_b32 v{vT+37}, 0")
E("v_cmp_eq_u32 vcc, 0, v0")
E(f"s_and_saveexec_b64 s[{sE}:{sE+1}], vcc")
E(f"buffer_store_dwordx2 v[{mm}:{mm+1}], v{vT+37}, {sr(sWS)}, s{sT} offen sc1")
E(f"s_mov_b64 exec, s[{sE}:{sE+1}]")
E("s_waitcnt lgkmcnt(0)")
E("s_barrier")
stamp()
vB = vWQ + 40
vA2 = vWQ + 56
assert vA2 + 40 <= vQ
E(f"v_lshrrev_b32 v{vT}, 3, v{vJ}")
E(f"v_lshl_add_u32 v{vT}, v{vT}, 2, v{vG}")
E(f"v_lshlrev_b32 v{vT}, 1, v{vT}")
E(f"s_mul_i32 s{sT}, s{sW}, 48")
E(f"v_add_u32 v{vT+1}, s{sT}, v{vT}")
for G in range(3):
    E(f"ds_read_u16 v{vT+2+G}, v{vT+1} offset:{OBF_OFF + 16*G}")
E(f"ds_read_u16 v{vT+5}, v{vT} offset:{HBF_OFF}")
E("s_waitcnt lgkmcnt(0)")
for G in range(4):
    E(f"v_lshl_or_b32 v{vT+2+G}, v{vT+2+G}, 16, v{vT+2+G}")
for G in range(4):
    expand(vT + 2 + G, vB + 4 * G)
vWDA = vWQ + 8
for G in range(3):
    for st in range(2):
        WAIT(f"O{G}{st}")
        for c5 in range(5):
            a = vA2 + (st * 5 + c5) * 4
            c = "0" if G == 0 else vr(a)
            E(f"v_mfma_f32_16x16x32_bf16 {vr(a)}, {vr(wo_reg(G,st,c5))}, {vr(vB+4*G)}, {c}")
E("s_waitcnt vmcnt(0)")
E(f"v_mfma_f32_16x16x32_bf16 {vr(vWDA)}, {vr(vWD)}, {vr(vB+12)}, 0")
E(f"v_mfma_f32_16x16x32_bf16 {vr(vWDA+4)}, {vr(vWD+4)}, {vr(vB+12)}, 0")
stamp()
a1 = vT
E(f"v_lshrrev_b32 v{vT+1}, 3, v{vJ}")
E(f"s_lshl_b32 s{sT}, s{sW}, 1")
E(f"v_add_u32 v{vT+2}, s{sT}, v{vT+1}")
E(f"v_mul_u32_u24 v{a1}, {Y_STR}, v{vT+2}")
E(f"v_and_b32 v{vT+2}, 7, v{vJ}")
E(f"v_lshlrev_b32 v{vT+2}, 2, v{vT+2}")
E(f"v_lshl_add_u32 v{vT+2}, v{vG}, 7, v{vT+2}")
E(f"v_add_u32 v{a1}, v{a1}, v{vT+2}")
E(f"v_mul_u32_u24 v{vT+3}, {Y_STR}, v{vT+1}")
E(f"v_add_u32 v{vT+3}, v{vT+3}, v{vT+2}")
E(f"s_lshl_b32 s{sT}, s{sW}, 9")
E(f"v_add_u32 v{vT+3}, s{sT}, v{vT+3}")
E("s_nop 7")
for c5 in range(5):
    for r in range(4):
        a = vA2 + c5 * 4 + r
        E(f"v_cndmask_b32 v{a}, v{a}, v{a+20}, s[{sHF}:{sHF+1}]")
for c5 in range(5):
    for r in range(4):
        E(f"ds_write_b32 v{a1}, v{vA2 + c5*4 + r} offset:{Y_OFF + c5*512 + r*32}")
for r in range(4):
    E(f"v_cndmask_b32 v{vWDA+r}, v{vWDA+r}, v{vWDA+4+r}, s[{sHF}:{sHF+1}]")
E(f"s_cmp_ge_u32 s{sW}, 5")
E("s_cbranch_scc1 K1_NOBD")
for r in range(4):
    E(f"ds_write_b32 v{vT+3}, v{vWDA+r} offset:{BP_OFF + r*32}")
L("K1_NOBD:")
E("s_waitcnt lgkmcnt(0)")
E("s_barrier")
E(f"v_lshlrev_b32 v{vT}, 3, v0")
E("v_cmp_gt_u32 vcc, 320, v0")
E(f"s_and_saveexec_b64 s[{sE}:{sE+1}], vcc")
E("s_cbranch_execz K1_FIN_DONE")
vFs = vT + 4
for s in range(16):
    E(f"ds_read_b64 v[{vFs+2*s}:{vFs+2*s+1}], v{vT} offset:{Y_OFF + s*Y_STR}")
E(f"ds_read_b64 v[{vFs+32}:{vFs+33}], v{vT} offset:{BP_OFF}")
E(f"ds_read_b64 v[{vFs+34}:{vFs+35}], v{vT} offset:{BP_OFF + Y_STR}")
E("s_waitcnt lgkmcnt(0)")
for st in (8, 4, 2, 1):
    for s in range(st):
        for q in range(2):
            E(f"v_add_f32 v{vFs+2*s+q}, v{vFs+2*s+q}, v{vFs+2*(s+st)+q}")
E(f"v_add_f32 v{vFs+32}, v{vFs+32}, v{vFs+34}")
E(f"v_add_f32 v{vFs+33}, v{vFs+33}, v{vFs+35}")
E(f"s_mul_i32 s{sT}, s{sROW}, 2560")
E(f"buffer_store_dwordx2 v[{vFs}:{vFs+1}], v{vT}, {sr(sWS)}, s{sT} offen sc1")
E(f"s_cmp_ge_u32 s{sIDX}, 24")
E("s_cbranch_scc1 K1_FIN_DONE")
E(f"s_mul_i32 s{sT}, s{sMLPI}, 2560")
E(f"s_add_u32 s{sT}, s{sT}, {WS_B}")
E(f"buffer_store_dwordx2 v[{vFs+32}:{vFs+33}], v{vT}, {sr(sWS)}, s{sT} offen sc1")
L("K1_FIN_DONE:")
E(f"s_mov_b64 exec, s[{sE}:{sE+1}]")
E(f"v_lshlrev_b32 v{vT+1}, 2, v0")
E(f"s_mov_b32 s{sWG}, s26")
E(f"s_and_b32 s{sWG+1}, s27, 0xffff")
E(f"s_mov_b32 s{sWG+2}, 1280")
E(f"s_mov_b32 s{sWG+3}, 0x00020000")
E(f"s_waitcnt vmcnt(0)")
E(f"s_barrier")
stamp()
E(f"s_cmp_lg_u32 s{sW}, 0")
E("s_cbranch_scc1 K1_NOSIG")
E(f"s_and_b32 s{sT}, s2, 15")
E(f"s_lshl_b32 s{sT}, s{sT}, 4")
E(f"v_mov_b32 v{vT+2}, s{sT}")
E(f"v_mov_b32 v{vT+3}, 1")
E("s_mov_b64 exec, 1")
E(f"global_atomic_add v{vT+2}, v{vT+3}, s[30:31] sc1")
E("s_mov_b64 exec, -1")
L("K1_NOSIG:")
E("s_cmp_ge_u32 s2, 160")
E("s_cbranch_scc1 K1_STAMPS")
E(f"buffer_load_dword v26, v{vT+1}, {sr(sX)}, 0 offen")
E(f"buffer_load_dword v27, v{vT+1}, {sr(sWG)}, 0 offen")
E("v_mul_u32_u24 v2, 2560, v0")
E(f"v_add_u32 v3, {WS_B - 256*2560}, v2")
E("v_cmp_gt_u32 vcc, 256, v0")
E("s_nop 1")
E("v_cndmask_b32 v2, v3, v2, vcc")
E("s_lshl_b32 s4, s2, 4")
E(f"s_cmp_lg_u32 s{sW}, 0")
E("s_cbranch_scc1 K1_POLLED")
E("v_and_b32 v3, 15, v0")
E("v_lshlrev_b32 v3, 4, v3")
L("K1_POLL:")
E("global_load_dword v4, v3, s[30:31] sc1")
E("s_waitcnt vmcnt(0)")
E("v_cmp_ne_u32 vcc, 16, v4")
E("s_cbranch_vccz K1_POLLED")
E("s_sleep 1")
E("s_branch K1_POLL")
L("K1_POLLED:")
E("s_barrier")
stamp()
E("v_cmp_gt_u32 vcc, 448, v0")
E("v_lshrrev_b32 v3, 3, v0")
E("v_lshlrev_b32 v3, 6, v3")
E(f"s_mov_b32 s5, {WS_ML}")
E(f"buffer_load_dwordx4 v[4:7], v2, {sr(sWS)}, s4 offen sc1")
for q in range(4):
    E(f"buffer_load_dwordx4 v[{8+4*q}:{11+4*q}], v3, {sr(sWS)}, s5 offen offset:{16*q} sc1")
E("v_lshlrev_b32 v3, 3, v0")
E(f"buffer_load_dwordx2 v[24:25], v3, {sr(sWS)}, s5 offen sc1")
E("s_waitcnt vmcnt(0)")
E("v_lshlrev_b32 v28, 16, v26")
E("v_and_b32 v26, 0xffff0000, v26")
E("v_lshlrev_b32 v29, 16, v27")
E("v_and_b32 v27, 0xffff0000, v27")
E("v_mul_f32 v28, v28, v29")
E("v_fmac_f32 v28, v26, v27")
E("v_max3_f32 v30, v8, v10, v12")
E("v_max3_f32 v30, v30, v14, v16")
E("v_max3_f32 v30, v30, v18, v20")
E("v_max_f32 v30, v30, v22")
for c in range(8):
    E(f"v_sub_f32 v{8+2*c}, v{8+2*c}, v30")
for c in range(8):
    E(f"v_mul_f32 v{8+2*c}, s{sSC}, v{8+2*c}")
for c in range(8):
    E(f"v_exp_f32 v{8+2*c}, v{8+2*c}")
E("v_sub_f32 v24, v24, v30")
E(f"v_mul_f32 v24, s{sSC}, v24")
E("v_exp_f32 v24, v24")
E("v_mul_f32 v31, v8, v9")
for c in range(1, 8):
    E(f"v_fmac_f32 v31, v{8+2*c}, v{9+2*c}")
E("v_rcp_f32 v31, v31")
E("s_nop 0")
E("v_mul_f32 v24, v24, v31")
E("v_cmp_gt_u32 vcc, 256, v0")
E("s_nop 1")
E("v_cndmask_b32 v24, 1.0, v24, vcc")
E("v_cmp_gt_u32 vcc, 448, v0")
for q in range(4):
    E(f"v_mul_f32 v{4+q}, v{4+q}, v24")
for q in range(4):
    E(f"v_cndmask_b32 v{4+q}, 0, v{4+q}, vcc")
dpp_reduce([4, 5, 6, 7, 28])
E(f"s_lshl_b32 s6, s{sW}, 5")
E("v_mov_b32 v2, s6")
E("s_mov_b32 exec_lo, 0")
E("s_mov_b32 exec_hi, 0x80000000")
E(f"ds_write_b128 v2, v[4:7] offset:{FR_OFF}")
E(f"ds_write_b32 v2, v28 offset:{FR_OFF+16}")
E("s_mov_b64 exec, -1")
E("s_waitcnt lgkmcnt(0)")
E("s_barrier")
E(f"s_cmp_lg_u32 s{sW}, 0")
E("s_cbranch_scc1 K1_STAMPS")
E("v_lshlrev_b32 v2, 2, v0")
for w in range(7):
    E(f"ds_read_b32 v{8+w}, v2 offset:{FR_OFF+32*w}")
E("v_mov_b32 v3, 0")
for w in range(5):
    E(f"ds_read_b32 v{16+w}, v3 offset:{FR_OFF+32*w+16}")
E(f"s_mov_b32 s{sWG}, s28")
E(f"s_and_b32 s{sWG+1}, s29, 0xffff")
E(f"s_mov_b32 s{sWG+2}, 1280")
E(f"s_mov_b32 s{sWG+3}, 0x00020000")
E("s_waitcnt lgkmcnt(0)")
E("v_add_f32 v8, v8, v9")
E("v_add_f32 v10, v10, v11")
E("v_add_f32 v8, v8, v10")
E("v_add_f32 v12, v12, v13")
E("v_add_f32 v12, v12, v14")
for w in range(1, 5):
    E(f"v_add_f32 v16, v16, v{16+w}")
E("v_mul_f32 v16, 0xbfb8aa3b, v16")
E("v_exp_f32 v16, v16")
E("s_nop 0")
E("v_add_f32 v16, 1.0, v16")
E("v_rcp_f32 v16, v16")
E("s_nop 0")
E("v_sub_f32 v17, 1.0, v16")
E("v_mul_f32 v8, v8, v16")
E("v_fmac_f32 v8, v12, v17")
E("v_cvt_pk_bf16_f32 v8, v8, v8")
E("v_lshlrev_b32 v2, 1, v0")
E("s_lshl_b32 s4, s2, 3")
E("v_cmp_gt_u32 vcc, 4, v0")
E("s_and_saveexec_b64 s[6:7], vcc")
E(f"buffer_store_short v8, v2, {sr(sWG)}, s4 offen")
E("s_mov_b64 exec, -1")
L("K1_STAMPS:")
if DBG:
    E("s_mov_b64 exec, -1")
    E("s_waitcnt vmcnt(0) lgkmcnt(0)")
    E(f"s_cmp_lg_u32 s{sW}, 0")
    E("s_cbranch_scc1 K1_END")
    E("s_cmp_lg_u32 s93, 0")
    E("s_cbranch_scc1 K1_END")
    E("s_memrealtime s[2:3]")
    E("s_memtime s[6:7]")
    E("s_waitcnt lgkmcnt(0)")
    E("s_sub_u32 s6, s6, s95")
    E("s_sub_u32 s2, s2, s94")
    E("v_mov_b32 v10, 0")
    E("v_writelane_b32 v10, s6, 1")
    E("v_writelane_b32 v10, s2, 2")
    slots = [3, 5, 6, 7, 9, 10, 11, 13, 14, 15]
    sel = [1, 2, 3, 5, 6, 7, 8, 10, 11, 12]
    for sl, si in zip(slots, sel):
        r = stamp_regs[si]
        E(f"s_sub_u32 s6, s{r}, s94")
        E(f"v_writelane_b32 v10, s6, {sl}")
    E("v_lshlrev_b32 v11, 2, v1")
    E("v_and_b32 v12, 3, v1")
    E("v_cmp_ne_u32 vcc, 0, v12")
    E("v_cmp_gt_u32 s[86:87], 16, v1")
    E("s_and_b64 vcc, vcc, s[86:87]")
    E("s_and_saveexec_b64 s[86:87], vcc")
    E("global_store_dword v11, v10, s[30:31]")
elif ST:
    E("s_mov_b64 exec, -1")
    E("s_waitcnt vmcnt(0) lgkmcnt(0)")
    E(f"s_cmp_lg_u32 s{sW}, {STW}")
    E("s_cbranch_scc1 K1_END")
    E("s_memrealtime s[2:3]")
    E("s_waitcnt lgkmcnt(0)")
    regs = stamp_regs[:stamp_n[0]]
    for i, r in enumerate(regs):
        E(f"v_writelane_b32 v10, s{r}, {2*i}")
        E(f"v_writelane_b32 v10, s{r+1}, {2*i+1}")
    n = len(regs)
    E(f"v_writelane_b32 v10, s2, {2*n}")
    E(f"v_writelane_b32 v10, s3, {2*n+1}")
    E("v_lshlrev_b32 v11, 2, v1")
    E(f"s_lshl_b32 s39, s93, 7")
    E("s_add_u32 s39, s39, 0x300000")
    E(f"v_cmp_gt_u32 vcc, {2*n+2}, v1")
    E("s_and_saveexec_b64 s[86:87], vcc")
    E(f"buffer_store_dword v10, v11, {sr(sWS)}, s39 offen")
L("K1_END:")
E("s_endpgm")

L('.section .rodata,"a"')
L(".p2align 6")
L(f".amdhsa_kernel {K1}")
L(f"  .amdhsa_next_free_vgpr 256")
L(f"  .amdhsa_next_free_sgpr 102")
L(f"  .amdhsa_accum_offset 256")
L("  .amdhsa_group_segment_fixed_size 0")
L("  .amdhsa_kernarg_size 104")
L("  .amdhsa_user_sgpr_count 2")
L("  .amdhsa_user_sgpr_kernarg_segment_ptr 1")
L("  .amdhsa_system_sgpr_workgroup_id_x 1")
L(".end_amdhsa_kernel")
txt = '\n'.join(out) + '\n'
if ST:
    txt = txt.replace("s_cbranch_scc1 K1_END\n", "s_cbranch_scc1 K1_END\n    s_mov_b32 s93, s2\n", 1)
open(sys.argv[1], 'w').write(txt)
```

```python
import sys, struct

NAME = "gated_mix__sliding_block_cached__glu_gated_reglu__decode"
out = []
def E(s): out.append("    " + s)
def L(s): out.append(s)

HEADER = open('cdna_kernels/' + NAME + '.s.ref').read().split('\n')
hdr = []
for ln in HEADER:
    if ln.startswith('; @launch') or ln.startswith('.amdgcn_target'):
        break
    hdr.append(ln)

opts = (sys.argv[2] if len(sys.argv) > 2 else "").split(',')
def opt(name, default=None):
    for o in opts:
        if o == name: return True
        if o.startswith(name + '='): return o.split('=')[1]
    return default
NT = " nt" if not opt('nont') else ""
WNT = " nt" if opt('wnt') else ""
ST = opt('st') or opt('dbg')
DBG = opt('dbg')
STW = int(opt('stw', 0))
NK0 = int(opt('nk0', 8))
NV1 = int(opt('nv1', 15))

P0_OFF = 0;      P0_STR = 1312
P2_OFF = 16 * P0_STR;  P2_STR = 800
Y_OFF  = P2_OFF + 16 * P2_STR; Y_STR = 544
QBF_OFF = Y_OFF + 16 * Y_STR
GU_OFF  = QBF_OFF + 384
OBF_OFF = GU_OFF + 384
ST_OFF  = OBF_OFF + 512
Z_OFF   = ST_OFF + 64
FR_OFF  = Z_OFF + 64
LDS_SZ  = FR_OFF + 8 * 320
assert LDS_SZ <= 65536

WS_G0 = 0x1000
WS_G2 = 0x100000
WS_G3 = 0x200000

SCALE_LOG2E = (192.0 ** -0.5) * 1.4426950408889634
def f32bits(x): return struct.unpack('<I', struct.pack('<f', x))[0]

K1 = NAME + "_kernel"
L('\n'.join(hdr))
L(f"; @launch grid=(256,1,1) block=(512,1,1) lds=65536")
L('.amdgcn_target "amdgcn-amd-amdhsa--gfx950"')
L(".text")
L(f".globl {K1}")
L(".p2align 8")
L(f".type {K1},@function")
L(f"{K1}:")

vL, vG, vJ = 1, 2, 3
vM = [4, 5, 6, 7]
vA = 8
vKB = 40
vVB = 136
vQ = 232

sW, sXCD, sIDX, sH, sC, sT = 34, 35, 36, 37, 38, 39
sK, sV, sWQ, sWO, sWG, sWU, sWD, sX, sWS = 40, 44, 48, 52, 56, 60, 64, 68, 72
sHF = 78
sV2 = 80
sOFF = 82
sSC = 83
sROW = 85
sE = 86
sR0 = 88
sTAG = 4
sBAD = 6
sGW = 76
stamp_regs = [94] + [10, 12, 14, 16, 18, 20, 22, 24, 96, 98, 100, 32, 8]
stamp_n = [0]
def stamp():
    if not ST: return
    r = stamp_regs[stamp_n[0]]; stamp_n[0] += 1
    E(f"s_memrealtime s[{r}:{r+1}]")
def vr(a, n=4): return f"v[{a}:{a+n-1}]"
def sr(a, n=4): return f"s[{a}:{a+n-1}]"

vmq = []
def VM(s, tag):
    E(s); vmq.append(tag)
def WAIT(tag):
    idx = max(i for i, t in enumerate(vmq) if t == tag)
    n = len(vmq) - 1 - idx
    assert n <= 63, n
    E(f"s_waitcnt vmcnt({n})")

def srd(dst, plo, off_s, nrec):
    E(f"s_add_u32 s{dst}, s{plo}, s{off_s}")
    E(f"s_addc_u32 s{dst+1}, s{plo+1}, 0")
    E(f"s_and_b32 s{dst+1}, s{dst+1}, 0xffff")
    E(f"s_mov_b32 s{dst+2}, {nrec}")
    E(f"s_mov_b32 s{dst+3}, 0x00020000")

def dpp_reduce(regs):
    for ctl in ["row_shr:1", "row_shr:2", "row_shr:4", "row_shr:8"]:
        for r in regs:
            E(f"v_add_f32_dpp v{r}, v{r}, v{r} {ctl} row_mask:0xf bank_mask:0xf bound_ctrl:0")
        if len(regs) < 3: E("s_nop 1")
    for r in regs:
        E(f"v_add_f32_dpp v{r}, v{r}, v{r} row_bcast:15 row_mask:0xa bank_mask:0xf")
    if len(regs) < 3: E("s_nop 1")
    for r in regs:
        E(f"v_add_f32_dpp v{r}, v{r}, v{r} row_bcast:31 row_mask:0xc bank_mask:0xf")

def expand(dup, dst):
    for w in range(4):
        E(f"v_and_b32 v{dst+w}, v{dup}, v{vM[w]}")

def mfma(d, a, b, c):
    E(f"v_mfma_f32_16x16x32_bf16 {vr(d)}, {vr(a)}, {vr(b)}, {'0' if c is None else vr(c)}")

E("s_cmp_ge_u32 s2, 256")
E("s_cbranch_scc1 K1_END")
if ST: E("s_mov_b32 s93, s2")
stamp()
if DBG: E("s_memtime s[6:7]")
E("s_load_dwordx16 s[8:23], s[0:1], 0")
E("s_load_dwordx8 s[24:31], s[0:1], 64")
E("s_load_dwordx2 s[32:33], s[0:1], 96")
E(f"v_and_b32 v{vL}, 63, v0")
E(f"v_bfe_u32 v{vG}, v0, 4, 2")
E(f"v_and_b32 v{vJ}, 15, v0")
E(f"v_lshrrev_b32 v{vA}, 6, v0")
E("s_nop 0")
E(f"v_readfirstlane_b32 s{sW}, v{vA}")
E(f"s_and_b32 s{sXCD}, s2, 7")
E(f"s_lshr_b32 s{sIDX}, s2, 3")
E(f"s_and_b32 s{sH}, s{sIDX}, 3")
E(f"s_lshl_b32 s{sT}, s{sXCD}, 2")
E(f"s_add_u32 s{sH}, s{sH}, s{sT}")
E(f"s_lshr_b32 s{sC}, s{sIDX}, 2")
E(f"s_lshl_b32 s{sROW}, s{sH}, 3")
E(f"s_add_u32 s{sROW}, s{sROW}, s{sC}")
E("s_mov_b32 s3, 0x40000")
E(f"s_mov_b32 s{sHF}, 0xFF00FF00")
E(f"s_mov_b32 s{sHF+1}, 0xFF00FF00")
E(f"s_mov_b32 s{sV2}, 0x00FF00FF")
E(f"s_mov_b32 s{sV2+1}, 0xFF00FF00")
E(f"s_mov_b32 s{sSC}, 0x{f32bits(SCALE_LOG2E):08x}")
t0, t1, t2, t3 = vA, vA+1, vA+2, vA+3
E(f"v_and_b32 v{t0}, 1, v{vJ}")
E(f"v_lshlrev_b32 v{t0}, 4, v{t0}")
E(f"v_mov_b32 v{t1}, 0xffff")
E(f"v_lshlrev_b32 v{t1}, v{t0}, v{t1}")
E(f"v_bfe_u32 v{t2}, v{vJ}, 1, 2")
for w in range(4):
    E(f"v_cmp_eq_u32 vcc, {w}, v{t2}")
    E("s_nop 1")
    E(f"v_cndmask_b32 v{vM[w]}, 0, v{t1}, vcc")
vHF, vGH, vJ7 = vA, vA+1, vA+2
E(f"v_lshrrev_b32 v{vHF}, 3, v{vJ}")
E(f"v_lshl_add_u32 v{vGH}, v{vHF}, 2, v{vG}")
E(f"v_and_b32 v{vJ7}, 7, v{vJ}")
oWA, oWA2, oWB, oG, oX, oKa, oKb, oGX = 32, 33, 34, 35, 36, 38, 39, 37
E(f"v_mul_u32_u24 v{oWA}, 12288, v{vG}")
E(f"v_lshl_add_u32 v{oWA}, v{vJ}, 4, v{oWA}")
E(f"v_add_u32 v{oWA2}, 49152, v{oWA}")
E(f"v_mul_u32_u24 v{oWB}, 12288, v{vGH}")
E(f"v_lshl_add_u32 v{oWB}, v{vJ7}, 4, v{oWB}")
E(f"v_add_u32 v{oWB}, 256, v{oWB}")
E(f"v_mul_u32_u24 v{oG}, 3072, v{vGH}")
E(f"v_lshl_add_u32 v{oG}, v{vJ7}, 4, v{oG}")
E(f"v_mov_b32 v{t3}, 0x40000000")
E(f"v_cmp_gt_u32 vcc, 6, v{vJ7}")
E("s_nop 1")
E(f"v_cndmask_b32 v{oG}, v{t3}, v{oG}, vcc")
E(f"v_lshlrev_b32 v{oX}, 1, v{vGH}")
E(f"v_lshlrev_b32 v{oGX}, 2, v0")
E(f"v_and_b32 v{oKa}, 3, v{vJ}")
E(f"v_lshlrev_b32 v{oKa}, 3, v{oKa}")
E(f"v_bfe_u32 v{t3}, v{vJ}, 2, 1")
E(f"v_add_u32 v{oKa}, v{oKa}, v{t3}")
E(f"v_mul_u32_u24 v{oKa}, 384, v{oKa}")
E(f"v_lshl_add_u32 v{oKa}, v{vG}, 4, v{oKa}")
E(f"v_lshlrev_b32 v{t3}, 6, v{vHF}")
E(f"v_sub_u32 v{oKb}, v{oKa}, v{t3}")
E(f"v_add_u32 v{oKb}, 64, v{oKb}")
E(f"v_add_u32 v{oKa}, v{oKa}, v{t3}")
E("s_waitcnt lgkmcnt(0)")
if DBG: E("s_mov_b32 s95, s6")
E(f"s_load_dwordx2 s[{sTAG}:{sTAG+1}], s[32:33], 0")
E(f"s_mul_i32 s{sT}, s{sH}, 12582912")
E(f"s_mul_i32 s{sOFF}, s{sC}, 196608")
E(f"s_add_u32 s{sT}, s{sT}, s{sOFF}")
E(f"s_mul_i32 s{sOFF}, s{sW}, 24576")
E(f"s_add_u32 s{sT}, s{sT}, s{sOFF}")
E(f"s_add_u32 s{sT}, s{sT}, 11010048")
srd(sK, 10, sT, 24576)
srd(sV, 12, sT, 24576)
E(f"s_mul_i32 s{sR0}, s{sC}, 80")
E(f"s_lshl_b32 s{sOFF}, s{sW}, 3")
E(f"s_add_u32 s{sR0}, s{sR0}, s{sOFF}")
E(f"s_mul_i32 s{sT}, s{sR0}, 12288")
E(f"s_mul_i32 s{sOFF}, s{sH}, 384")
E(f"s_add_u32 s{sT}, s{sT}, s{sOFF}")
srd(sWQ, 14, sT, 72 * 12288)
E(f"s_mul_i32 s{sT}, s{sR0}, 3072")
E(f"s_mul_i32 s{sOFF}, s{sH}, 96")
E(f"s_add_u32 s{sT}, s{sT}, s{sOFF}")
srd(sWG, 20, sT, 72 * 3072)
srd(sWU, 22, sT, 72 * 3072)
E(f"s_lshl_b32 s{sR0+1}, s{sR0}, 1")
E(f"s_mov_b32 s{sT}, 0")
srd(sX, 8, sT, 1280)
srd(sWS, 32, sT, 0x400000)
E(f"s_cmp_lt_u32 s{sW}, 2")
E(f"s_cselect_b32 s{sR0+2}, 786432, 0x40000000")
E(f"s_cselect_b32 s{sR0+3}, 196608, 0x40000000")
GOFF = [0, 2, 6, 4]
def kload(n):
    Q, gi, s = n // 12, (n // 3) % 4, n % 3
    b = vKB + n * 4
    va = oKa if gi in (0, 2) else oKb
    so = f"s{sOFF}" if Q else "0"
    VM(f"buffer_load_dwordx4 {vr(b)}, v{va}, {sr(sK)}, {so} offen offset:{GOFF[gi]*384+s*128}{NT}", f"K{Q}{gi}")
vX0, vX1, vGX, vGW = vA+4, vA+5, vA+6, vA+7
VM(f"buffer_load_ushort v{vX0}, v{oX}, {sr(sX)}, s{sR0+1} offen", "X")
VM(f"buffer_load_ushort v{vX1}, v{oX}, {sr(sX)}, s{sR0+1} offen offset:128", "X")
def p0reg(k, q): return vVB + 20 * k + 4 * q
VM(f"buffer_load_dwordx4 {vr(p0reg(0,0))}, v{oWA}, {sr(sWQ)}, 0 offen{WNT}", "P0")
VM(f"buffer_load_dwordx4 {vr(p0reg(0,1))}, v{oWA2}, {sr(sWQ)}, 0 offen{WNT}", "P0")
VM(f"buffer_load_dwordx4 {vr(p0reg(0,2))}, v{oWB}, {sr(sWQ)}, 0 offen{WNT}", "P0")
VM(f"buffer_load_dwordx4 {vr(p0reg(0,3))}, v{oG}, {sr(sWG)}, 0 offen", "P0")
VM(f"buffer_load_dwordx4 {vr(p0reg(0,4))}, v{oG}, {sr(sWU)}, 0 offen", "P0")
for o_, s_ in ((oWA, sR0+2), (oWA2, sR0+2), (oWB, sR0+2), (oG, sR0+3)):
    E(f"v_add_u32 v{o_}, s{s_}, v{o_}")
VM(f"buffer_load_dwordx4 {vr(p0reg(1,0))}, v{oWA}, {sr(sWQ)}, 0 offen{WNT}", "P1")
VM(f"buffer_load_dwordx4 {vr(p0reg(1,1))}, v{oWA2}, {sr(sWQ)}, 0 offen{WNT}", "P1")
VM(f"buffer_load_dwordx4 {vr(p0reg(1,2))}, v{oWB}, {sr(sWQ)}, 0 offen{WNT}", "P1")
VM(f"buffer_load_dwordx4 {vr(p0reg(1,3))}, v{oG}, {sr(sWG)}, 0 offen", "P1")
VM(f"buffer_load_dwordx4 {vr(p0reg(1,4))}, v{oG}, {sr(sWU)}, 0 offen", "P1")
E(f"s_mov_b32 s{sWD}, s26")
E(f"s_and_b32 s{sWD+1}, s27, 0xffff")
E(f"s_mov_b32 s{sWD+2}, 1280")
E(f"s_mov_b32 s{sWD+3}, 0x00020000")
VM(f"buffer_load_dword v{vGX}, v{oGX}, {sr(sX)}, 0 offen", "G")
VM(f"buffer_load_dword v{vGW}, v{oGX}, {sr(sWD)}, 0 offen", "G")
E(f"s_mov_b32 s{sOFF}, 12288")
for n in range(NK0): kload(n)
stamp()
vAC = 16
vBX = vQ
WAIT("X")
E(f"v_lshl_or_b32 v{vX0}, v{vX0}, 16, v{vX0}")
E(f"v_lshl_or_b32 v{vX1}, v{vX1}, 16, v{vX1}")
expand(vX0, vBX)
expand(vX1, vBX + 4)
WAIT("P0")
for q in range(5):
    mfma(vAC + 4*q, p0reg(0, q), vBX, None)
WAIT("P1")
for q in range(5):
    mfma(vAC + 4*q, p0reg(1, q), vBX + 4, vAC + 4*q)
WAIT("G")
E(f"v_lshlrev_b32 v{vX0}, 16, v{vGX}")
E(f"v_and_b32 v{vGX}, 0xffff0000, v{vGX}")
E(f"v_lshlrev_b32 v{vX1}, 16, v{vGW}")
E(f"v_and_b32 v{vGW}, 0xffff0000, v{vGW}")
E(f"v_mul_f32 v{vX0}, v{vX0}, v{vX1}")
E(f"v_fmac_f32 v{vX0}, v{vGX}, v{vGW}")
E("s_nop 1")
dpp_reduce([vX0])
a1, a2, tt = vA, vA+1, vA+2
E(f"v_lshrrev_b32 v{tt}, 3, v{vJ}")
E(f"s_lshl_b32 s{sT}, s{sW}, 1")
E(f"v_add_u32 v{tt}, s{sT}, v{tt}")
E(f"v_mul_u32_u24 v{a1}, {P0_STR}, v{tt}")
E(f"v_and_b32 v{tt}, 7, v{vJ}")
E(f"v_lshl_add_u32 v{a1}, v{tt}, 2, v{a1}")
E(f"v_and_b32 v{tt}, 1, v{vG}")
E(f"v_lshl_add_u32 v{a2}, v{tt}, 7, v{a1}")
E(f"v_lshl_add_u32 v{a1}, v{vG}, 7, v{a1}")
E(f"s_lshl_b32 s{sT}, s{sW}, 2")
E(f"v_mov_b32 v{tt}, s{sT}")
E("s_mov_b32 exec_lo, 0")
E("s_mov_b32 exec_hi, 0x80000000")
E(f"ds_write_b32 v{tt}, v{vX0} offset:{Z_OFF}")
E("s_mov_b64 exec, -1")
E("s_nop 3")
for r in range(4):
    E(f"v_cndmask_b32 v{vAC+r}, v{vAC+r}, v{vAC+4+r}, s[{sHF}:{sHF+1}]")
for r in range(4):
    E(f"ds_write_b32 v{a1}, v{vAC+r} offset:{P0_OFF + r*32}")
E(f"s_mov_b64 exec, s[{sV2}:{sV2+1}]")
for q in range(3):
    for r in range(4):
        E(f"ds_write_b32 v{a2}, v{vAC+8+4*q+r} offset:{P0_OFF + 512 + 256*q + r*32}")
E("s_mov_b64 exec, -1")
E("s_waitcnt lgkmcnt(0)")
E("s_barrier")
stamp()
E(f"s_add_u32 s{sTAG}, s{sTAG}, 1")
E(f"s_addc_u32 s{sTAG+1}, s{sTAG+1}, 0")
E(f"s_cmp_ge_u32 s{sW}, 3")
E("s_cbranch_scc1 K1_PUB0_DONE")
E("v_cmp_gt_u32 vcc, 144, v0")
E(f"s_and_saveexec_b64 s[{sE}:{sE+1}], vcc")
E(f"v_lshlrev_b32 v{vA}, 3, v0")
E(f"v_add_u32 v{vA+1}, 64, v{vA}")
E("v_cmp_gt_u32 vcc, 120, v0")
E("s_nop 1")
E(f"v_cndmask_b32 v{vA}, v{vA+1}, v{vA}, vcc")
vR = vQ - 36
for s in range(16):
    E(f"ds_read_b64 v[{vR+2*s}:{vR+2*s+1}], v{vA} offset:{P0_OFF + s*P0_STR}")
E("s_waitcnt lgkmcnt(0)")
for st in (8, 4, 2, 1):
    for s in range(st):
        for q in range(2):
            E(f"v_add_f32 v{vR+2*s+q}, v{vR+2*s+q}, v{vR+2*(s+st)+q}")
E(f"v_mov_b32 v{vR+2}, s{sTAG}")
E(f"v_mov_b32 v{vR+3}, s{sTAG+1}")
E(f"v_lshlrev_b32 v{vA}, 4, v0")
E(f"s_mul_i32 s{sT}, s{sROW}, 2304")
E(f"s_add_u32 s{sT}, s{sT}, {WS_G0}")
E(f"buffer_store_dwordx4 {vr(vR)}, v{vA}, {sr(sWS)}, s{sT} offen sc1")
E(f"s_mov_b64 exec, s[{sE}:{sE+1}]")
E("s_nop 1")
L("K1_PUB0_DONE:")
for n in range(NK0, 24): kload(n)
vGa = vR
E(f"s_mul_i32 s{sT}, s{sW}, 288")
E(f"v_lshlrev_b32 v{vA}, 4, v{vL}")
E(f"v_add_u32 v{vA}, s{sT}, v{vA}")
E(f"s_mul_i32 s{sR0}, s{sH}, {8*2304}")
E(f"s_add_u32 s{sR0}, s{sR0}, {WS_G0}")
E("s_mov_b64 exec, 0x3ffff")
def gather_q():
    for p in range(8):
        E(f"s_add_u32 s{sT}, s{sR0}, {p*2304}")
        VM(f"buffer_load_dwordx4 {vr(vGa+4*p)}, v{vA}, {sr(sWS)}, s{sT} offen sc1", "GQ")
gather_q()
E("s_mov_b64 exec, -1")
oVA, oVB = 38, 39
E(f"v_mul_u32_u24 v{oVA}, 384, v{vG}")
E(f"v_lshl_add_u32 v{oVA}, v{vJ}, 4, v{oVA}")
E(f"v_lshrrev_b32 v{vA+1}, 3, v{vJ}")
E(f"v_lshl_add_u32 v{vA+1}, v{vA+1}, 2, v{vG}")
E(f"v_mul_u32_u24 v{oVB}, 384, v{vA+1}")
E(f"v_and_b32 v{vA+1}, 7, v{vJ}")
E(f"v_lshl_add_u32 v{oVB}, v{vA+1}, 4, v{oVB}")
E(f"v_add_u32 v{oVB}, 256, v{oVB}")
def vload(n):
    k, q = n // 3, n % 3
    b = vVB + 12 * k + 4 * q
    E(f"s_mov_b32 s{sOFF}, {k*3072}")
    if q < 2:
        VM(f"buffer_load_dwordx4 {vr(b)}, v{oVA}, {sr(sV)}, s{sOFF} offen offset:{q*1536}{NT}", f"V{k}")
    else:
        VM(f"buffer_load_dwordx4 {vr(b)}, v{oVB}, {sr(sV)}, s{sOFF} offen{NT}", f"V{k}")
for n in range(NV1): vload(n)
stamp()
WAIT("GQ")
E("s_mov_b64 exec, 0x3ffff")
L("K1_GQ_CHECK:")
E(f"s_mov_b64 s[{sBAD}:{sBAD+1}], 0")
for p in range(8):
    E(f"v_cmp_ne_u64 vcc, s[{sTAG}:{sTAG+1}], v[{vGa+4*p+2}:{vGa+4*p+3}]")
    E(f"s_or_b64 s[{sBAD}:{sBAD+1}], s[{sBAD}:{sBAD+1}], vcc")
E(f"s_cmp_eq_u64 s[{sBAD}:{sBAD+1}], 0")
E("s_cbranch_scc1 K1_GQ_OK")
E("s_sub_u32 s3, s3, 1")
E("s_cbranch_scc1 K1_GQ_OK")
E("s_sleep 2")
sv = list(vmq)
gather_q()
vmq[:] = sv
E("s_waitcnt vmcnt(0)")
E("s_branch K1_GQ_CHECK")
L("K1_GQ_OK:")
for p in range(1, 8):
    E(f"v_add_f32 v{vGa}, v{vGa}, v{vGa+4*p}")
    E(f"v_add_f32 v{vGa+1}, v{vGa+1}, v{vGa+4*p+1}")
E(f"s_mul_i32 s{sT}, s{sW}, 18")
E(f"v_add_u32 v{vA}, s{sT}, v{vL}")
E(f"v_cvt_pk_bf16_f32 v{vA+1}, v{vGa}, v{vGa+1}")
E(f"v_lshlrev_b32 v{vA+2}, 2, v{vA}")
E(f"v_lshlrev_b32 v{vA+3}, 3, v{vA}")
E(f"v_cmp_gt_u32 vcc, 96, v{vA}")
E(f"s_and_saveexec_b64 s[{sE}:{sE+1}], vcc")
E(f"ds_write_b32 v{vA+2}, v{vA+1} offset:{QBF_OFF}")
E(f"s_andn2_b64 exec, s[{sE}:{sE+1}], vcc")
E(f"ds_write_b64 v{vA+3}, v[{vGa}:{vGa+1}] offset:{GU_OFF - 96*8}")
E("s_mov_b64 exec, -1")
E("s_waitcnt lgkmcnt(0)")
E("s_barrier")
stamp()
E(f"v_lshrrev_b32 v{vA+1}, 3, v{vJ}")
E(f"v_lshlrev_b32 v{vA+1}, 6, v{vA+1}")
E(f"v_lshl_add_u32 v{vA}, v{vG}, 4, v{vA+1}")
for s in range(3):
    E(f"ds_read_b128 {vr(vQ+4*s)}, v{vA} offset:{QBF_OFF + 128*s}")
E(f"v_xor_b32 v{vA+2}, 40, v{vL}")
E(f"v_lshlrev_b32 v{vA+2}, 2, v{vA+2}")
E("s_waitcnt lgkmcnt(0)")
vS = 16
vD = 16
vF = vQ + 12
for Q in range(2):
    for gi in range(4):
        WAIT(f"K{Q}{gi}")
        for s in range(3):
            b = vKB + ((Q * 4 + gi) * 3 + s) * 4
            mfma(vD + 4*gi, b, vQ + 4*s, None if s == 0 else vD + 4*gi)
    E("s_nop 7")
    for r in range(4):
        a, b_, c_, d = vD + r, vD + 4 + r, vD + 8 + r, vD + 12 + r
        u1, u2 = vA + 4, vA + 5
        E(f"v_cndmask_b32 v{u1}, v{b_}, v{a}, s[{sV2}:{sV2+1}]")
        E(f"v_cndmask_b32 v{u2}, v{d}, v{c_}, s[{sV2}:{sV2+1}]")
        E(f"v_cndmask_b32 v{vF+4*Q+r}, v{u1}, v{u2}, s[{sHF}:{sHF+1}]")
        E(f"v_cndmask_b32 v{a}, v{u2}, v{u1}, s[{sHF}:{sHF+1}]")
    for r in range(4):
        E(f"ds_bpermute_b32 v{vD+4+r}, v{vA+2}, v{vD+r}")
    E("s_waitcnt lgkmcnt(0)")
    for r in range(4):
        E(f"v_add_f32 v{vF+4*Q+r}, v{vF+4*Q+r}, v{vD+4+r}")
for r in range(8):
    E(f"v_mov_b32 v{vS+r}, v{vF+r}")
stamp()
for n in range(NV1, 24): vload(n)
E(f"s_mul_i32 s{sT}, s{sH}, 245760")
E(f"s_mul_i32 s{sOFF}, s{sC}, 160")
E(f"s_add_u32 s{sT}, s{sT}, s{sOFF}")
srd(sWO, 16, sT, 245760 - 1120)
E(f"s_mul_i32 s{sT}, s{sH}, 61440")
E(f"s_add_u32 s{sT}, s{sT}, s{sOFF}")
srd(sWD, 24, sT, 61440 - 1120)
oWO = vA
E(f"v_mul_u32_u24 v{oWO}, 1280, v{vG}")
E(f"v_lshl_add_u32 v{oWO}, v{vJ}, 4, v{oWO}")
E(f"v_mov_b32 v{vA+1}, 0x40000000")
E(f"v_cmp_gt_u32 vcc, 10, v{vJ}")
E("s_nop 1")
E(f"v_cndmask_b32 v{oWO}, v{vA+1}, v{oWO}, vcc")
E(f"s_mul_i32 s{sOFF}, s{sW}, 10240")
for k in range(3):
    E(f"s_add_u32 s{sT}, s{sOFF}, {k*81920}")
    VM(f"buffer_load_dwordx4 {vr(vKB+8*k)}, v{oWO}, {sr(sWO)}, s{sT} offen", "WO")
    E(f"s_add_u32 s{sT}, s{sOFF}, {k*81920 + 5120}")
    VM(f"buffer_load_dwordx4 {vr(vKB+8*k+4)}, v{oWO}, {sr(sWO)}, s{sT} offen", "WO")
E(f"s_cmp_lt_u32 s{sW}, 6")
E(f"s_cselect_b32 s{sT}, 0, 0x40000000")
E(f"v_add_u32 v{vA+1}, s{sT}, v{oWO}")
E(f"v_or_b32 v{vA+1}, v{vA+1}, v{oWO}")
VM(f"buffer_load_dwordx4 {vr(vKB+24)}, v{vA+1}, {sr(sWD)}, s{sOFF} offen", "WO")
E(f"s_add_u32 s{sT}, s{sOFF}, 5120")
VM(f"buffer_load_dwordx4 {vr(vKB+28)}, v{vA+1}, {sr(sWD)}, s{sT} offen", "WO")
t = vA + 1
E(f"v_max3_f32 v{t}, v{vS}, v{vS+1}, v{vS+2}")
E(f"v_max3_f32 v{t}, v{t}, v{vS+3}, v{vS+4}")
E(f"v_max3_f32 v{t}, v{t}, v{vS+5}, v{vS+6}")
E(f"v_max_f32 v{t}, v{t}, v{vS+7}")
E("s_nop 1")
E(f"v_max_f32_dpp v{t}, v{t}, v{t} row_ror:8 row_mask:0xf bank_mask:0xf")
E("s_nop 1")
for q in range(4):
    E(f"v_readlane_b32 s{sR0+q}, v{t}, {16*q}")
E("s_nop 1")
E(f"v_mov_b32 v{t}, s{sR0}")
E(f"v_max_f32 v{t}, s{sR0+1}, v{t}")
E(f"v_max_f32 v{t}, s{sR0+2}, v{t}")
E(f"v_max_f32 v{t}, s{sR0+3}, v{t}")
E(f"s_lshl_b32 s{sT}, s{sW}, 2")
E(f"v_mov_b32 v{t+1}, s{sT}")
E(f"ds_write_b32 v{t+1}, v{t} offset:{ST_OFF}")
E(f"v_mul_f32 v{t}, s{sSC}, v{t}")
for r in range(8):
    E(f"v_fma_f32 v{vS+r}, v{vS+r}, s{sSC}, -v{t}")
for r in range(8):
    E(f"v_exp_f32 v{vS+r}, v{vS+r}")
E("s_nop 0")
t2 = vA + 3
E(f"v_add_f32 v{t2}, v{vS}, v{vS+1}")
for r in range(2, 8):
    E(f"v_add_f32 v{t2}, v{t2}, v{vS+r}")
E("s_nop 1")
E(f"v_add_f32_dpp v{t2}, v{t2}, v{t2} row_ror:8 row_mask:0xf bank_mask:0xf")
E("s_nop 1")
for q in range(4):
    E(f"v_readlane_b32 s{sR0+q}, v{t2}, {16*q}")
E("s_nop 1")
E(f"v_mov_b32 v{t2}, s{sR0}")
E(f"v_add_f32 v{t2}, s{sR0+1}, v{t2}")
E(f"v_add_f32 v{t2}, s{sR0+2}, v{t2}")
E(f"v_add_f32 v{t2}, s{sR0+3}, v{t2}")
E(f"ds_write_b32 v{t+1}, v{t2} offset:{ST_OFF+32}")
for r in range(8):
    E(f"v_cvt_pk_bf16_f32 v{vS+r}, v{vS+r}, v{vS+r}")
E("s_waitcnt lgkmcnt(0)")
stamp()
vPA = vS + 8
vBP = vA
for k in range(8):
    expand(vS + k, vBP)
    WAIT(f"V{k}")
    E("s_nop 0")
    b = vVB + 12 * k
    for q in range(3):
        mfma(vPA + 4*q, b + 4*q, vBP, None if k == 0 else vPA + 4*q)
stamp()
a1, a2, tt = vS, vS+1, vS+2
E(f"v_lshrrev_b32 v{tt}, 3, v{vJ}")
E(f"s_lshl_b32 s{sT}, s{sW}, 1")
E(f"v_add_u32 v{tt}, s{sT}, v{tt}")
E(f"v_mul_u32_u24 v{a1}, {P2_STR}, v{tt}")
E(f"v_and_b32 v{tt}, 7, v{vJ}")
E(f"v_lshl_add_u32 v{a1}, v{tt}, 2, v{a1}")
E(f"v_and_b32 v{tt}, 1, v{vG}")
E(f"v_lshl_add_u32 v{a2}, v{tt}, 7, v{a1}")
E(f"v_lshl_add_u32 v{a1}, v{vG}, 7, v{a1}")
E("s_nop 7")
for r in range(4):
    E(f"v_cndmask_b32 v{vPA+r}, v{vPA+r}, v{vPA+4+r}, s[{sHF}:{sHF+1}]")
for r in range(4):
    E(f"ds_write_b32 v{a1}, v{vPA+r} offset:{P2_OFF + r*32}")
E(f"s_mov_b64 exec, s[{sV2}:{sV2+1}]")
for r in range(4):
    E(f"ds_write_b32 v{a2}, v{vPA+8+r} offset:{P2_OFF + 512 + r*32}")
E("s_mov_b64 exec, -1")
E("s_waitcnt lgkmcnt(0)")
E("s_barrier")
stamp()
vT = vVB
E(f"v_mov_b32 v{vT+1}, 0")
for w in range(5):
    E(f"ds_read_b32 v{vT+60+w}, v{vT+1} offset:{Z_OFF + 4*w}")
E(f"s_cmp_ge_u32 s{sW}, 3")
E("s_cbranch_scc1 K1_T_WAIT")
E(f"s_cmp_eq_u32 s{sW}, 2")
E("s_cbranch_scc1 K1_T_H")
E(f"v_lshlrev_b32 v{vT}, 3, v0")
E(f"ds_read_b128 {vr(vT+4)}, v{vT+1} offset:{ST_OFF}")
E(f"ds_read_b128 {vr(vT+8)}, v{vT+1} offset:{ST_OFF+16}")
E(f"ds_read_b128 {vr(vT+12)}, v{vT+1} offset:{ST_OFF+32}")
E(f"ds_read_b128 {vr(vT+16)}, v{vT+1} offset:{ST_OFF+48}")
for s in range(16):
    E(f"ds_read_b64 v[{vT+20+2*s}:{vT+21+2*s}], v{vT} offset:{P2_OFF + s*P2_STR}")
E("s_waitcnt lgkmcnt(0)")
mm, ll = vT + 2, vT + 3
E(f"v_max3_f32 v{mm}, v{vT+4}, v{vT+5}, v{vT+6}")
E(f"v_max3_f32 v{mm}, v{mm}, v{vT+7}, v{vT+8}")
E(f"v_max3_f32 v{mm}, v{mm}, v{vT+9}, v{vT+10}")
E(f"v_max_f32 v{mm}, v{mm}, v{vT+11}")
for w in range(8):
    E(f"v_sub_f32 v{vT+4+w}, v{vT+4+w}, v{mm}")
for w in range(8):
    E(f"v_mul_f32 v{vT+4+w}, s{sSC}, v{vT+4+w}")
for w in range(8):
    E(f"v_exp_f32 v{vT+4+w}, v{vT+4+w}")
E("s_nop 0")
E(f"v_mul_f32 v{ll}, v{vT+4}, v{vT+12}")
for w in range(1, 8):
    E(f"v_fmac_f32 v{ll}, v{vT+4+w}, v{vT+12+w}")
for w in range(8):
    for q in range(2):
        E(f"v_add_f32 v{vT+20+4*w+q}, v{vT+20+4*w+q}, v{vT+22+4*w+q}")
vO = vT + 52
for q in range(2):
    E(f"v_mul_f32 v{vO+q}, v{vT+4}, v{vT+20+q}")
    for w in range(1, 8):
        E(f"v_fmac_f32 v{vO+q}, v{vT+4+w}, v{vT+20+4*w+q}")
E("v_cmp_eq_u32 vcc, 96, v0")
E(f"v_lshlrev_b32 v{vT+56}, 4, v0")
E(f"v_add_u32 v{vT+56}, 16, v{vT+56}")
E(f"v_cndmask_b32 v{vO}, v{vO}, v{mm}, vcc")
E(f"v_cndmask_b32 v{vO+1}, v{vO+1}, v{ll}, vcc")
E(f"v_cndmask_b32 v{vT+57}, v{vT+56}, 0, vcc")
E(f"v_mov_b32 v{vO+2}, s{sTAG}")
E(f"v_mov_b32 v{vO+3}, s{sTAG+1}")
E(f"s_lshl_b32 s{sT}, s{sROW}, 11")
E(f"s_add_u32 s{sT}, s{sT}, {WS_G2}")
E("v_cmp_gt_u32 vcc, 97, v0")
E(f"s_and_saveexec_b64 s[{sE}:{sE+1}], vcc")
E(f"buffer_store_dwordx4 {vr(vO)}, v{vT+57}, {sr(sWS)}, s{sT} offen sc1")
E(f"s_mov_b64 exec, s[{sE}:{sE+1}]")
stamp()
def calc_g(dst, z):
    for w in range(1, 5):
        E(f"v_add_f32 v{z}, v{z}, v{z+w}")
    E(f"v_mul_f32 v{dst}, 0xbfb8aa3b, v{z}")
    E(f"v_exp_f32 v{dst}, v{dst}")
    E("s_nop 0")
    E(f"v_add_f32 v{dst}, 1.0, v{dst}")
    E(f"v_rcp_f32 v{dst}, v{dst}")
    E("s_nop 0")
vGg = vT + 58
calc_g(vGg, vT + 60)
E(f"s_lshl_b32 s{sR0}, s{sH}, 14")
E(f"s_add_u32 s{sR0}, s{sR0}, {WS_G2}")
E("v_cmp_gt_u32 vcc, 96, v0")
E(f"s_and_saveexec_b64 s[{sE}:{sE+1}], vcc")
vGo = vT + 64
vGo = vKB + 32
L("K1_GO_LOOP:")
for p in range(8):
    E(f"s_add_u32 s{sT}, s{sR0}, {p*2048}")
    E(f"buffer_load_dwordx4 {vr(vGo+4*p)}, v{vT+56}, {sr(sWS)}, s{sT} offen sc1")
    E(f"buffer_load_dwordx4 {vr(vGo+32+4*p)}, v{vT+1}, {sr(sWS)}, s{sT} offen sc1")
E("s_waitcnt vmcnt(0)")
E(f"s_mov_b64 s[{sBAD}:{sBAD+1}], 0")
for p in range(16):
    E(f"v_cmp_ne_u64 vcc, s[{sTAG}:{sTAG+1}], v[{vGo+4*p+2}:{vGo+4*p+3}]")
    E(f"s_or_b64 s[{sBAD}:{sBAD+1}], s[{sBAD}:{sBAD+1}], vcc")
E(f"s_cmp_eq_u64 s[{sBAD}:{sBAD+1}], 0")
E("s_cbranch_scc1 K1_GO_OK")
E("s_sub_u32 s3, s3, 1")
E("s_cbranch_scc1 K1_GO_OK")
E("s_sleep 1")
E("s_branch K1_GO_LOOP")
L("K1_GO_OK:")
stamp()
sm = vGo + 32
E(f"v_max3_f32 v{mm}, v{sm}, v{sm+4}, v{sm+8}")
E(f"v_max3_f32 v{mm}, v{mm}, v{sm+12}, v{sm+16}")
E(f"v_max3_f32 v{mm}, v{mm}, v{sm+20}, v{sm+24}")
E(f"v_max_f32 v{mm}, v{mm}, v{sm+28}")
for p in range(8):
    E(f"v_sub_f32 v{sm+4*p}, v{sm+4*p}, v{mm}")
for p in range(8):
    E(f"v_mul_f32 v{sm+4*p}, s{sSC}, v{sm+4*p}")
for p in range(8):
    E(f"v_exp_f32 v{sm+4*p}, v{sm+4*p}")
E("s_nop 0")
E(f"v_mul_f32 v{ll}, v{sm}, v{sm+1}")
for p in range(1, 8):
    E(f"v_fmac_f32 v{ll}, v{sm+4*p}, v{sm+4*p+1}")
E(f"v_rcp_f32 v{ll}, v{ll}")
for q in range(2):
    E(f"v_mul_f32 v{vO+q}, v{sm}, v{vGo+q}")
    for p in range(1, 8):
        E(f"v_fmac_f32 v{vO+q}, v{sm+4*p}, v{vGo+4*p+q}")
E(f"v_mul_f32 v{ll}, v{ll}, v{vGg}")
E(f"v_mul_f32 v{vO}, v{vO}, v{ll}")
E(f"v_mul_f32 v{vO+1}, v{vO+1}, v{ll}")
E(f"v_cvt_pk_bf16_f32 v{vO}, v{vO}, v{vO+1}")
E(f"v_lshlrev_b32 v{vT}, 2, v0")
E(f"ds_write_b32 v{vT}, v{vO} offset:{OBF_OFF}")
E(f"s_mov_b64 exec, s[{sE}:{sE+1}]")
E("s_branch K1_T_WAIT")
L("K1_T_H:")
E(f"v_lshlrev_b32 v{vT}, 3, v{vL}")
E(f"ds_read_b64 v[{vT+4}:{vT+5}], v{vT} offset:{GU_OFF}")
E(f"ds_read_b64 v[{vT+6}:{vT+7}], v{vT} offset:{GU_OFF + 192}")
E("s_waitcnt lgkmcnt(0)")
calc_g(vGg, vT + 60)
E(f"v_sub_f32 v{vGg}, 1.0, v{vGg}")
E(f"v_cvt_pk_bf16_f32 v{vT+4}, v{vT+4}, v{vT+5}")
E(f"v_cvt_pk_bf16_f32 v{vT+6}, v{vT+6}, v{vT+7}")
E(f"v_lshlrev_b32 v{vT+8}, 16, v{vT+4}")
E(f"v_and_b32 v{vT+9}, 0xffff0000, v{vT+4}")
E(f"v_lshlrev_b32 v{vT+10}, 16, v{vT+6}")
E(f"v_and_b32 v{vT+11}, 0xffff0000, v{vT+6}")
E(f"v_max_f32 v{vT+8}, 0, v{vT+8}")
E(f"v_max_f32 v{vT+9}, 0, v{vT+9}")
E(f"v_mul_f32 v{vT+8}, v{vT+8}, v{vT+10}")
E(f"v_mul_f32 v{vT+9}, v{vT+9}, v{vT+11}")
E(f"v_cvt_pk_bf16_f32 v{vT+8}, v{vT+8}, v{vT+9}")
E(f"v_lshlrev_b32 v{vT+10}, 16, v{vT+8}")
E(f"v_and_b32 v{vT+11}, 0xffff0000, v{vT+8}")
E(f"v_mul_f32 v{vT+10}, v{vT+10}, v{vGg}")
E(f"v_mul_f32 v{vT+11}, v{vT+11}, v{vGg}")
E(f"v_cvt_pk_bf16_f32 v{vT+8}, v{vT+10}, v{vT+11}")
E(f"v_cmp_gt_u32 vcc, 24, v{vL}")
E("s_nop 1")
E(f"v_cndmask_b32 v{vT+8}, 0, v{vT+8}, vcc")
E(f"v_lshlrev_b32 v{vT}, 2, v{vL}")
E("s_mov_b64 exec, 0xffffffff")
E(f"ds_write_b32 v{vT}, v{vT+8} offset:{OBF_OFF + 384}")
E("s_mov_b64 exec, -1")
L("K1_T_WAIT:")
E("s_waitcnt lgkmcnt(0)")
E("s_barrier")
stamp()
vB = vT + 4
E(f"v_lshrrev_b32 v{vT}, 3, v{vJ}")
E(f"v_lshl_add_u32 v{vT}, v{vT}, 2, v{vG}")
E(f"v_lshlrev_b32 v{vT}, 1, v{vT}")
E(f"s_lshl_b32 s{sT}, s{sW}, 4")
E(f"v_add_u32 v{vT}, s{sT}, v{vT}")
for k in range(4):
    E(f"ds_read_u16 v{vT+20+k}, v{vT} offset:{OBF_OFF + 128*k}")
E("s_waitcnt lgkmcnt(0)")
for k in range(4):
    E(f"v_lshl_or_b32 v{vT+20+k}, v{vT+20+k}, 16, v{vT+20+k}")
for k in range(4):
    expand(vT + 20 + k, vB + 4*k)
E("s_waitcnt vmcnt(0)")
vY = vT + 24
for k in range(4):
    mfma(vY, vKB + 8*k, vB + 4*k, None if k == 0 else vY)
    mfma(vY + 4, vKB + 8*k + 4, vB + 4*k, None if k == 0 else vY + 4)
E(f"v_lshrrev_b32 v{vT+1}, 3, v{vJ}")
E(f"s_lshl_b32 s{sT}, s{sW}, 1")
E(f"v_add_u32 v{vT+1}, s{sT}, v{vT+1}")
E(f"v_mul_u32_u24 v{vT}, {Y_STR}, v{vT+1}")
E(f"v_and_b32 v{vT+1}, 7, v{vJ}")
E(f"v_lshl_add_u32 v{vT}, v{vT+1}, 2, v{vT}")
E(f"v_lshl_add_u32 v{vT}, v{vG}, 7, v{vT}")
E("s_nop 7")
for r in range(4):
    E(f"v_cndmask_b32 v{vY+r}, v{vY+r}, v{vY+4+r}, s[{sHF}:{sHF+1}]")
for r in range(4):
    E(f"ds_write_b32 v{vT}, v{vY+r} offset:{Y_OFF + r*32}")
E("s_waitcnt lgkmcnt(0)")
E("s_barrier")
E(f"s_cmp_lg_u32 s{sW}, 0")
E("s_cbranch_scc1 K1_PUB3_DONE")
E("s_mov_b32 exec_lo, -1")
E("s_mov_b32 exec_hi, 0xff")
E(f"v_lshlrev_b32 v{vT}, 3, v0")
for s in range(16):
    E(f"ds_read_b64 v[{vT+4+2*s}:{vT+5+2*s}], v{vT} offset:{Y_OFF + s*Y_STR}")
E("s_waitcnt lgkmcnt(0)")
for st in (8, 4, 2, 1):
    for s in range(st):
        for q in range(2):
            E(f"v_add_f32 v{vT+4+2*s+q}, v{vT+4+2*s+q}, v{vT+4+2*(s+st)+q}")
E(f"v_mov_b32 v{vT+6}, s{sTAG}")
E(f"v_mov_b32 v{vT+7}, s{sTAG+1}")
E(f"v_lshlrev_b32 v{vT}, 4, v0")
E(f"s_lshl_b32 s{sT}, s{sC}, 5")
E(f"s_add_u32 s{sT}, s{sT}, s{sH}")
E(f"s_mul_i32 s{sT}, s{sT}, 640")
E(f"s_add_u32 s{sT}, s{sT}, {WS_G3}")
E(f"buffer_store_dwordx4 {vr(vT+4)}, v{vT}, {sr(sWS)}, s{sT} offen sc1")
E("s_mov_b64 exec, -1")
L("K1_PUB3_DONE:")
stamp()
E(f"s_lshl_b32 s{sT}, s{sC}, 2")
E(f"s_cmp_lg_u32 s{sT}, s{sH}")
E("s_cbranch_scc1 K1_STAMPS")
E(f"s_lshl_b32 s{sR0}, s{sC}, 5")
E(f"s_lshl_b32 s{sT}, s{sW}, 2")
E(f"s_add_u32 s{sR0}, s{sR0}, s{sT}")
E(f"s_mul_i32 s{sR0}, s{sR0}, 640")
E(f"s_add_u32 s{sR0}, s{sR0}, {WS_G3}")
E(f"v_lshlrev_b32 v{vT}, 4, v{vL}")
E("s_mov_b32 exec_lo, -1")
E("s_mov_b32 exec_hi, 0xff")
L("K1_GF_LOOP:")
for p in range(4):
    E(f"buffer_load_dwordx4 {vr(vT+4+4*p)}, v{vT}, {sr(sWS)}, s{sR0} offen offset:{640*p} sc1")
E("s_waitcnt vmcnt(0)")
E(f"s_mov_b64 s[{sBAD}:{sBAD+1}], 0")
for p in range(4):
    E(f"v_cmp_ne_u64 vcc, s[{sTAG}:{sTAG+1}], v[{vT+4+4*p+2}:{vT+4+4*p+3}]")
    E(f"s_or_b64 s[{sBAD}:{sBAD+1}], s[{sBAD}:{sBAD+1}], vcc")
E(f"s_cmp_eq_u64 s[{sBAD}:{sBAD+1}], 0")
E("s_cbranch_scc1 K1_GF_OK")
E("s_sub_u32 s3, s3, 1")
E("s_cbranch_scc1 K1_GF_OK")
E("s_sleep 1")
E("s_branch K1_GF_LOOP")
L("K1_GF_OK:")
for p in range(1, 4):
    E(f"v_add_f32 v{vT+4}, v{vT+4}, v{vT+4+4*p}")
    E(f"v_add_f32 v{vT+5}, v{vT+5}, v{vT+5+4*p}")
E(f"v_lshlrev_b32 v{vT}, 3, v{vL}")
E(f"s_mul_i32 s{sT}, s{sW}, 320")
E(f"v_add_u32 v{vT}, s{sT}, v{vT}")
E(f"ds_write_b64 v{vT}, v[{vT+4}:{vT+5}] offset:{FR_OFF}")
E("s_mov_b64 exec, -1")
E("s_waitcnt lgkmcnt(0)")
E("s_barrier")
E(f"s_cmp_lg_u32 s{sW}, 0")
E("s_cbranch_scc1 K1_STAMPS")
E("s_mov_b32 exec_lo, -1")
E("s_mov_b32 exec_hi, 0xff")
E(f"v_lshlrev_b32 v{vT}, 3, v{vL}")
for w in range(8):
    E(f"ds_read_b64 v[{vT+4+2*w}:{vT+5+2*w}], v{vT} offset:{FR_OFF + 320*w}")
E(f"s_mov_b32 s{sWG}, s28")
E(f"s_and_b32 s{sWG+1}, s29, 0xffff")
E(f"s_mov_b32 s{sWG+2}, 1280")
E(f"s_mov_b32 s{sWG+3}, 0x00020000")
E("s_waitcnt lgkmcnt(0)")
for st in (4, 2, 1):
    for s in range(st):
        for q in range(2):
            E(f"v_add_f32 v{vT+4+2*s+q}, v{vT+4+2*s+q}, v{vT+4+2*(s+st)+q}")
E(f"v_cvt_pk_bf16_f32 v{vT+4}, v{vT+4}, v{vT+5}")
E(f"v_lshlrev_b32 v{vT}, 2, v{vL}")
E(f"s_mul_i32 s{sT}, s{sC}, 160")
E(f"buffer_store_dword v{vT+4}, v{vT}, {sr(sWG)}, s{sT} offen")
E(f"s_cmp_lg_u32 s{sC}, 0")
E("s_cbranch_scc1 K1_NOEP")
E("s_mov_b64 exec, 1")
E(f"v_mov_b32 v{vT+6}, s{sTAG}")
E(f"v_mov_b32 v{vT+7}, s{sTAG+1}")
E(f"v_mov_b32 v{vT}, 0")
E(f"buffer_store_dwordx2 v[{vT+6}:{vT+7}], v{vT}, {sr(sWS)}, 0 offen")
L("K1_NOEP:")
E("s_mov_b64 exec, -1")
L("K1_STAMPS:")
if DBG:
    E("s_mov_b64 exec, -1")
    E("s_waitcnt vmcnt(0) lgkmcnt(0)")
    E(f"s_cmp_lg_u32 s{sW}, 0")
    E("s_cbranch_scc1 K1_END")
    E("s_cmp_lg_u32 s93, 0")
    E("s_cbranch_scc1 K1_END")
    E("s_memrealtime s[2:3]")
    E("s_memtime s[6:7]")
    E("s_waitcnt lgkmcnt(0)")
    E("s_sub_u32 s6, s6, s95")
    E("s_sub_u32 s2, s2, s94")
    E("v_mov_b32 v10, 0")
    E("v_writelane_b32 v10, s6, 0")
    E("v_writelane_b32 v10, s2, 1")
    for i in range(1, stamp_n[0]):
        r = stamp_regs[i]
        E(f"s_sub_u32 s6, s{r}, s94")
        E(f"v_writelane_b32 v10, s6, {i+1}")
    E("v_lshlrev_b32 v11, 2, v1")
    E("v_cmp_gt_u32 vcc, 16, v1")
    E("s_and_saveexec_b64 s[86:87], vcc")
    E("global_store_dword v11, v10, s[30:31]")
elif ST:
    E("s_mov_b64 exec, -1")
    E("s_waitcnt vmcnt(0) lgkmcnt(0)")
    E(f"s_cmp_lg_u32 s{sW}, {STW}")
    E("s_cbranch_scc1 K1_END")
    E("s_memrealtime s[2:3]")
    E("s_waitcnt lgkmcnt(0)")
    regs = stamp_regs[:stamp_n[0]]
    for i, r in enumerate(regs):
        E(f"v_writelane_b32 v10, s{r}, {2*i}")
        E(f"v_writelane_b32 v10, s{r+1}, {2*i+1}")
    n = len(regs)
    E(f"v_writelane_b32 v10, s2, {2*n}")
    E(f"v_writelane_b32 v10, s3, {2*n+1}")
    E("v_lshlrev_b32 v11, 2, v1")
    E(f"s_lshl_b32 s39, s93, 7")
    E("s_add_u32 s39, s39, 0x300000")
    E(f"v_cmp_gt_u32 vcc, {2*n+2}, v1")
    E("s_and_saveexec_b64 s[86:87], vcc")
    E(f"buffer_store_dword v10, v11, {sr(sWS)}, s39 offen")
L("K1_END:")
E("s_endpgm")

L('.section .rodata,"a"')
L(".p2align 6")
L(f".amdhsa_kernel {K1}")
L(f"  .amdhsa_next_free_vgpr 256")
L(f"  .amdhsa_next_free_sgpr 102")
L(f"  .amdhsa_accum_offset 256")
L("  .amdhsa_group_segment_fixed_size 0")
L("  .amdhsa_kernarg_size 104")
L("  .amdhsa_user_sgpr_count 2")
L("  .amdhsa_user_sgpr_kernarg_segment_ptr 1")
L("  .amdhsa_system_sgpr_workgroup_id_x 1")
L(".end_amdhsa_kernel")
open(sys.argv[1], 'w').write('\n'.join(out) + '\n')
```

```python
import sys, struct

NAME = "gated_mix__sliding_block_cached__glu_gated_reglu__decode"
out = []
def E(s): out.append("    " + s)
def L(s): out.append(s)

HEADER = open('cdna_kernels/' + NAME + '.s.ref').read().split('\n')
hdr = []
for ln in HEADER:
    if ln.startswith('; @launch') or ln.startswith('.amdgcn_target'):
        break
    hdr.append(ln)

opts = (sys.argv[2] if len(sys.argv) > 2 else "").split(',')
def opt(name, default=None):
    for o in opts:
        if o == name: return True
        if o.startswith(name + '='): return o.split('=')[1]
    return default
NT = " nt" if not opt('nont') else ""
WNT = " nt" if opt('wnt') else ""
ST = opt('st') or opt('dbg')
DBG = opt('dbg')
STW = int(opt('stw', 0))
NK0 = int(opt('nk0', 8))
NV1 = int(opt('nv1', 15))

P0_OFF = 0;      P0_STR = 1312
P2_OFF = 16 * P0_STR;  P2_STR = 800
Y_OFF  = P2_OFF + 16 * P2_STR; Y_STR = 544
QBF_OFF = Y_OFF + 16 * Y_STR
GU_OFF  = QBF_OFF + 384
OBF_OFF = GU_OFF + 384
ST_OFF  = OBF_OFF + 512
Z_OFF   = ST_OFF + 64
FR_OFF  = Z_OFF + 64
LDS_SZ  = FR_OFF + 8 * 320
assert LDS_SZ <= 65536

WS_G0 = 0x1000
WS_G2 = 0x100000
WS_G3 = 0x200000

SCALE_LOG2E = (192.0 ** -0.5) * 1.4426950408889634
def f32bits(x): return struct.unpack('<I', struct.pack('<f', x))[0]

K1 = NAME + "_kernel"
L('\n'.join(hdr))
L(f"; @launch grid=(256,1,1) block=(512,1,1) lds=65536")
L('.amdgcn_target "amdgcn-amd-amdhsa--gfx950"')
L(".text")
L(f".globl {K1}")
L(".p2align 8")
L(f".type {K1},@function")
L(f"{K1}:")

vL, vG, vJ = 1, 2, 3
vM = [4, 5, 6, 7]
vA = 8
vKB = 40
vVB = 136
vQ = 232

sW, sXCD, sIDX, sH, sC, sT = 34, 35, 36, 37, 38, 39
sK, sV, sWQ, sWO, sWG, sWU, sWD, sX, sWS = 40, 44, 48, 52, 56, 60, 64, 68, 72
sHF = 78
sV2 = 80
sOFF = 82
sSC = 83
sROW = 85
sE = 86
sR0 = 88
sTAG = 4
sBAD = 6
sGW = 76
stamp_regs = [94] + [10, 12, 14, 16, 18, 20, 22, 24, 96, 98, 100, 32, 8]
stamp_n = [0]
def stamp():
    if not ST: return
    r = stamp_regs[stamp_n[0]]; stamp_n[0] += 1
    E(f"s_memrealtime s[{r}:{r+1}]")
def vr(a, n=4): return f"v[{a}:{a+n-1}]"
def sr(a, n=4): return f"s[{a}:{a+n-1}]"

vmq = []
def VM(s, tag):
    E(s); vmq.append(tag)
def WAIT(tag):
    idx = max(i for i, t in enumerate(vmq) if t == tag)
    n = len(vmq) - 1 - idx
    assert n <= 63, n
    E(f"s_waitcnt vmcnt({n})")

def srd(dst, plo, off_s, nrec):
    E(f"s_add_u32 s{dst}, s{plo}, s{off_s}")
    E(f"s_addc_u32 s{dst+1}, s{plo+1}, 0")
    E(f"s_and_b32 s{dst+1}, s{dst+1}, 0xffff")
    E(f"s_mov_b32 s{dst+2}, {nrec}")
    E(f"s_mov_b32 s{dst+3}, 0x00020000")

def dpp_reduce(regs):
    for ctl in ["row_shr:1", "row_shr:2", "row_shr:4", "row_shr:8"]:
        for r in regs:
            E(f"v_add_f32_dpp v{r}, v{r}, v{r} {ctl} row_mask:0xf bank_mask:0xf bound_ctrl:0")
        if len(regs) < 3: E("s_nop 1")
    for r in regs:
        E(f"v_add_f32_dpp v{r}, v{r}, v{r} row_bcast:15 row_mask:0xa bank_mask:0xf")
    if len(regs) < 3: E("s_nop 1")
    for r in regs:
        E(f"v_add_f32_dpp v{r}, v{r}, v{r} row_bcast:31 row_mask:0xc bank_mask:0xf")

def expand(dup, dst):
    for w in range(4):
        E(f"v_and_b32 v{dst+w}, v{dup}, v{vM[w]}")

def mfma(d, a, b, c):
    E(f"v_mfma_f32_16x16x32_bf16 {vr(d)}, {vr(a)}, {vr(b)}, {'0' if c is None else vr(c)}")

E("s_cmp_ge_u32 s2, 256")
E("s_cbranch_scc1 K1_END")
if ST: E("s_mov_b32 s93, s2")
stamp()
if DBG: E("s_memtime s[6:7]")
E("s_load_dwordx16 s[8:23], s[0:1], 0")
E("s_load_dwordx8 s[24:31], s[0:1], 64")
E("s_load_dwordx2 s[32:33], s[0:1], 96")
E(f"v_and_b32 v{vL}, 63, v0")
E(f"v_bfe_u32 v{vG}, v0, 4, 2")
E(f"v_and_b32 v{vJ}, 15, v0")
E(f"v_lshrrev_b32 v{vA}, 6, v0")
E("s_nop 0")
E(f"v_readfirstlane_b32 s{sW}, v{vA}")
E(f"s_and_b32 s{sXCD}, s2, 7")
E(f"s_lshr_b32 s{sIDX}, s2, 3")
E(f"s_and_b32 s{sH}, s{sIDX}, 3")
E(f"s_lshl_b32 s{sT}, s{sXCD}, 2")
E(f"s_add_u32 s{sH}, s{sH}, s{sT}")
E(f"s_lshr_b32 s{sC}, s{sIDX}, 2")
E(f"s_lshl_b32 s{sROW}, s{sH}, 3")
E(f"s_add_u32 s{sROW}, s{sROW}, s{sC}")
E("s_mov_b32 s3, 0x40000")
E(f"s_mov_b32 s{sHF}, 0xFF00FF00")
E(f"s_mov_b32 s{sHF+1}, 0xFF00FF00")
E(f"s_mov_b32 s{sV2}, 0x00FF00FF")
E(f"s_mov_b32 s{sV2+1}, 0xFF00FF00")
E(f"s_mov_b32 s{sSC}, 0x{f32bits(SCALE_LOG2E):08x}")
t0, t1, t2, t3 = vA, vA+1, vA+2, vA+3
E(f"v_and_b32 v{t0}, 1, v{vJ}")
E(f"v_lshlrev_b32 v{t0}, 4, v{t0}")
E(f"v_mov_b32 v{t1}, 0xffff")
E(f"v_lshlrev_b32 v{t1}, v{t0}, v{t1}")
E(f"v_bfe_u32 v{t2}, v{vJ}, 1, 2")
for w in range(4):
    E(f"v_cmp_eq_u32 vcc, {w}, v{t2}")
    E("s_nop 1")
    E(f"v_cndmask_b32 v{vM[w]}, 0, v{t1}, vcc")
vHF, vGH, vJ7 = vA, vA+1, vA+2
E(f"v_lshrrev_b32 v{vHF}, 3, v{vJ}")
E(f"v_lshl_add_u32 v{vGH}, v{vHF}, 2, v{vG}")
E(f"v_and_b32 v{vJ7}, 7, v{vJ}")
oWA, oWA2, oWB, oG, oX, oKa, oKb, oGX = 32, 33, 34, 35, 36, 38, 39, 37
E(f"v_mul_u32_u24 v{oWA}, 12288, v{vG}")
E(f"v_lshl_add_u32 v{oWA}, v{vJ}, 4, v{oWA}")
E(f"v_add_u32 v{oWA2}, 49152, v{oWA}")
E(f"v_mul_u32_u24 v{oWB}, 12288, v{vGH}")
E(f"v_lshl_add_u32 v{oWB}, v{vJ7}, 4, v{oWB}")
E(f"v_add_u32 v{oWB}, 256, v{oWB}")
E(f"v_mul_u32_u24 v{oG}, 3072, v{vGH}")
E(f"v_lshl_add_u32 v{oG}, v{vJ7}, 4, v{oG}")
E(f"v_mov_b32 v{t3}, 0x40000000")
E(f"v_cmp_gt_u32 vcc, 6, v{vJ7}")
E("s_nop 1")
E(f"v_cndmask_b32 v{oG}, v{t3}, v{oG}, vcc")
E(f"v_lshlrev_b32 v{oX}, 1, v{vGH}")
E(f"v_lshlrev_b32 v{oGX}, 2, v0")
E(f"v_and_b32 v{oKa}, 3, v{vJ}")
E(f"v_lshlrev_b32 v{oKa}, 3, v{oKa}")
E(f"v_bfe_u32 v{t3}, v{vJ}, 2, 1")
E(f"v_add_u32 v{oKa}, v{oKa}, v{t3}")
E(f"v_mul_u32_u24 v{oKa}, 384, v{oKa}")
E(f"v_lshl_add_u32 v{oKa}, v{vG}, 4, v{oKa}")
E(f"v_lshlrev_b32 v{t3}, 6, v{vHF}")
E(f"v_sub_u32 v{oKb}, v{oKa}, v{t3}")
E(f"v_add_u32 v{oKb}, 64, v{oKb}")
E(f"v_add_u32 v{oKa}, v{oKa}, v{t3}")
E("s_waitcnt lgkmcnt(0)")
if DBG: E("s_mov_b32 s95, s6")
E(f"s_load_dwordx2 s[{sTAG}:{sTAG+1}], s[32:33], 0")
E(f"s_mul_i32 s{sT}, s{sH}, 12582912")
E(f"s_mul_i32 s{sOFF}, s{sC}, 196608")
E(f"s_add_u32 s{sT}, s{sT}, s{sOFF}")
E(f"s_mul_i32 s{sOFF}, s{sW}, 24576")
E(f"s_add_u32 s{sT}, s{sT}, s{sOFF}")
E(f"s_add_u32 s{sT}, s{sT}, 11010048")
srd(sK, 10, sT, 24576)
srd(sV, 12, sT, 24576)
E(f"s_mul_i32 s{sR0}, s{sC}, 80")
E(f"s_lshl_b32 s{sOFF}, s{sW}, 3")
E(f"s_add_u32 s{sR0}, s{sR0}, s{sOFF}")
E(f"s_mul_i32 s{sT}, s{sR0}, 12288")
E(f"s_mul_i32 s{sOFF}, s{sH}, 384")
E(f"s_add_u32 s{sT}, s{sT}, s{sOFF}")
srd(sWQ, 14, sT, 72 * 12288)
E(f"s_mul_i32 s{sT}, s{sR0}, 3072")
E(f"s_mul_i32 s{sOFF}, s{sH}, 96")
E(f"s_add_u32 s{sT}, s{sT}, s{sOFF}")
srd(sWG, 20, sT, 72 * 3072)
srd(sWU, 22, sT, 72 * 3072)
E(f"s_lshl_b32 s{sR0+1}, s{sR0}, 1")
E(f"s_mov_b32 s{sT}, 0")
srd(sX, 8, sT, 1280)
srd(sWS, 32, sT, 0x400000)
E(f"s_cmp_lt_u32 s{sW}, 2")
E(f"s_cselect_b32 s{sR0+2}, 786432, 0x40000000")
E(f"s_cselect_b32 s{sR0+3}, 196608, 0x40000000")
GOFF = [0, 2, 6, 4]
def kload(n):
    Q, gi, s = n // 12, (n // 3) % 4, n % 3
    b = vKB + n * 4
    va = oKa if gi in (0, 2) else oKb
    so = f"s{sOFF}" if Q else "0"
    VM(f"buffer_load_dwordx4 {vr(b)}, v{va}, {sr(sK)}, {so} offen offset:{GOFF[gi]*384+s*128}{NT}", f"K{Q}{gi}")
vX0, vX1, vGX, vGW = vA+4, vA+5, vA+6, vA+7
VM(f"buffer_load_ushort v{vX0}, v{oX}, {sr(sX)}, s{sR0+1} offen", "X")
VM(f"buffer_load_ushort v{vX1}, v{oX}, {sr(sX)}, s{sR0+1} offen offset:128", "X")
def p0reg(k, q): return vVB + 20 * k + 4 * q
VM(f"buffer_load_dwordx4 {vr(p0reg(0,0))}, v{oWA}, {sr(sWQ)}, 0 offen{WNT}", "P0")
VM(f"buffer_load_dwordx4 {vr(p0reg(0,1))}, v{oWA2}, {sr(sWQ)}, 0 offen{WNT}", "P0")
VM(f"buffer_load_dwordx4 {vr(p0reg(0,2))}, v{oWB}, {sr(sWQ)}, 0 offen{WNT}", "P0")
VM(f"buffer_load_dwordx4 {vr(p0reg(0,3))}, v{oG}, {sr(sWG)}, 0 offen", "P0")
VM(f"buffer_load_dwordx4 {vr(p0reg(0,4))}, v{oG}, {sr(sWU)}, 0 offen", "P0")
for o_, s_ in ((oWA, sR0+2), (oWA2, sR0+2), (oWB, sR0+2), (oG, sR0+3)):
    E(f"v_add_u32 v{o_}, s{s_}, v{o_}")
VM(f"buffer_load_dwordx4 {vr(p0reg(1,0))}, v{oWA}, {sr(sWQ)}, 0 offen{WNT}", "P1")
VM(f"buffer_load_dwordx4 {vr(p0reg(1,1))}, v{oWA2}, {sr(sWQ)}, 0 offen{WNT}", "P1")
VM(f"buffer_load_dwordx4 {vr(p0reg(1,2))}, v{oWB}, {sr(sWQ)}, 0 offen{WNT}", "P1")
VM(f"buffer_load_dwordx4 {vr(p0reg(1,3))}, v{oG}, {sr(sWG)}, 0 offen", "P1")
VM(f"buffer_load_dwordx4 {vr(p0reg(1,4))}, v{oG}, {sr(sWU)}, 0 offen", "P1")
E(f"s_mov_b32 s{sWO}, s26")
E(f"s_and_b32 s{sWO+1}, s27, 0xffff")
E(f"s_mov_b32 s{sWO+2}, 1280")
E(f"s_mov_b32 s{sWO+3}, 0x00020000")
VM(f"buffer_load_dword v{vGX}, v{oGX}, {sr(sX)}, 0 offen", "G")
VM(f"buffer_load_dword v{vGW}, v{oGX}, {sr(sWO)}, 0 offen", "G")
E(f"s_mul_i32 s{sT}, s{sH}, 245760")
E(f"s_mul_i32 s{sOFF}, s{sC}, 160")
E(f"s_add_u32 s{sT}, s{sT}, s{sOFF}")
srd(sWO, 16, sT, 245760 - 1120)
E(f"s_mul_i32 s{sT}, s{sH}, 61440")
E(f"s_add_u32 s{sT}, s{sT}, s{sOFF}")
srd(sWD, 24, sT, 61440 - 1120)
E(f"s_mov_b32 s{sOFF}, 12288")
for n in range(NK0): kload(n)
stamp()
vAC = 16
vBX = vQ
WAIT("X")
E(f"v_lshl_or_b32 v{vX0}, v{vX0}, 16, v{vX0}")
E(f"v_lshl_or_b32 v{vX1}, v{vX1}, 16, v{vX1}")
expand(vX0, vBX)
expand(vX1, vBX + 4)
WAIT("P0")
for q in range(5):
    mfma(vAC + 4*q, p0reg(0, q), vBX, None)
WAIT("P1")
for q in range(5):
    mfma(vAC + 4*q, p0reg(1, q), vBX + 4, vAC + 4*q)
WAIT("G")
E(f"v_lshlrev_b32 v{vX0}, 16, v{vGX}")
E(f"v_and_b32 v{vGX}, 0xffff0000, v{vGX}")
E(f"v_lshlrev_b32 v{vX1}, 16, v{vGW}")
E(f"v_and_b32 v{vGW}, 0xffff0000, v{vGW}")
E(f"v_mul_f32 v{vX0}, v{vX0}, v{vX1}")
E(f"v_fmac_f32 v{vX0}, v{vGX}, v{vGW}")
E("s_nop 1")
dpp_reduce([vX0])
a1, a2, tt = vA, vA+1, vA+2
E(f"v_lshrrev_b32 v{tt}, 3, v{vJ}")
E(f"s_lshl_b32 s{sT}, s{sW}, 1")
E(f"v_add_u32 v{tt}, s{sT}, v{tt}")
E(f"v_mul_u32_u24 v{a1}, {P0_STR}, v{tt}")
E(f"v_and_b32 v{tt}, 7, v{vJ}")
E(f"v_lshl_add_u32 v{a1}, v{tt}, 2, v{a1}")
E(f"v_and_b32 v{tt}, 1, v{vG}")
E(f"v_lshl_add_u32 v{a2}, v{tt}, 7, v{a1}")
E(f"v_lshl_add_u32 v{a1}, v{vG}, 7, v{a1}")
E(f"s_lshl_b32 s{sT}, s{sW}, 2")
E(f"v_mov_b32 v{tt}, s{sT}")
E("s_mov_b32 exec_lo, 0")
E("s_mov_b32 exec_hi, 0x80000000")
E(f"ds_write_b32 v{tt}, v{vX0} offset:{Z_OFF}")
E("s_mov_b64 exec, -1")
E("s_nop 3")
for r in range(4):
    E(f"v_cndmask_b32 v{vAC+r}, v{vAC+r}, v{vAC+4+r}, s[{sHF}:{sHF+1}]")
for r in range(4):
    E(f"ds_write_b32 v{a1}, v{vAC+r} offset:{P0_OFF + r*32}")
E(f"s_mov_b64 exec, s[{sV2}:{sV2+1}]")
for q in range(3):
    for r in range(4):
        E(f"ds_write_b32 v{a2}, v{vAC+8+4*q+r} offset:{P0_OFF + 512 + 256*q + r*32}")
E("s_mov_b64 exec, -1")
E("s_waitcnt lgkmcnt(0)")
E("s_barrier")
stamp()
E(f"s_add_u32 s{sTAG}, s{sTAG}, 1")
E(f"s_addc_u32 s{sTAG+1}, s{sTAG+1}, 0")
E(f"s_cmp_ge_u32 s{sW}, 3")
E("s_cbranch_scc1 K1_PUB0_DONE")
E("v_cmp_gt_u32 vcc, 144, v0")
E(f"s_and_saveexec_b64 s[{sE}:{sE+1}], vcc")
E(f"v_lshlrev_b32 v{vA}, 3, v0")
E(f"v_add_u32 v{vA+1}, 64, v{vA}")
E("v_cmp_gt_u32 vcc, 120, v0")
E("s_nop 1")
E(f"v_cndmask_b32 v{vA}, v{vA+1}, v{vA}, vcc")
vR = vQ - 36
for s in range(16):
    E(f"ds_read_b64 v[{vR+2*s}:{vR+2*s+1}], v{vA} offset:{P0_OFF + s*P0_STR}")
E("s_waitcnt lgkmcnt(0)")
for st in (8, 4, 2, 1):
    for s in range(st):
        for q in range(2):
            E(f"v_add_f32 v{vR+2*s+q}, v{vR+2*s+q}, v{vR+2*(s+st)+q}")
E(f"v_mov_b32 v{vR+2}, s{sTAG}")
E(f"v_mov_b32 v{vR+3}, s{sTAG+1}")
E(f"v_lshlrev_b32 v{vA}, 4, v0")
E(f"s_mul_i32 s{sT}, s{sROW}, 2304")
E(f"s_add_u32 s{sT}, s{sT}, {WS_G0}")
E(f"buffer_store_dwordx4 {vr(vR)}, v{vA}, {sr(sWS)}, s{sT} offen sc1")
E(f"s_mov_b64 exec, s[{sE}:{sE+1}]")
E("s_nop 1")
L("K1_PUB0_DONE:")
for n in range(NK0, 24): kload(n)
vGa = vR
E(f"s_mul_i32 s{sT}, s{sW}, 288")
E(f"v_lshlrev_b32 v{vA}, 4, v{vL}")
E(f"v_add_u32 v{vA}, s{sT}, v{vA}")
E(f"s_mul_i32 s{sR0}, s{sH}, {8*2304}")
E(f"s_add_u32 s{sR0}, s{sR0}, {WS_G0}")
E("s_mov_b64 exec, 0x3ffff")
def gather_q():
    for p in range(8):
        E(f"s_add_u32 s{sT}, s{sR0}, {p*2304}")
        VM(f"buffer_load_dwordx4 {vr(vGa+4*p)}, v{vA}, {sr(sWS)}, s{sT} offen sc1", "GQ")
gather_q()
E("s_mov_b64 exec, -1")
oVA, oVB = 38, 39
E(f"v_mul_u32_u24 v{oVA}, 384, v{vG}")
E(f"v_lshl_add_u32 v{oVA}, v{vJ}, 4, v{oVA}")
E(f"v_lshrrev_b32 v{vA+1}, 3, v{vJ}")
E(f"v_lshl_add_u32 v{vA+1}, v{vA+1}, 2, v{vG}")
E(f"v_mul_u32_u24 v{oVB}, 384, v{vA+1}")
E(f"v_and_b32 v{vA+1}, 7, v{vJ}")
E(f"v_lshl_add_u32 v{oVB}, v{vA+1}, 4, v{oVB}")
E(f"v_add_u32 v{oVB}, 256, v{oVB}")
def vload(n):
    k, q = n // 3, n % 3
    b = vVB + 12 * k + 4 * q
    E(f"s_mov_b32 s{sOFF}, {k*3072}")
    if q < 2:
        VM(f"buffer_load_dwordx4 {vr(b)}, v{oVA}, {sr(sV)}, s{sOFF} offen offset:{q*1536}{NT}", f"V{k}")
    else:
        VM(f"buffer_load_dwordx4 {vr(b)}, v{oVB}, {sr(sV)}, s{sOFF} offen{NT}", f"V{k}")
for n in range(NV1): vload(n)
stamp()
WAIT("GQ")
E("s_mov_b64 exec, 0x3ffff")
L("K1_GQ_CHECK:")
E(f"s_mov_b64 s[{sBAD}:{sBAD+1}], 0")
for p in range(8):
    E(f"v_cmp_ne_u64 vcc, s[{sTAG}:{sTAG+1}], v[{vGa+4*p+2}:{vGa+4*p+3}]")
    E(f"s_or_b64 s[{sBAD}:{sBAD+1}], s[{sBAD}:{sBAD+1}], vcc")
E(f"s_cmp_eq_u64 s[{sBAD}:{sBAD+1}], 0")
E("s_cbranch_scc1 K1_GQ_OK")
E("s_sub_u32 s3, s3, 1")
E("s_cbranch_scc1 K1_GQ_OK")
E("s_sleep 2")
sv = list(vmq)
gather_q()
vmq[:] = sv
E("s_waitcnt vmcnt(0)")
E("s_branch K1_GQ_CHECK")
L("K1_GQ_OK:")
for p in range(1, 8):
    E(f"v_add_f32 v{vGa}, v{vGa}, v{vGa+4*p}")
    E(f"v_add_f32 v{vGa+1}, v{vGa+1}, v{vGa+4*p+1}")
E(f"s_mul_i32 s{sT}, s{sW}, 18")
E(f"v_add_u32 v{vA}, s{sT}, v{vL}")
E(f"v_cvt_pk_bf16_f32 v{vA+1}, v{vGa}, v{vGa+1}")
E(f"v_lshlrev_b32 v{vA+2}, 2, v{vA}")
E(f"v_lshlrev_b32 v{vA+3}, 3, v{vA}")
E(f"v_cmp_gt_u32 vcc, 96, v{vA}")
E(f"s_and_saveexec_b64 s[{sE}:{sE+1}], vcc")
E(f"ds_write_b32 v{vA+2}, v{vA+1} offset:{QBF_OFF}")
E(f"s_andn2_b64 exec, s[{sE}:{sE+1}], vcc")
E(f"ds_write_b64 v{vA+3}, v[{vGa}:{vGa+1}] offset:{GU_OFF - 96*8}")
E("s_mov_b64 exec, -1")
E("s_waitcnt lgkmcnt(0)")
E("s_barrier")
stamp()
E(f"v_lshrrev_b32 v{vA+1}, 3, v{vJ}")
E(f"v_lshlrev_b32 v{vA+1}, 6, v{vA+1}")
E(f"v_lshl_add_u32 v{vA}, v{vG}, 4, v{vA+1}")
for s in range(3):
    E(f"ds_read_b128 {vr(vQ+4*s)}, v{vA} offset:{QBF_OFF + 128*s}")
E(f"v_xor_b32 v{vA+2}, 40, v{vL}")
E(f"v_lshlrev_b32 v{vA+2}, 2, v{vA+2}")
E("s_waitcnt lgkmcnt(0)")
vS = 16
vD = 16
vF = vQ + 12
for Q in range(2):
    for gi in range(4):
        WAIT(f"K{Q}{gi}")
        for s in range(3):
            b = vKB + ((Q * 4 + gi) * 3 + s) * 4
            mfma(vD + 4*gi, b, vQ + 4*s, None if s == 0 else vD + 4*gi)
    E("s_nop 7")
    for r in range(4):
        a, b_, c_, d = vD + r, vD + 4 + r, vD + 8 + r, vD + 12 + r
        u1, u2 = vA + 4, vA + 5
        E(f"v_cndmask_b32 v{u1}, v{b_}, v{a}, s[{sV2}:{sV2+1}]")
        E(f"v_cndmask_b32 v{u2}, v{d}, v{c_}, s[{sV2}:{sV2+1}]")
        E(f"v_cndmask_b32 v{vF+4*Q+r}, v{u1}, v{u2}, s[{sHF}:{sHF+1}]")
        E(f"v_cndmask_b32 v{a}, v{u2}, v{u1}, s[{sHF}:{sHF+1}]")
    for r in range(4):
        E(f"ds_bpermute_b32 v{vD+4+r}, v{vA+2}, v{vD+r}")
    E("s_waitcnt lgkmcnt(0)")
    for r in range(4):
        E(f"v_add_f32 v{vF+4*Q+r}, v{vF+4*Q+r}, v{vD+4+r}")
for r in range(8):
    E(f"v_mov_b32 v{vS+r}, v{vF+r}")
stamp()
for n in range(NV1, 24): vload(n)
oWO = vA
E(f"v_mul_u32_u24 v{oWO}, 1280, v{vG}")
E(f"v_lshl_add_u32 v{oWO}, v{vJ}, 4, v{oWO}")
E(f"v_mov_b32 v{vA+1}, 0x40000000")
E(f"v_cmp_gt_u32 vcc, 10, v{vJ}")
E("s_nop 1")
E(f"v_cndmask_b32 v{oWO}, v{vA+1}, v{oWO}, vcc")
E(f"s_mul_i32 s{sOFF}, s{sW}, 10240")
for k in range(3):
    E(f"s_add_u32 s{sT}, s{sOFF}, {k*81920}")
    VM(f"buffer_load_dwordx4 {vr(vKB+8*k)}, v{oWO}, {sr(sWO)}, s{sT} offen", "WO")
    E(f"s_add_u32 s{sT}, s{sOFF}, {k*81920 + 5120}")
    VM(f"buffer_load_dwordx4 {vr(vKB+8*k+4)}, v{oWO}, {sr(sWO)}, s{sT} offen", "WO")
E(f"s_cmp_lt_u32 s{sW}, 6")
E(f"s_cselect_b32 s{sT}, 0, 0x40000000")
E(f"v_add_u32 v{vA+1}, s{sT}, v{oWO}")
E(f"v_or_b32 v{vA+1}, v{vA+1}, v{oWO}")
VM(f"buffer_load_dwordx4 {vr(vKB+24)}, v{vA+1}, {sr(sWD)}, s{sOFF} offen", "WO")
E(f"s_add_u32 s{sT}, s{sOFF}, 5120")
VM(f"buffer_load_dwordx4 {vr(vKB+28)}, v{vA+1}, {sr(sWD)}, s{sT} offen", "WO")
t = vA + 1
E(f"v_max3_f32 v{t}, v{vS}, v{vS+1}, v{vS+2}")
E(f"v_max3_f32 v{t}, v{t}, v{vS+3}, v{vS+4}")
E(f"v_max3_f32 v{t}, v{t}, v{vS+5}, v{vS+6}")
E(f"v_max_f32 v{t}, v{t}, v{vS+7}")
E("s_nop 1")
E(f"v_max_f32_dpp v{t}, v{t}, v{t} row_ror:8 row_mask:0xf bank_mask:0xf")
E("s_nop 1")
for q in range(4):
    E(f"v_readlane_b32 s{sR0+q}, v{t}, {16*q}")
E("s_nop 1")
E(f"v_mov_b32 v{t}, s{sR0}")
E(f"v_max_f32 v{t}, s{sR0+1}, v{t}")
E(f"v_max_f32 v{t}, s{sR0+2}, v{t}")
E(f"v_max_f32 v{t}, s{sR0+3}, v{t}")
E(f"s_lshl_b32 s{sT}, s{sW}, 2")
E(f"v_mov_b32 v{t+1}, s{sT}")
E(f"ds_write_b32 v{t+1}, v{t} offset:{ST_OFF}")
E(f"v_mul_f32 v{t}, s{sSC}, v{t}")
for r in range(8):
    E(f"v_fma_f32 v{vS+r}, v{vS+r}, s{sSC}, -v{t}")
for r in range(8):
    E(f"v_exp_f32 v{vS+r}, v{vS+r}")
E("s_nop 0")
t2 = vA + 3
E(f"v_add_f32 v{t2}, v{vS}, v{vS+1}")
for r in range(2, 8):
    E(f"v_add_f32 v{t2}, v{t2}, v{vS+r}")
E("s_nop 1")
E(f"v_add_f32_dpp v{t2}, v{t2}, v{t2} row_ror:8 row_mask:0xf bank_mask:0xf")
E("s_nop 1")
for q in range(4):
    E(f"v_readlane_b32 s{sR0+q}, v{t2}, {16*q}")
E("s_nop 1")
E(f"v_mov_b32 v{t2}, s{sR0}")
E(f"v_add_f32 v{t2}, s{sR0+1}, v{t2}")
E(f"v_add_f32 v{t2}, s{sR0+2}, v{t2}")
E(f"v_add_f32 v{t2}, s{sR0+3}, v{t2}")
E(f"ds_write_b32 v{t+1}, v{t2} offset:{ST_OFF+32}")
for r in range(8):
    E(f"v_cvt_pk_bf16_f32 v{vS+r}, v{vS+r}, v{vS+r}")
E("s_waitcnt lgkmcnt(0)")
stamp()
vPA = vS + 8
vBP = vA
for k in range(8):
    expand(vS + k, vBP)
    WAIT(f"V{k}")
    E("s_nop 0")
    b = vVB + 12 * k
    for q in range(3):
        mfma(vPA + 4*q, b + 4*q, vBP, None if k == 0 else vPA + 4*q)
stamp()
a1, a2, tt = vS, vS+1, vS+2
E(f"v_lshrrev_b32 v{tt}, 3, v{vJ}")
E(f"s_lshl_b32 s{sT}, s{sW}, 1")
E(f"v_add_u32 v{tt}, s{sT}, v{tt}")
E(f"v_mul_u32_u24 v{a1}, {P2_STR}, v{tt}")
E(f"v_and_b32 v{tt}, 7, v{vJ}")
E(f"v_lshl_add_u32 v{a1}, v{tt}, 2, v{a1}")
E(f"v_and_b32 v{tt}, 1, v{vG}")
E(f"v_lshl_add_u32 v{a2}, v{tt}, 7, v{a1}")
E(f"v_lshl_add_u32 v{a1}, v{vG}, 7, v{a1}")
E("s_nop 7")
for r in range(4):
    E(f"v_cndmask_b32 v{vPA+r}, v{vPA+r}, v{vPA+4+r}, s[{sHF}:{sHF+1}]")
for r in range(4):
    E(f"ds_write_b32 v{a1}, v{vPA+r} offset:{P2_OFF + r*32}")
E(f"s_mov_b64 exec, s[{sV2}:{sV2+1}]")
for r in range(4):
    E(f"ds_write_b32 v{a2}, v{vPA+8+r} offset:{P2_OFF + 512 + r*32}")
E("s_mov_b64 exec, -1")
E("s_waitcnt lgkmcnt(0)")
E("s_barrier")
stamp()
vT = vVB
E(f"v_mov_b32 v{vT+1}, 0")
for w in range(5):
    E(f"ds_read_b32 v{vT+60+w}, v{vT+1} offset:{Z_OFF + 4*w}")
E(f"s_cmp_ge_u32 s{sW}, 3")
E("s_cbranch_scc1 K1_T_WAIT")
E(f"s_cmp_eq_u32 s{sW}, 2")
E("s_cbranch_scc1 K1_T_H")
E(f"v_lshlrev_b32 v{vT}, 3, v0")
E(f"ds_read_b128 {vr(vT+4)}, v{vT+1} offset:{ST_OFF}")
E(f"ds_read_b128 {vr(vT+8)}, v{vT+1} offset:{ST_OFF+16}")
E(f"ds_read_b128 {vr(vT+12)}, v{vT+1} offset:{ST_OFF+32}")
E(f"ds_read_b128 {vr(vT+16)}, v{vT+1} offset:{ST_OFF+48}")
for s in range(16):
    E(f"ds_read_b64 v[{vT+20+2*s}:{vT+21+2*s}], v{vT} offset:{P2_OFF + s*P2_STR}")
E("s_waitcnt lgkmcnt(0)")
mm, ll = vT + 2, vT + 3
E(f"v_max3_f32 v{mm}, v{vT+4}, v{vT+5}, v{vT+6}")
E(f"v_max3_f32 v{mm}, v{mm}, v{vT+7}, v{vT+8}")
E(f"v_max3_f32 v{mm}, v{mm}, v{vT+9}, v{vT+10}")
E(f"v_max_f32 v{mm}, v{mm}, v{vT+11}")
for w in range(8):
    E(f"v_sub_f32 v{vT+4+w}, v{vT+4+w}, v{mm}")
for w in range(8):
    E(f"v_mul_f32 v{vT+4+w}, s{sSC}, v{vT+4+w}")
for w in range(8):
    E(f"v_exp_f32 v{vT+4+w}, v{vT+4+w}")
E("s_nop 0")
E(f"v_mul_f32 v{ll}, v{vT+4}, v{vT+12}")
for w in range(1, 8):
    E(f"v_fmac_f32 v{ll}, v{vT+4+w}, v{vT+12+w}")
for w in range(8):
    for q in range(2):
        E(f"v_add_f32 v{vT+20+4*w+q}, v{vT+20+4*w+q}, v{vT+22+4*w+q}")
vO = vT + 52
for q in range(2):
    E(f"v_mul_f32 v{vO+q}, v{vT+4}, v{vT+20+q}")
    for w in range(1, 8):
        E(f"v_fmac_f32 v{vO+q}, v{vT+4+w}, v{vT+20+4*w+q}")
E("v_cmp_eq_u32 vcc, 96, v0")
E(f"v_lshlrev_b32 v{vT+56}, 4, v0")
E(f"v_add_u32 v{vT+56}, 16, v{vT+56}")
E(f"v_cndmask_b32 v{vO}, v{vO}, v{mm}, vcc")
E(f"v_cndmask_b32 v{vO+1}, v{vO+1}, v{ll}, vcc")
E(f"v_cndmask_b32 v{vT+57}, v{vT+56}, 0, vcc")
E(f"v_mov_b32 v{vO+2}, s{sTAG}")
E(f"v_mov_b32 v{vO+3}, s{sTAG+1}")
E(f"s_lshl_b32 s{sT}, s{sROW}, 11")
E(f"s_add_u32 s{sT}, s{sT}, {WS_G2}")
E("v_cmp_gt_u32 vcc, 97, v0")
E(f"s_and_saveexec_b64 s[{sE}:{sE+1}], vcc")
E(f"buffer_store_dwordx4 {vr(vO)}, v{vT+57}, {sr(sWS)}, s{sT} offen sc1")
E(f"s_mov_b64 exec, s[{sE}:{sE+1}]")
stamp()
def calc_g(dst, z):
    for w in range(1, 5):
        E(f"v_add_f32 v{z}, v{z}, v{z+w}")
    E(f"v_mul_f32 v{dst}, 0xbfb8aa3b, v{z}")
    E(f"v_exp_f32 v{dst}, v{dst}")
    E("s_nop 0")
    E(f"v_add_f32 v{dst}, 1.0, v{dst}")
    E(f"v_rcp_f32 v{dst}, v{dst}")
    E("s_nop 0")
vGg = vT + 58
calc_g(vGg, vT + 60)
E(f"s_lshl_b32 s{sR0}, s{sH}, 14")
E(f"s_add_u32 s{sR0}, s{sR0}, {WS_G2}")
E("v_cmp_gt_u32 vcc, 96, v0")
E(f"s_and_saveexec_b64 s[{sE}:{sE+1}], vcc")
vGo = vT + 64
vGo = vKB + 32
L("K1_GO_LOOP:")
for p in range(8):
    E(f"s_add_u32 s{sT}, s{sR0}, {p*2048}")
    E(f"buffer_load_dwordx4 {vr(vGo+4*p)}, v{vT+56}, {sr(sWS)}, s{sT} offen sc1")
    E(f"buffer_load_dwordx4 {vr(vGo+32+4*p)}, v{vT+1}, {sr(sWS)}, s{sT} offen sc1")
E("s_waitcnt vmcnt(0)")
E(f"s_mov_b64 s[{sBAD}:{sBAD+1}], 0")
for p in range(16):
    E(f"v_cmp_ne_u64 vcc, s[{sTAG}:{sTAG+1}], v[{vGo+4*p+2}:{vGo+4*p+3}]")
    E(f"s_or_b64 s[{sBAD}:{sBAD+1}], s[{sBAD}:{sBAD+1}], vcc")
E(f"s_cmp_eq_u64 s[{sBAD}:{sBAD+1}], 0")
E("s_cbranch_scc1 K1_GO_OK")
E("s_sub_u32 s3, s3, 1")
E("s_cbranch_scc1 K1_GO_OK")
E("s_sleep 1")
E("s_branch K1_GO_LOOP")
L("K1_GO_OK:")
stamp()
sm = vGo + 32
E(f"v_max3_f32 v{mm}, v{sm}, v{sm+4}, v{sm+8}")
E(f"v_max3_f32 v{mm}, v{mm}, v{sm+12}, v{sm+16}")
E(f"v_max3_f32 v{mm}, v{mm}, v{sm+20}, v{sm+24}")
E(f"v_max_f32 v{mm}, v{mm}, v{sm+28}")
for p in range(8):
    E(f"v_sub_f32 v{sm+4*p}, v{sm+4*p}, v{mm}")
for p in range(8):
    E(f"v_mul_f32 v{sm+4*p}, s{sSC}, v{sm+4*p}")
for p in range(8):
    E(f"v_exp_f32 v{sm+4*p}, v{sm+4*p}")
E("s_nop 0")
E(f"v_mul_f32 v{ll}, v{sm}, v{sm+1}")
for p in range(1, 8):
    E(f"v_fmac_f32 v{ll}, v{sm+4*p}, v{sm+4*p+1}")
E(f"v_rcp_f32 v{ll}, v{ll}")
for q in range(2):
    E(f"v_mul_f32 v{vO+q}, v{sm}, v{vGo+q}")
    for p in range(1, 8):
        E(f"v_fmac_f32 v{vO+q}, v{sm+4*p}, v{vGo+4*p+q}")
E(f"v_mul_f32 v{ll}, v{ll}, v{vGg}")
E(f"v_mul_f32 v{vO}, v{vO}, v{ll}")
E(f"v_mul_f32 v{vO+1}, v{vO+1}, v{ll}")
E(f"v_cvt_pk_bf16_f32 v{vO}, v{vO}, v{vO+1}")
E(f"v_lshlrev_b32 v{vT}, 2, v0")
E(f"ds_write_b32 v{vT}, v{vO} offset:{OBF_OFF}")
E(f"s_mov_b64 exec, s[{sE}:{sE+1}]")
E("s_branch K1_T_WAIT")
L("K1_T_H:")
E(f"v_lshlrev_b32 v{vT}, 3, v{vL}")
E(f"ds_read_b64 v[{vT+4}:{vT+5}], v{vT} offset:{GU_OFF}")
E(f"ds_read_b64 v[{vT+6}:{vT+7}], v{vT} offset:{GU_OFF + 192}")
E("s_waitcnt lgkmcnt(0)")
calc_g(vGg, vT + 60)
E(f"v_sub_f32 v{vGg}, 1.0, v{vGg}")
E(f"v_cvt_pk_bf16_f32 v{vT+4}, v{vT+4}, v{vT+5}")
E(f"v_cvt_pk_bf16_f32 v{vT+6}, v{vT+6}, v{vT+7}")
E(f"v_lshlrev_b32 v{vT+8}, 16, v{vT+4}")
E(f"v_and_b32 v{vT+9}, 0xffff0000, v{vT+4}")
E(f"v_lshlrev_b32 v{vT+10}, 16, v{vT+6}")
E(f"v_and_b32 v{vT+11}, 0xffff0000, v{vT+6}")
E(f"v_max_f32 v{vT+8}, 0, v{vT+8}")
E(f"v_max_f32 v{vT+9}, 0, v{vT+9}")
E(f"v_mul_f32 v{vT+8}, v{vT+8}, v{vT+10}")
E(f"v_mul_f32 v{vT+9}, v{vT+9}, v{vT+11}")
E(f"v_cvt_pk_bf16_f32 v{vT+8}, v{vT+8}, v{vT+9}")
E(f"v_lshlrev_b32 v{vT+10}, 16, v{vT+8}")
E(f"v_and_b32 v{vT+11}, 0xffff0000, v{vT+8}")
E(f"v_mul_f32 v{vT+10}, v{vT+10}, v{vGg}")
E(f"v_mul_f32 v{vT+11}, v{vT+11}, v{vGg}")
E(f"v_cvt_pk_bf16_f32 v{vT+8}, v{vT+10}, v{vT+11}")
E(f"v_cmp_gt_u32 vcc, 24, v{vL}")
E("s_nop 1")
E(f"v_cndmask_b32 v{vT+8}, 0, v{vT+8}, vcc")
E(f"v_lshlrev_b32 v{vT}, 2, v{vL}")
E("s_mov_b64 exec, 0xffffffff")
E(f"ds_write_b32 v{vT}, v{vT+8} offset:{OBF_OFF + 384}")
E("s_mov_b64 exec, -1")
L("K1_T_WAIT:")
E("s_waitcnt lgkmcnt(0)")
E("s_barrier")
stamp()
vB = vT + 4
E(f"v_lshrrev_b32 v{vT}, 3, v{vJ}")
E(f"v_lshl_add_u32 v{vT}, v{vT}, 2, v{vG}")
E(f"v_lshlrev_b32 v{vT}, 1, v{vT}")
E(f"s_lshl_b32 s{sT}, s{sW}, 4")
E(f"v_add_u32 v{vT}, s{sT}, v{vT}")
for k in range(4):
    E(f"ds_read_u16 v{vT+20+k}, v{vT} offset:{OBF_OFF + 128*k}")
E("s_waitcnt lgkmcnt(0)")
for k in range(4):
    E(f"v_lshl_or_b32 v{vT+20+k}, v{vT+20+k}, 16, v{vT+20+k}")
for k in range(4):
    expand(vT + 20 + k, vB + 4*k)
E("s_waitcnt vmcnt(0)")
vY = vT + 24
for k in range(4):
    mfma(vY, vKB + 8*k, vB + 4*k, None if k == 0 else vY)
    mfma(vY + 4, vKB + 8*k + 4, vB + 4*k, None if k == 0 else vY + 4)
E(f"v_lshrrev_b32 v{vT+1}, 3, v{vJ}")
E(f"s_lshl_b32 s{sT}, s{sW}, 1")
E(f"v_add_u32 v{vT+1}, s{sT}, v{vT+1}")
E(f"v_mul_u32_u24 v{vT}, {Y_STR}, v{vT+1}")
E(f"v_and_b32 v{vT+1}, 7, v{vJ}")
E(f"v_lshl_add_u32 v{vT}, v{vT+1}, 2, v{vT}")
E(f"v_lshl_add_u32 v{vT}, v{vG}, 7, v{vT}")
E("s_nop 7")
for r in range(4):
    E(f"v_cndmask_b32 v{vY+r}, v{vY+r}, v{vY+4+r}, s[{sHF}:{sHF+1}]")
for r in range(4):
    E(f"ds_write_b32 v{vT}, v{vY+r} offset:{Y_OFF + r*32}")
E("s_waitcnt lgkmcnt(0)")
E("s_barrier")
E(f"s_cmp_lg_u32 s{sW}, 0")
E("s_cbranch_scc1 K1_PUB3_DONE")
E("s_mov_b32 exec_lo, -1")
E("s_mov_b32 exec_hi, 0xff")
E(f"v_lshlrev_b32 v{vT}, 3, v0")
for s in range(16):
    E(f"ds_read_b64 v[{vT+4+2*s}:{vT+5+2*s}], v{vT} offset:{Y_OFF + s*Y_STR}")
E("s_waitcnt lgkmcnt(0)")
for st in (8, 4, 2, 1):
    for s in range(st):
        for q in range(2):
            E(f"v_add_f32 v{vT+4+2*s+q}, v{vT+4+2*s+q}, v{vT+4+2*(s+st)+q}")
E(f"v_mov_b32 v{vT+6}, s{sTAG}")
E(f"v_mov_b32 v{vT+7}, s{sTAG+1}")
E(f"v_lshlrev_b32 v{vT}, 4, v0")
E(f"s_lshl_b32 s{sT}, s{sC}, 5")
E(f"s_add_u32 s{sT}, s{sT}, s{sH}")
E(f"s_mul_i32 s{sT}, s{sT}, 640")
E(f"s_add_u32 s{sT}, s{sT}, {WS_G3}")
E(f"buffer_store_dwordx4 {vr(vT+4)}, v{vT}, {sr(sWS)}, s{sT} offen sc1")
E("s_mov_b64 exec, -1")
L("K1_PUB3_DONE:")
stamp()
E(f"s_lshl_b32 s{sT}, s{sC}, 2")
E(f"s_cmp_lg_u32 s{sT}, s{sH}")
E("s_cbranch_scc1 K1_STAMPS")
E(f"s_lshl_b32 s{sR0}, s{sC}, 5")
E(f"s_lshl_b32 s{sT}, s{sW}, 2")
E(f"s_add_u32 s{sR0}, s{sR0}, s{sT}")
E(f"s_mul_i32 s{sR0}, s{sR0}, 640")
E(f"s_add_u32 s{sR0}, s{sR0}, {WS_G3}")
E(f"v_lshlrev_b32 v{vT}, 4, v{vL}")
E("s_mov_b32 exec_lo, -1")
E("s_mov_b32 exec_hi, 0xff")
L("K1_GF_LOOP:")
for p in range(4):
    E(f"buffer_load_dwordx4 {vr(vT+4+4*p)}, v{vT}, {sr(sWS)}, s{sR0} offen offset:{640*p} sc1")
E("s_waitcnt vmcnt(0)")
E(f"s_mov_b64 s[{sBAD}:{sBAD+1}], 0")
for p in range(4):
    E(f"v_cmp_ne_u64 vcc, s[{sTAG}:{sTAG+1}], v[{vT+4+4*p+2}:{vT+4+4*p+3}]")
    E(f"s_or_b64 s[{sBAD}:{sBAD+1}], s[{sBAD}:{sBAD+1}], vcc")
E(f"s_cmp_eq_u64 s[{sBAD}:{sBAD+1}], 0")
E("s_cbranch_scc1 K1_GF_OK")
E("s_sub_u32 s3, s3, 1")
E("s_cbranch_scc1 K1_GF_OK")
E("s_sleep 1")
E("s_branch K1_GF_LOOP")
L("K1_GF_OK:")
for p in range(1, 4):
    E(f"v_add_f32 v{vT+4}, v{vT+4}, v{vT+4+4*p}")
    E(f"v_add_f32 v{vT+5}, v{vT+5}, v{vT+5+4*p}")
E(f"v_lshlrev_b32 v{vT}, 3, v{vL}")
E(f"s_mul_i32 s{sT}, s{sW}, 320")
E(f"v_add_u32 v{vT}, s{sT}, v{vT}")
E(f"ds_write_b64 v{vT}, v[{vT+4}:{vT+5}] offset:{FR_OFF}")
E("s_mov_b64 exec, -1")
E("s_waitcnt lgkmcnt(0)")
E("s_barrier")
E(f"s_cmp_lg_u32 s{sW}, 0")
E("s_cbranch_scc1 K1_STAMPS")
E("s_mov_b32 exec_lo, -1")
E("s_mov_b32 exec_hi, 0xff")
E(f"v_lshlrev_b32 v{vT}, 3, v{vL}")
for w in range(8):
    E(f"ds_read_b64 v[{vT+4+2*w}:{vT+5+2*w}], v{vT} offset:{FR_OFF + 320*w}")
E(f"s_mov_b32 s{sWG}, s28")
E(f"s_and_b32 s{sWG+1}, s29, 0xffff")
E(f"s_mov_b32 s{sWG+2}, 1280")
E(f"s_mov_b32 s{sWG+3}, 0x00020000")
E("s_waitcnt lgkmcnt(0)")
for st in (4, 2, 1):
    for s in range(st):
        for q in range(2):
            E(f"v_add_f32 v{vT+4+2*s+q}, v{vT+4+2*s+q}, v{vT+4+2*(s+st)+q}")
E(f"v_cvt_pk_bf16_f32 v{vT+4}, v{vT+4}, v{vT+5}")
E(f"v_lshlrev_b32 v{vT}, 2, v{vL}")
E(f"s_mul_i32 s{sT}, s{sC}, 160")
E(f"buffer_store_dword v{vT+4}, v{vT}, {sr(sWG)}, s{sT} offen")
E(f"s_cmp_lg_u32 s{sC}, 0")
E("s_cbranch_scc1 K1_NOEP")
E("s_mov_b64 exec, 1")
E(f"v_mov_b32 v{vT+6}, s{sTAG}")
E(f"v_mov_b32 v{vT+7}, s{sTAG+1}")
E(f"v_mov_b32 v{vT}, 0")
E(f"buffer_store_dwordx2 v[{vT+6}:{vT+7}], v{vT}, {sr(sWS)}, 0 offen")
L("K1_NOEP:")
E("s_mov_b64 exec, -1")
L("K1_STAMPS:")
if DBG:
    E("s_mov_b64 exec, -1")
    E("s_waitcnt vmcnt(0) lgkmcnt(0)")
    E(f"s_cmp_lg_u32 s{sW}, 0")
    E("s_cbranch_scc1 K1_END")
    E("s_cmp_lg_u32 s93, 0")
    E("s_cbranch_scc1 K1_END")
    E("s_memrealtime s[2:3]")
    E("s_memtime s[6:7]")
    E("s_waitcnt lgkmcnt(0)")
    E("s_sub_u32 s6, s6, s95")
    E("s_sub_u32 s2, s2, s94")
    E("v_mov_b32 v10, 0")
    E("v_writelane_b32 v10, s6, 0")
    E("v_writelane_b32 v10, s2, 1")
    for i in range(1, stamp_n[0]):
        r = stamp_regs[i]
        E(f"s_sub_u32 s6, s{r}, s94")
        E(f"v_writelane_b32 v10, s6, {i+1}")
    E("v_lshlrev_b32 v11, 2, v1")
    E("v_cmp_gt_u32 vcc, 16, v1")
    E("s_and_saveexec_b64 s[86:87], vcc")
    E("global_store_dword v11, v10, s[30:31]")
elif ST:
    E("s_mov_b64 exec, -1")
    E("s_waitcnt vmcnt(0) lgkmcnt(0)")
    E(f"s_cmp_lg_u32 s{sW}, {STW}")
    E("s_cbranch_scc1 K1_END")
    E("s_memrealtime s[2:3]")
    E("s_waitcnt lgkmcnt(0)")
    regs = stamp_regs[:stamp_n[0]]
    for i, r in enumerate(regs):
        E(f"v_writelane_b32 v10, s{r}, {2*i}")
        E(f"v_writelane_b32 v10, s{r+1}, {2*i+1}")
    n = len(regs)
    E(f"v_writelane_b32 v10, s2, {2*n}")
    E(f"v_writelane_b32 v10, s3, {2*n+1}")
    E("v_lshlrev_b32 v11, 2, v1")
    E(f"s_lshl_b32 s39, s93, 7")
    E("s_add_u32 s39, s39, 0x300000")
    E(f"v_cmp_gt_u32 vcc, {2*n+2}, v1")
    E("s_and_saveexec_b64 s[86:87], vcc")
    E(f"buffer_store_dword v10, v11, {sr(sWS)}, s39 offen")
L("K1_END:")
E("s_endpgm")

L('.section .rodata,"a"')
L(".p2align 6")
L(f".amdhsa_kernel {K1}")
L(f"  .amdhsa_next_free_vgpr 256")
L(f"  .amdhsa_next_free_sgpr 102")
L(f"  .amdhsa_accum_offset 256")
L("  .amdhsa_group_segment_fixed_size 0")
L("  .amdhsa_kernarg_size 104")
L("  .amdhsa_user_sgpr_count 2")
L("  .amdhsa_user_sgpr_kernarg_segment_ptr 1")
L("  .amdhsa_system_sgpr_workgroup_id_x 1")
L(".end_amdhsa_kernel")
open(sys.argv[1], 'w').write('\n'.join(out) + '\n')
```

```python
import sys, struct

NAME = "gated_mix__sliding_block_cached__glu_gated_reglu__decode"
out = []
def E(s): out.append("    " + s)
def L(s): out.append(s)

HEADER = open('cdna_kernels/' + NAME + '.s.ref').read().split('\n')
hdr = []
for ln in HEADER:
    if ln.startswith('; @launch') or ln.startswith('.amdgcn_target'):
        break
    hdr.append(ln)

opts = (sys.argv[2] if len(sys.argv) > 2 else "").split(',')
def opt(name, default=None):
    for o in opts:
        if o == name: return True
        if o.startswith(name + '='): return o.split('=')[1]
    return default
NT = " nt" if not opt('nont') else ""
KNT = "" if opt('kplain') else NT
VNT = "" if opt('vplain') else NT
WNT = " nt" if (opt('wnt') or opt('allnt')) else ""
ANT = " nt" if opt('allnt') else ""
ST = opt('st') or opt('dbg')
DBG = opt('dbg')
STW = int(opt('stw', 0))
NK0 = int(opt('nk0', 8))
NV1 = int(opt('nv1', 15))

P0_OFF = 0;      P0_STR = 1312
P2_OFF = 16 * P0_STR;  P2_STR = 800
Y_OFF  = P2_OFF + 16 * P2_STR; Y_STR = 544
QBF_OFF = Y_OFF + 16 * Y_STR
GU_OFF  = QBF_OFF + 384
OBF_OFF = GU_OFF + 384
ST_OFF  = OBF_OFF + 512
Z_OFF   = ST_OFF + 64
FR_OFF  = Z_OFF + 64
LDS_SZ  = FR_OFF + 8 * 320
assert LDS_SZ <= 65536

WS_G0 = 0x1000
WS_G2 = 0x100000
WS_G3 = 0x200000

SCALE_LOG2E = (192.0 ** -0.5) * 1.4426950408889634
def f32bits(x): return struct.unpack('<I', struct.pack('<f', x))[0]

K1 = NAME + "_kernel"
L('\n'.join(hdr))
L(f"; @launch grid=(256,1,1) block=(512,1,1) lds=65536")
L('.amdgcn_target "amdgcn-amd-amdhsa--gfx950"')
L(".text")
L(f".globl {K1}")
L(".p2align 8")
L(f".type {K1},@function")
L(f"{K1}:")

vL, vG, vJ = 1, 2, 3
vM = [4, 5, 6, 7]
vA = 8
vKB = 40
vVB = 136
vQ = 232

sW, sXCD, sIDX, sH, sC, sT = 34, 35, 36, 37, 38, 39
sK, sV, sWQ, sWO, sWG, sWU, sWD, sX, sWS = 40, 44, 48, 52, 56, 60, 64, 68, 72
sHF = 78
sV2 = 80
sOFF = 82
sSC = 83
sROW = 85
sE = 86
sR0 = 88
sTAG = 4
sBAD = 6
sGW = 76
stamp_regs = [94] + [10, 12, 14, 16, 18, 20, 22, 24, 96, 98, 100, 32, 8]
stamp_n = [0]
def stamp():
    if not ST: return
    r = stamp_regs[stamp_n[0]]; stamp_n[0] += 1
    E(f"s_memrealtime s[{r}:{r+1}]")
def vr(a, n=4): return f"v[{a}:{a+n-1}]"
def sr(a, n=4): return f"s[{a}:{a+n-1}]"

vmq = []
def VM(s, tag):
    E(s); vmq.append(tag)
def WAIT(tag):
    idx = max(i for i, t in enumerate(vmq) if t == tag)
    n = len(vmq) - 1 - idx
    assert n <= 63, n
    E(f"s_waitcnt vmcnt({n})")

def srd(dst, plo, off_s, nrec):
    E(f"s_add_u32 s{dst}, s{plo}, s{off_s}")
    E(f"s_addc_u32 s{dst+1}, s{plo+1}, 0")
    E(f"s_and_b32 s{dst+1}, s{dst+1}, 0xffff")
    E(f"s_mov_b32 s{dst+2}, {nrec}")
    E(f"s_mov_b32 s{dst+3}, 0x00020000")

def dpp_reduce(regs):
    for ctl in ["row_shr:1", "row_shr:2", "row_shr:4", "row_shr:8"]:
        for r in regs:
            E(f"v_add_f32_dpp v{r}, v{r}, v{r} {ctl} row_mask:0xf bank_mask:0xf bound_ctrl:0")
        if len(regs) < 3: E("s_nop 1")
    for r in regs:
        E(f"v_add_f32_dpp v{r}, v{r}, v{r} row_bcast:15 row_mask:0xa bank_mask:0xf")
    if len(regs) < 3: E("s_nop 1")
    for r in regs:
        E(f"v_add_f32_dpp v{r}, v{r}, v{r} row_bcast:31 row_mask:0xc bank_mask:0xf")

def expand(dup, dst):
    for w in range(4):
        E(f"v_and_b32 v{dst+w}, v{dup}, v{vM[w]}")

def mfma(d, a, b, c):
    E(f"v_mfma_f32_16x16x32_bf16 {vr(d)}, {vr(a)}, {vr(b)}, {'0' if c is None else vr(c)}")

E("s_cmp_ge_u32 s2, 256")
E("s_cbranch_scc1 K1_END")
if ST: E("s_mov_b32 s93, s2")
stamp()
if DBG: E("s_memtime s[6:7]")
E("s_load_dwordx16 s[8:23], s[0:1], 0")
E("s_load_dwordx8 s[24:31], s[0:1], 64")
E("s_load_dwordx2 s[32:33], s[0:1], 96")
E(f"v_and_b32 v{vL}, 63, v0")
E(f"v_bfe_u32 v{vG}, v0, 4, 2")
E(f"v_and_b32 v{vJ}, 15, v0")
E(f"v_lshrrev_b32 v{vA}, 6, v0")
E("s_nop 0")
E(f"v_readfirstlane_b32 s{sW}, v{vA}")
E(f"s_and_b32 s{sXCD}, s2, 7")
E(f"s_lshr_b32 s{sIDX}, s2, 3")
E(f"s_and_b32 s{sH}, s{sIDX}, 3")
E(f"s_lshl_b32 s{sT}, s{sXCD}, 2")
E(f"s_add_u32 s{sH}, s{sH}, s{sT}")
E(f"s_lshr_b32 s{sC}, s{sIDX}, 2")
E(f"s_lshl_b32 s{sROW}, s{sH}, 3")
E(f"s_add_u32 s{sROW}, s{sROW}, s{sC}")
E("s_mov_b32 s3, 0x40000")
E(f"s_mov_b32 s{sHF}, 0xFF00FF00")
E(f"s_mov_b32 s{sHF+1}, 0xFF00FF00")
E(f"s_mov_b32 s{sV2}, 0x00FF00FF")
E(f"s_mov_b32 s{sV2+1}, 0xFF00FF00")
E(f"s_mov_b32 s{sSC}, 0x{f32bits(SCALE_LOG2E):08x}")
t0, t1, t2, t3 = vA, vA+1, vA+2, vA+3
E(f"v_and_b32 v{t0}, 1, v{vJ}")
E(f"v_lshlrev_b32 v{t0}, 4, v{t0}")
E(f"v_mov_b32 v{t1}, 0xffff")
E(f"v_lshlrev_b32 v{t1}, v{t0}, v{t1}")
E(f"v_bfe_u32 v{t2}, v{vJ}, 1, 2")
for w in range(4):
    E(f"v_cmp_eq_u32 vcc, {w}, v{t2}")
    E("s_nop 1")
    E(f"v_cndmask_b32 v{vM[w]}, 0, v{t1}, vcc")
vHF, vGH, vJ7 = vA, vA+1, vA+2
E(f"v_lshrrev_b32 v{vHF}, 3, v{vJ}")
E(f"v_lshl_add_u32 v{vGH}, v{vHF}, 2, v{vG}")
E(f"v_and_b32 v{vJ7}, 7, v{vJ}")
oWA, oWA2, oWB, oG, oX, oKa, oKb, oGX = 32, 33, 34, 35, 36, 38, 39, 37
E(f"v_mul_u32_u24 v{oWA}, 12288, v{vG}")
E(f"v_lshl_add_u32 v{oWA}, v{vJ}, 4, v{oWA}")
E(f"v_add_u32 v{oWA2}, 49152, v{oWA}")
E(f"v_mul_u32_u24 v{oWB}, 12288, v{vGH}")
E(f"v_lshl_add_u32 v{oWB}, v{vJ7}, 4, v{oWB}")
E(f"v_add_u32 v{oWB}, 256, v{oWB}")
E(f"v_mul_u32_u24 v{oG}, 3072, v{vGH}")
E(f"v_lshl_add_u32 v{oG}, v{vJ7}, 4, v{oG}")
E(f"v_mov_b32 v{t3}, 0x40000000")
E(f"v_cmp_gt_u32 vcc, 6, v{vJ7}")
E("s_nop 1")
E(f"v_cndmask_b32 v{oG}, v{t3}, v{oG}, vcc")
E(f"v_lshlrev_b32 v{oX}, 1, v{vGH}")
E(f"v_lshlrev_b32 v{oGX}, 2, v0")
E(f"v_and_b32 v{oKa}, 3, v{vJ}")
E(f"v_lshlrev_b32 v{oKa}, 3, v{oKa}")
E(f"v_bfe_u32 v{t3}, v{vJ}, 2, 1")
E(f"v_add_u32 v{oKa}, v{oKa}, v{t3}")
E(f"v_mul_u32_u24 v{oKa}, 384, v{oKa}")
E(f"v_lshl_add_u32 v{oKa}, v{vG}, 4, v{oKa}")
E(f"v_lshlrev_b32 v{t3}, 6, v{vHF}")
E(f"v_sub_u32 v{oKb}, v{oKa}, v{t3}")
E(f"v_add_u32 v{oKb}, 64, v{oKb}")
E(f"v_add_u32 v{oKa}, v{oKa}, v{t3}")
E("s_waitcnt lgkmcnt(0)")
if DBG: E("s_mov_b32 s95, s6")
E(f"s_load_dwordx2 s[{sTAG}:{sTAG+1}], s[32:33], 0")
E(f"s_mul_i32 s{sT}, s{sH}, 12582912")
E(f"s_mul_i32 s{sOFF}, s{sC}, 196608")
E(f"s_add_u32 s{sT}, s{sT}, s{sOFF}")
E(f"s_mul_i32 s{sOFF}, s{sW}, 24576")
E(f"s_add_u32 s{sT}, s{sT}, s{sOFF}")
E(f"s_add_u32 s{sT}, s{sT}, 11010048")
srd(sK, 10, sT, 24576)
srd(sV, 12, sT, 24576)
E(f"s_mul_i32 s{sR0}, s{sC}, 80")
E(f"s_lshl_b32 s{sOFF}, s{sW}, 3")
E(f"s_add_u32 s{sR0}, s{sR0}, s{sOFF}")
E(f"s_mul_i32 s{sT}, s{sR0}, 12288")
E(f"s_mul_i32 s{sOFF}, s{sH}, 384")
E(f"s_add_u32 s{sT}, s{sT}, s{sOFF}")
srd(sWQ, 14, sT, 72 * 12288)
E(f"s_mul_i32 s{sT}, s{sR0}, 3072")
E(f"s_mul_i32 s{sOFF}, s{sH}, 96")
E(f"s_add_u32 s{sT}, s{sT}, s{sOFF}")
srd(sWG, 20, sT, 72 * 3072)
srd(sWU, 22, sT, 72 * 3072)
E(f"s_lshl_b32 s{sR0+1}, s{sR0}, 1")
E(f"s_mov_b32 s{sT}, 0")
srd(sX, 8, sT, 1280)
srd(sWS, 32, sT, 0x400000)
E(f"s_cmp_lt_u32 s{sW}, 2")
E(f"s_cselect_b32 s{sR0+2}, 786432, 0x40000000")
E(f"s_cselect_b32 s{sR0+3}, 196608, 0x40000000")
GOFF = [0, 2, 6, 4]
def kload(n):
    Q, gi, s = n // 12, (n // 3) % 4, n % 3
    b = vKB + n * 4
    va = oKa if gi in (0, 2) else oKb
    so = f"s{sOFF}" if Q else "0"
    VM(f"buffer_load_dwordx4 {vr(b)}, v{va}, {sr(sK)}, {so} offen offset:{GOFF[gi]*384+s*128}{KNT}", f"K{Q}{gi}")
vX0, vX1, vGX, vGW = vA+4, vA+5, vA+6, vA+7
VM(f"buffer_load_ushort v{vX0}, v{oX}, {sr(sX)}, s{sR0+1} offen", "X")
VM(f"buffer_load_ushort v{vX1}, v{oX}, {sr(sX)}, s{sR0+1} offen offset:128", "X")
def p0reg(k, q): return vVB + 20 * k + 4 * q
VM(f"buffer_load_dwordx4 {vr(p0reg(0,0))}, v{oWA}, {sr(sWQ)}, 0 offen{WNT}", "P0")
VM(f"buffer_load_dwordx4 {vr(p0reg(0,1))}, v{oWA2}, {sr(sWQ)}, 0 offen{WNT}", "P0")
VM(f"buffer_load_dwordx4 {vr(p0reg(0,2))}, v{oWB}, {sr(sWQ)}, 0 offen{WNT}", "P0")
VM(f"buffer_load_dwordx4 {vr(p0reg(0,3))}, v{oG}, {sr(sWG)}, 0 offen{ANT}", "P0")
VM(f"buffer_load_dwordx4 {vr(p0reg(0,4))}, v{oG}, {sr(sWU)}, 0 offen{ANT}", "P0")
for o_, s_ in ((oWA, sR0+2), (oWA2, sR0+2), (oWB, sR0+2), (oG, sR0+3)):
    E(f"v_add_u32 v{o_}, s{s_}, v{o_}")
VM(f"buffer_load_dwordx4 {vr(p0reg(1,0))}, v{oWA}, {sr(sWQ)}, 0 offen{WNT}", "P1")
VM(f"buffer_load_dwordx4 {vr(p0reg(1,1))}, v{oWA2}, {sr(sWQ)}, 0 offen{WNT}", "P1")
VM(f"buffer_load_dwordx4 {vr(p0reg(1,2))}, v{oWB}, {sr(sWQ)}, 0 offen{WNT}", "P1")
VM(f"buffer_load_dwordx4 {vr(p0reg(1,3))}, v{oG}, {sr(sWG)}, 0 offen{ANT}", "P1")
VM(f"buffer_load_dwordx4 {vr(p0reg(1,4))}, v{oG}, {sr(sWU)}, 0 offen{ANT}", "P1")
E(f"s_mov_b32 s{sWO}, s26")
E(f"s_and_b32 s{sWO+1}, s27, 0xffff")
E(f"s_mov_b32 s{sWO+2}, 1280")
E(f"s_mov_b32 s{sWO+3}, 0x00020000")
VM(f"buffer_load_dword v{vGX}, v{oGX}, {sr(sX)}, 0 offen", "G")
VM(f"buffer_load_dword v{vGW}, v{oGX}, {sr(sWO)}, 0 offen", "G")
E(f"s_mul_i32 s{sT}, s{sH}, 245760")
E(f"s_mul_i32 s{sOFF}, s{sC}, 160")
E(f"s_add_u32 s{sT}, s{sT}, s{sOFF}")
srd(sWO, 16, sT, 245760 - 1120)
E(f"s_mul_i32 s{sT}, s{sH}, 61440")
E(f"s_add_u32 s{sT}, s{sT}, s{sOFF}")
srd(sWD, 24, sT, 61440 - 1120)
E(f"s_mov_b32 s{sOFF}, 12288")
for n in range(NK0): kload(n)
stamp()
vAC = 16
vBX = vQ
WAIT("X")
E(f"v_lshl_or_b32 v{vX0}, v{vX0}, 16, v{vX0}")
E(f"v_lshl_or_b32 v{vX1}, v{vX1}, 16, v{vX1}")
expand(vX0, vBX)
expand(vX1, vBX + 4)
WAIT("P0")
for q in range(5):
    mfma(vAC + 4*q, p0reg(0, q), vBX, None)
WAIT("P1")
for q in range(5):
    mfma(vAC + 4*q, p0reg(1, q), vBX + 4, vAC + 4*q)
WAIT("G")
E(f"v_lshlrev_b32 v{vX0}, 16, v{vGX}")
E(f"v_and_b32 v{vGX}, 0xffff0000, v{vGX}")
E(f"v_lshlrev_b32 v{vX1}, 16, v{vGW}")
E(f"v_and_b32 v{vGW}, 0xffff0000, v{vGW}")
E(f"v_mul_f32 v{vX0}, v{vX0}, v{vX1}")
E(f"v_fmac_f32 v{vX0}, v{vGX}, v{vGW}")
E("s_nop 1")
dpp_reduce([vX0])
a1, a2, tt = vA, vA+1, vA+2
E(f"v_lshrrev_b32 v{tt}, 3, v{vJ}")
E(f"s_lshl_b32 s{sT}, s{sW}, 1")
E(f"v_add_u32 v{tt}, s{sT}, v{tt}")
E(f"v_mul_u32_u24 v{a1}, {P0_STR}, v{tt}")
E(f"v_and_b32 v{tt}, 7, v{vJ}")
E(f"v_lshl_add_u32 v{a1}, v{tt}, 2, v{a1}")
E(f"v_and_b32 v{tt}, 1, v{vG}")
E(f"v_lshl_add_u32 v{a2}, v{tt}, 7, v{a1}")
E(f"v_lshl_add_u32 v{a1}, v{vG}, 7, v{a1}")
E(f"s_lshl_b32 s{sT}, s{sW}, 2")
E(f"v_mov_b32 v{tt}, s{sT}")
E("s_mov_b32 exec_lo, 0")
E("s_mov_b32 exec_hi, 0x80000000")
E(f"ds_write_b32 v{tt}, v{vX0} offset:{Z_OFF}")
E("s_mov_b64 exec, -1")
E("s_nop 3")
for r in range(4):
    E(f"v_cndmask_b32 v{vAC+r}, v{vAC+r}, v{vAC+4+r}, s[{sHF}:{sHF+1}]")
for r in range(4):
    E(f"ds_write_b32 v{a1}, v{vAC+r} offset:{P0_OFF + r*32}")
E(f"s_mov_b64 exec, s[{sV2}:{sV2+1}]")
for q in range(3):
    for r in range(4):
        E(f"ds_write_b32 v{a2}, v{vAC+8+4*q+r} offset:{P0_OFF + 512 + 256*q + r*32}")
E("s_mov_b64 exec, -1")
E("s_waitcnt lgkmcnt(0)")
E("s_barrier")
stamp()
E(f"s_add_u32 s{sTAG}, s{sTAG}, 1")
E(f"s_addc_u32 s{sTAG+1}, s{sTAG+1}, 0")
E(f"s_cmp_ge_u32 s{sW}, 3")
E("s_cbranch_scc1 K1_PUB0_DONE")
E("v_cmp_gt_u32 vcc, 144, v0")
E(f"s_and_saveexec_b64 s[{sE}:{sE+1}], vcc")
E(f"v_lshlrev_b32 v{vA}, 3, v0")
E(f"v_add_u32 v{vA+1}, 64, v{vA}")
E("v_cmp_gt_u32 vcc, 120, v0")
E("s_nop 1")
E(f"v_cndmask_b32 v{vA}, v{vA+1}, v{vA}, vcc")
vR = vQ - 36
for s in range(16):
    E(f"ds_read_b64 v[{vR+2*s}:{vR+2*s+1}], v{vA} offset:{P0_OFF + s*P0_STR}")
E("s_waitcnt lgkmcnt(0)")
for st in (8, 4, 2, 1):
    for s in range(st):
        for q in range(2):
            E(f"v_add_f32 v{vR+2*s+q}, v{vR+2*s+q}, v{vR+2*(s+st)+q}")
E(f"v_mov_b32 v{vR+2}, s{sTAG}")
E(f"v_mov_b32 v{vR+3}, s{sTAG+1}")
E(f"v_lshlrev_b32 v{vA}, 4, v0")
E(f"s_mul_i32 s{sT}, s{sROW}, 2304")
E(f"s_add_u32 s{sT}, s{sT}, {WS_G0}")
E(f"buffer_store_dwordx4 {vr(vR)}, v{vA}, {sr(sWS)}, s{sT} offen sc1")
E(f"s_mov_b64 exec, s[{sE}:{sE+1}]")
E("s_nop 1")
L("K1_PUB0_DONE:")
for n in range(NK0, 24): kload(n)
vGa = vR
E(f"s_mul_i32 s{sT}, s{sW}, 288")
E(f"v_lshlrev_b32 v{vA}, 4, v{vL}")
E(f"v_add_u32 v{vA}, s{sT}, v{vA}")
E(f"s_mul_i32 s{sR0}, s{sH}, {8*2304}")
E(f"s_add_u32 s{sR0}, s{sR0}, {WS_G0}")
E("s_mov_b64 exec, 0x3ffff")
def gather_q():
    for p in range(8):
        E(f"s_add_u32 s{sT}, s{sR0}, {p*2304}")
        VM(f"buffer_load_dwordx4 {vr(vGa+4*p)}, v{vA}, {sr(sWS)}, s{sT} offen sc1", "GQ")
gather_q()
E("s_mov_b64 exec, -1")
oVA, oVB = 38, 39
E(f"v_mul_u32_u24 v{oVA}, 384, v{vG}")
E(f"v_lshl_add_u32 v{oVA}, v{vJ}, 4, v{oVA}")
E(f"v_lshrrev_b32 v{vA+1}, 3, v{vJ}")
E(f"v_lshl_add_u32 v{vA+1}, v{vA+1}, 2, v{vG}")
E(f"v_mul_u32_u24 v{oVB}, 384, v{vA+1}")
E(f"v_and_b32 v{vA+1}, 7, v{vJ}")
E(f"v_lshl_add_u32 v{oVB}, v{vA+1}, 4, v{oVB}")
E(f"v_add_u32 v{oVB}, 256, v{oVB}")
def vload(n):
    k, q = n // 3, n % 3
    b = vVB + 12 * k + 4 * q
    E(f"s_mov_b32 s{sOFF}, {k*3072}")
    if q < 2:
        VM(f"buffer_load_dwordx4 {vr(b)}, v{oVA}, {sr(sV)}, s{sOFF} offen offset:{q*1536}{VNT}", f"V{k}")
    else:
        VM(f"buffer_load_dwordx4 {vr(b)}, v{oVB}, {sr(sV)}, s{sOFF} offen{VNT}", f"V{k}")
for n in range(NV1): vload(n)
stamp()
WAIT("GQ")
E("s_mov_b64 exec, 0x3ffff")
L("K1_GQ_CHECK:")
E(f"s_mov_b64 s[{sBAD}:{sBAD+1}], 0")
for p in range(8):
    E(f"v_cmp_ne_u64 vcc, s[{sTAG}:{sTAG+1}], v[{vGa+4*p+2}:{vGa+4*p+3}]")
    E(f"s_or_b64 s[{sBAD}:{sBAD+1}], s[{sBAD}:{sBAD+1}], vcc")
E(f"s_cmp_eq_u64 s[{sBAD}:{sBAD+1}], 0")
E("s_cbranch_scc1 K1_GQ_OK")
E("s_sub_u32 s3, s3, 1")
E("s_cbranch_scc1 K1_GQ_OK")
E("s_sleep 2")
sv = list(vmq)
gather_q()
vmq[:] = sv
E("s_waitcnt vmcnt(0)")
E("s_branch K1_GQ_CHECK")
L("K1_GQ_OK:")
for p in range(1, 8):
    E(f"v_add_f32 v{vGa}, v{vGa}, v{vGa+4*p}")
    E(f"v_add_f32 v{vGa+1}, v{vGa+1}, v{vGa+4*p+1}")
E(f"s_mul_i32 s{sT}, s{sW}, 18")
E(f"v_add_u32 v{vA}, s{sT}, v{vL}")
E(f"v_cvt_pk_bf16_f32 v{vA+1}, v{vGa}, v{vGa+1}")
E(f"v_lshlrev_b32 v{vA+2}, 2, v{vA}")
E(f"v_lshlrev_b32 v{vA+3}, 3, v{vA}")
E(f"v_cmp_gt_u32 vcc, 96, v{vA}")
E(f"s_and_saveexec_b64 s[{sE}:{sE+1}], vcc")
E(f"ds_write_b32 v{vA+2}, v{vA+1} offset:{QBF_OFF}")
E(f"s_andn2_b64 exec, s[{sE}:{sE+1}], vcc")
E(f"ds_write_b64 v{vA+3}, v[{vGa}:{vGa+1}] offset:{GU_OFF - 96*8}")
E("s_mov_b64 exec, -1")
E("s_waitcnt lgkmcnt(0)")
E("s_barrier")
stamp()
E(f"v_lshrrev_b32 v{vA+1}, 3, v{vJ}")
E(f"v_lshlrev_b32 v{vA+1}, 6, v{vA+1}")
E(f"v_lshl_add_u32 v{vA}, v{vG}, 4, v{vA+1}")
for s in range(3):
    E(f"ds_read_b128 {vr(vQ+4*s)}, v{vA} offset:{QBF_OFF + 128*s}")
E(f"v_xor_b32 v{vA+2}, 40, v{vL}")
E(f"v_lshlrev_b32 v{vA+2}, 2, v{vA+2}")
E("s_waitcnt lgkmcnt(0)")
vS = 16
vD = 16
vF = vQ + 12
for Q in range(2):
    for gi in range(4):
        WAIT(f"K{Q}{gi}")
        for s in range(3):
            b = vKB + ((Q * 4 + gi) * 3 + s) * 4
            mfma(vD + 4*gi, b, vQ + 4*s, None if s == 0 else vD + 4*gi)
    E("s_nop 7")
    for r in range(4):
        a, b_, c_, d = vD + r, vD + 4 + r, vD + 8 + r, vD + 12 + r
        u1, u2 = vA + 4, vA + 5
        E(f"v_cndmask_b32 v{u1}, v{b_}, v{a}, s[{sV2}:{sV2+1}]")
        E(f"v_cndmask_b32 v{u2}, v{d}, v{c_}, s[{sV2}:{sV2+1}]")
        E(f"v_cndmask_b32 v{vF+4*Q+r}, v{u1}, v{u2}, s[{sHF}:{sHF+1}]")
        E(f"v_cndmask_b32 v{a}, v{u2}, v{u1}, s[{sHF}:{sHF+1}]")
    for r in range(4):
        E(f"ds_bpermute_b32 v{vD+4+r}, v{vA+2}, v{vD+r}")
    E("s_waitcnt lgkmcnt(0)")
    for r in range(4):
        E(f"v_add_f32 v{vF+4*Q+r}, v{vF+4*Q+r}, v{vD+4+r}")
for r in range(8):
    E(f"v_mov_b32 v{vS+r}, v{vF+r}")
stamp()
for n in range(NV1, 24): vload(n)
oWO = vA
E(f"v_mul_u32_u24 v{oWO}, 1280, v{vG}")
E(f"v_lshl_add_u32 v{oWO}, v{vJ}, 4, v{oWO}")
E(f"v_mov_b32 v{vA+1}, 0x40000000")
E(f"v_cmp_gt_u32 vcc, 10, v{vJ}")
E("s_nop 1")
E(f"v_cndmask_b32 v{oWO}, v{vA+1}, v{oWO}, vcc")
E(f"s_mul_i32 s{sOFF}, s{sW}, 10240")
for k in range(3):
    E(f"s_add_u32 s{sT}, s{sOFF}, {k*81920}")
    VM(f"buffer_load_dwordx4 {vr(vKB+8*k)}, v{oWO}, {sr(sWO)}, s{sT} offen{ANT}", "WO")
    E(f"s_add_u32 s{sT}, s{sOFF}, {k*81920 + 5120}")
    VM(f"buffer_load_dwordx4 {vr(vKB+8*k+4)}, v{oWO}, {sr(sWO)}, s{sT} offen{ANT}", "WO")
E(f"s_cmp_lt_u32 s{sW}, 6")
E(f"s_cselect_b32 s{sT}, 0, 0x40000000")
E(f"v_add_u32 v{vA+1}, s{sT}, v{oWO}")
E(f"v_or_b32 v{vA+1}, v{vA+1}, v{oWO}")
VM(f"buffer_load_dwordx4 {vr(vKB+24)}, v{vA+1}, {sr(sWD)}, s{sOFF} offen{ANT}", "WO")
E(f"s_add_u32 s{sT}, s{sOFF}, 5120")
VM(f"buffer_load_dwordx4 {vr(vKB+28)}, v{vA+1}, {sr(sWD)}, s{sT} offen{ANT}", "WO")
t = vA + 1
E(f"v_max3_f32 v{t}, v{vS}, v{vS+1}, v{vS+2}")
E(f"v_max3_f32 v{t}, v{t}, v{vS+3}, v{vS+4}")
E(f"v_max3_f32 v{t}, v{t}, v{vS+5}, v{vS+6}")
E(f"v_max_f32 v{t}, v{t}, v{vS+7}")
E("s_nop 1")
E(f"v_max_f32_dpp v{t}, v{t}, v{t} row_ror:8 row_mask:0xf bank_mask:0xf")
E("s_nop 1")
for q in range(4):
    E(f"v_readlane_b32 s{sR0+q}, v{t}, {16*q}")
E("s_nop 1")
E(f"v_mov_b32 v{t}, s{sR0}")
E(f"v_max_f32 v{t}, s{sR0+1}, v{t}")
E(f"v_max_f32 v{t}, s{sR0+2}, v{t}")
E(f"v_max_f32 v{t}, s{sR0+3}, v{t}")
E(f"s_lshl_b32 s{sT}, s{sW}, 2")
E(f"v_mov_b32 v{t+1}, s{sT}")
E(f"ds_write_b32 v{t+1}, v{t} offset:{ST_OFF}")
E(f"v_mul_f32 v{t}, s{sSC}, v{t}")
for r in range(8):
    E(f"v_fma_f32 v{vS+r}, v{vS+r}, s{sSC}, -v{t}")
for r in range(8):
    E(f"v_exp_f32 v{vS+r}, v{vS+r}")
E("s_nop 0")
t2 = vA + 3
E(f"v_add_f32 v{t2}, v{vS}, v{vS+1}")
for r in range(2, 8):
    E(f"v_add_f32 v{t2}, v{t2}, v{vS+r}")
E("s_nop 1")
E(f"v_add_f32_dpp v{t2}, v{t2}, v{t2} row_ror:8 row_mask:0xf bank_mask:0xf")
E("s_nop 1")
for q in range(4):
    E(f"v_readlane_b32 s{sR0+q}, v{t2}, {16*q}")
E("s_nop 1")
E(f"v_mov_b32 v{t2}, s{sR0}")
E(f"v_add_f32 v{t2}, s{sR0+1}, v{t2}")
E(f"v_add_f32 v{t2}, s{sR0+2}, v{t2}")
E(f"v_add_f32 v{t2}, s{sR0+3}, v{t2}")
E(f"ds_write_b32 v{t+1}, v{t2} offset:{ST_OFF+32}")
for r in range(8):
    E(f"v_cvt_pk_bf16_f32 v{vS+r}, v{vS+r}, v{vS+r}")
E("s_waitcnt lgkmcnt(0)")
stamp()
vPA = vS + 8
vBP = vA
for k in range(8):
    expand(vS + k, vBP)
    WAIT(f"V{k}")
    E("s_nop 0")
    b = vVB + 12 * k
    for q in range(3):
        mfma(vPA + 4*q, b + 4*q, vBP, None if k == 0 else vPA + 4*q)
stamp()
a1, a2, tt = vS, vS+1, vS+2
E(f"v_lshrrev_b32 v{tt}, 3, v{vJ}")
E(f"s_lshl_b32 s{sT}, s{sW}, 1")
E(f"v_add_u32 v{tt}, s{sT}, v{tt}")
E(f"v_mul_u32_u24 v{a1}, {P2_STR}, v{tt}")
E(f"v_and_b32 v{tt}, 7, v{vJ}")
E(f"v_lshl_add_u32 v{a1}, v{tt}, 2, v{a1}")
E(f"v_and_b32 v{tt}, 1, v{vG}")
E(f"v_lshl_add_u32 v{a2}, v{tt}, 7, v{a1}")
E(f"v_lshl_add_u32 v{a1}, v{vG}, 7, v{a1}")
E("s_nop 7")
for r in range(4):
    E(f"v_cndmask_b32 v{vPA+r}, v{vPA+r}, v{vPA+4+r}, s[{sHF}:{sHF+1}]")
for r in range(4):
    E(f"ds_write_b32 v{a1}, v{vPA+r} offset:{P2_OFF + r*32}")
E(f"s_mov_b64 exec, s[{sV2}:{sV2+1}]")
for r in range(4):
    E(f"ds_write_b32 v{a2}, v{vPA+8+r} offset:{P2_OFF + 512 + r*32}")
E("s_mov_b64 exec, -1")
E("s_waitcnt lgkmcnt(0)")
E("s_barrier")
stamp()
vT = vVB
E(f"v_mov_b32 v{vT+1}, 0")
for w in range(5):
    E(f"ds_read_b32 v{vT+60+w}, v{vT+1} offset:{Z_OFF + 4*w}")
E(f"s_cmp_ge_u32 s{sW}, 3")
E("s_cbranch_scc1 K1_T_WAIT")
E(f"s_cmp_eq_u32 s{sW}, 2")
E("s_cbranch_scc1 K1_T_H")
E(f"v_lshlrev_b32 v{vT}, 3, v0")
E(f"ds_read_b128 {vr(vT+4)}, v{vT+1} offset:{ST_OFF}")
E(f"ds_read_b128 {vr(vT+8)}, v{vT+1} offset:{ST_OFF+16}")
E(f"ds_read_b128 {vr(vT+12)}, v{vT+1} offset:{ST_OFF+32}")
E(f"ds_read_b128 {vr(vT+16)}, v{vT+1} offset:{ST_OFF+48}")
for s in range(16):
    E(f"ds_read_b64 v[{vT+20+2*s}:{vT+21+2*s}], v{vT} offset:{P2_OFF + s*P2_STR}")
E("s_waitcnt lgkmcnt(0)")
mm, ll = vT + 2, vT + 3
E(f"v_max3_f32 v{mm}, v{vT+4}, v{vT+5}, v{vT+6}")
E(f"v_max3_f32 v{mm}, v{mm}, v{vT+7}, v{vT+8}")
E(f"v_max3_f32 v{mm}, v{mm}, v{vT+9}, v{vT+10}")
E(f"v_max_f32 v{mm}, v{mm}, v{vT+11}")
for w in range(8):
    E(f"v_sub_f32 v{vT+4+w}, v{vT+4+w}, v{mm}")
for w in range(8):
    E(f"v_mul_f32 v{vT+4+w}, s{sSC}, v{vT+4+w}")
for w in range(8):
    E(f"v_exp_f32 v{vT+4+w}, v{vT+4+w}")
E("s_nop 0")
E(f"v_mul_f32 v{ll}, v{vT+4}, v{vT+12}")
for w in range(1, 8):
    E(f"v_fmac_f32 v{ll}, v{vT+4+w}, v{vT+12+w}")
for w in range(8):
    for q in range(2):
        E(f"v_add_f32 v{vT+20+4*w+q}, v{vT+20+4*w+q}, v{vT+22+4*w+q}")
vO = vT + 52
for q in range(2):
    E(f"v_mul_f32 v{vO+q}, v{vT+4}, v{vT+20+q}")
    for w in range(1, 8):
        E(f"v_fmac_f32 v{vO+q}, v{vT+4+w}, v{vT+20+4*w+q}")
E("v_cmp_eq_u32 vcc, 96, v0")
E(f"v_lshlrev_b32 v{vT+56}, 4, v0")
E(f"v_add_u32 v{vT+56}, 16, v{vT+56}")
E(f"v_cndmask_b32 v{vO}, v{vO}, v{mm}, vcc")
E(f"v_cndmask_b32 v{vO+1}, v{vO+1}, v{ll}, vcc")
E(f"v_cndmask_b32 v{vT+57}, v{vT+56}, 0, vcc")
E(f"v_mov_b32 v{vO+2}, s{sTAG}")
E(f"v_mov_b32 v{vO+3}, s{sTAG+1}")
E(f"s_lshl_b32 s{sT}, s{sROW}, 11")
E(f"s_add_u32 s{sT}, s{sT}, {WS_G2}")
E("v_cmp_gt_u32 vcc, 97, v0")
E(f"s_and_saveexec_b64 s[{sE}:{sE+1}], vcc")
E(f"buffer_store_dwordx4 {vr(vO)}, v{vT+57}, {sr(sWS)}, s{sT} offen sc1")
E(f"s_mov_b64 exec, s[{sE}:{sE+1}]")
stamp()
def calc_g(dst, z):
    for w in range(1, 5):
        E(f"v_add_f32 v{z}, v{z}, v{z+w}")
    E(f"v_mul_f32 v{dst}, 0xbfb8aa3b, v{z}")
    E(f"v_exp_f32 v{dst}, v{dst}")
    E("s_nop 0")
    E(f"v_add_f32 v{dst}, 1.0, v{dst}")
    E(f"v_rcp_f32 v{dst}, v{dst}")
    E("s_nop 0")
vGg = vT + 58
calc_g(vGg, vT + 60)
E(f"s_lshl_b32 s{sR0}, s{sH}, 14")
E(f"s_add_u32 s{sR0}, s{sR0}, {WS_G2}")
E("v_cmp_gt_u32 vcc, 96, v0")
E(f"s_and_saveexec_b64 s[{sE}:{sE+1}], vcc")
vGo = vT + 64
vGo = vKB + 32
L("K1_GO_LOOP:")
for p in range(8):
    E(f"s_add_u32 s{sT}, s{sR0}, {p*2048}")
    E(f"buffer_load_dwordx4 {vr(vGo+4*p)}, v{vT+56}, {sr(sWS)}, s{sT} offen sc1")
    E(f"buffer_load_dwordx4 {vr(vGo+32+4*p)}, v{vT+1}, {sr(sWS)}, s{sT} offen sc1")
E("s_waitcnt vmcnt(0)")
E(f"s_mov_b64 s[{sBAD}:{sBAD+1}], 0")
for p in range(16):
    E(f"v_cmp_ne_u64 vcc, s[{sTAG}:{sTAG+1}], v[{vGo+4*p+2}:{vGo+4*p+3}]")
    E(f"s_or_b64 s[{sBAD}:{sBAD+1}], s[{sBAD}:{sBAD+1}], vcc")
E(f"s_cmp_eq_u64 s[{sBAD}:{sBAD+1}], 0")
E("s_cbranch_scc1 K1_GO_OK")
E("s_sub_u32 s3, s3, 1")
E("s_cbranch_scc1 K1_GO_OK")
E("s_sleep 1")
E("s_branch K1_GO_LOOP")
L("K1_GO_OK:")
stamp()
sm = vGo + 32
E(f"v_max3_f32 v{mm}, v{sm}, v{sm+4}, v{sm+8}")
E(f"v_max3_f32 v{mm}, v{mm}, v{sm+12}, v{sm+16}")
E(f"v_max3_f32 v{mm}, v{mm}, v{sm+20}, v{sm+24}")
E(f"v_max_f32 v{mm}, v{mm}, v{sm+28}")
for p in range(8):
    E(f"v_sub_f32 v{sm+4*p}, v{sm+4*p}, v{mm}")
for p in range(8):
    E(f"v_mul_f32 v{sm+4*p}, s{sSC}, v{sm+4*p}")
for p in range(8):
    E(f"v_exp_f32 v{sm+4*p}, v{sm+4*p}")
E("s_nop 0")
E(f"v_mul_f32 v{ll}, v{sm}, v{sm+1}")
for p in range(1, 8):
    E(f"v_fmac_f32 v{ll}, v{sm+4*p}, v{sm+4*p+1}")
E(f"v_rcp_f32 v{ll}, v{ll}")
for q in range(2):
    E(f"v_mul_f32 v{vO+q}, v{sm}, v{vGo+q}")
    for p in range(1, 8):
        E(f"v_fmac_f32 v{vO+q}, v{sm+4*p}, v{vGo+4*p+q}")
E(f"v_mul_f32 v{ll}, v{ll}, v{vGg}")
E(f"v_mul_f32 v{vO}, v{vO}, v{ll}")
E(f"v_mul_f32 v{vO+1}, v{vO+1}, v{ll}")
E(f"v_cvt_pk_bf16_f32 v{vO}, v{vO}, v{vO+1}")
E(f"v_lshlrev_b32 v{vT}, 2, v0")
E(f"ds_write_b32 v{vT}, v{vO} offset:{OBF_OFF}")
E(f"s_mov_b64 exec, s[{sE}:{sE+1}]")
E("s_branch K1_T_WAIT")
L("K1_T_H:")
E(f"v_lshlrev_b32 v{vT}, 3, v{vL}")
E(f"ds_read_b64 v[{vT+4}:{vT+5}], v{vT} offset:{GU_OFF}")
E(f"ds_read_b64 v[{vT+6}:{vT+7}], v{vT} offset:{GU_OFF + 192}")
E("s_waitcnt lgkmcnt(0)")
calc_g(vGg, vT + 60)
E(f"v_sub_f32 v{vGg}, 1.0, v{vGg}")
E(f"v_cvt_pk_bf16_f32 v{vT+4}, v{vT+4}, v{vT+5}")
E(f"v_cvt_pk_bf16_f32 v{vT+6}, v{vT+6}, v{vT+7}")
E(f"v_lshlrev_b32 v{vT+8}, 16, v{vT+4}")
E(f"v_and_b32 v{vT+9}, 0xffff0000, v{vT+4}")
E(f"v_lshlrev_b32 v{vT+10}, 16, v{vT+6}")
E(f"v_and_b32 v{vT+11}, 0xffff0000, v{vT+6}")
E(f"v_max_f32 v{vT+8}, 0, v{vT+8}")
E(f"v_max_f32 v{vT+9}, 0, v{vT+9}")
E(f"v_mul_f32 v{vT+8}, v{vT+8}, v{vT+10}")
E(f"v_mul_f32 v{vT+9}, v{vT+9}, v{vT+11}")
E(f"v_cvt_pk_bf16_f32 v{vT+8}, v{vT+8}, v{vT+9}")
E(f"v_lshlrev_b32 v{vT+10}, 16, v{vT+8}")
E(f"v_and_b32 v{vT+11}, 0xffff0000, v{vT+8}")
E(f"v_mul_f32 v{vT+10}, v{vT+10}, v{vGg}")
E(f"v_mul_f32 v{vT+11}, v{vT+11}, v{vGg}")
E(f"v_cvt_pk_bf16_f32 v{vT+8}, v{vT+10}, v{vT+11}")
E(f"v_cmp_gt_u32 vcc, 24, v{vL}")
E("s_nop 1")
E(f"v_cndmask_b32 v{vT+8}, 0, v{vT+8}, vcc")
E(f"v_lshlrev_b32 v{vT}, 2, v{vL}")
E("s_mov_b64 exec, 0xffffffff")
E(f"ds_write_b32 v{vT}, v{vT+8} offset:{OBF_OFF + 384}")
E("s_mov_b64 exec, -1")
L("K1_T_WAIT:")
E("s_waitcnt lgkmcnt(0)")
E("s_barrier")
stamp()
vB = vT + 4
E(f"v_lshrrev_b32 v{vT}, 3, v{vJ}")
E(f"v_lshl_add_u32 v{vT}, v{vT}, 2, v{vG}")
E(f"v_lshlrev_b32 v{vT}, 1, v{vT}")
E(f"s_lshl_b32 s{sT}, s{sW}, 4")
E(f"v_add_u32 v{vT}, s{sT}, v{vT}")
for k in range(4):
    E(f"ds_read_u16 v{vT+20+k}, v{vT} offset:{OBF_OFF + 128*k}")
E("s_waitcnt lgkmcnt(0)")
for k in range(4):
    E(f"v_lshl_or_b32 v{vT+20+k}, v{vT+20+k}, 16, v{vT+20+k}")
for k in range(4):
    expand(vT + 20 + k, vB + 4*k)
E("s_waitcnt vmcnt(0)")
vY = vT + 24
for k in range(4):
    mfma(vY, vKB + 8*k, vB + 4*k, None if k == 0 else vY)
    mfma(vY + 4, vKB + 8*k + 4, vB + 4*k, None if k == 0 else vY + 4)
E(f"v_lshrrev_b32 v{vT+1}, 3, v{vJ}")
E(f"s_lshl_b32 s{sT}, s{sW}, 1")
E(f"v_add_u32 v{vT+1}, s{sT}, v{vT+1}")
E(f"v_mul_u32_u24 v{vT}, {Y_STR}, v{vT+1}")
E(f"v_and_b32 v{vT+1}, 7, v{vJ}")
E(f"v_lshl_add_u32 v{vT}, v{vT+1}, 2, v{vT}")
E(f"v_lshl_add_u32 v{vT}, v{vG}, 7, v{vT}")
E("s_nop 7")
for r in range(4):
    E(f"v_cndmask_b32 v{vY+r}, v{vY+r}, v{vY+4+r}, s[{sHF}:{sHF+1}]")
for r in range(4):
    E(f"ds_write_b32 v{vT}, v{vY+r} offset:{Y_OFF + r*32}")
E("s_waitcnt lgkmcnt(0)")
E("s_barrier")
E(f"s_cmp_lg_u32 s{sW}, 0")
E("s_cbranch_scc1 K1_PUB3_DONE")
E("s_mov_b32 exec_lo, -1")
E("s_mov_b32 exec_hi, 0xff")
E(f"v_lshlrev_b32 v{vT}, 3, v0")
for s in range(16):
    E(f"ds_read_b64 v[{vT+4+2*s}:{vT+5+2*s}], v{vT} offset:{Y_OFF + s*Y_STR}")
E("s_waitcnt lgkmcnt(0)")
for st in (8, 4, 2, 1):
    for s in range(st):
        for q in range(2):
            E(f"v_add_f32 v{vT+4+2*s+q}, v{vT+4+2*s+q}, v{vT+4+2*(s+st)+q}")
E(f"v_mov_b32 v{vT+6}, s{sTAG}")
E(f"v_mov_b32 v{vT+7}, s{sTAG+1}")
E(f"v_lshlrev_b32 v{vT}, 4, v0")
E(f"s_lshl_b32 s{sT}, s{sC}, 5")
E(f"s_add_u32 s{sT}, s{sT}, s{sH}")
E(f"s_mul_i32 s{sT}, s{sT}, 640")
E(f"s_add_u32 s{sT}, s{sT}, {WS_G3}")
E(f"buffer_store_dwordx4 {vr(vT+4)}, v{vT}, {sr(sWS)}, s{sT} offen sc1")
E("s_mov_b64 exec, -1")
L("K1_PUB3_DONE:")
stamp()
E(f"s_lshl_b32 s{sT}, s{sC}, 2")
E(f"s_cmp_lg_u32 s{sT}, s{sH}")
E("s_cbranch_scc1 K1_STAMPS")
E(f"s_lshl_b32 s{sR0}, s{sC}, 5")
E(f"s_lshl_b32 s{sT}, s{sW}, 2")
E(f"s_add_u32 s{sR0}, s{sR0}, s{sT}")
E(f"s_mul_i32 s{sR0}, s{sR0}, 640")
E(f"s_add_u32 s{sR0}, s{sR0}, {WS_G3}")
E(f"v_lshlrev_b32 v{vT}, 4, v{vL}")
E("s_mov_b32 exec_lo, -1")
E("s_mov_b32 exec_hi, 0xff")
L("K1_GF_LOOP:")
for p in range(4):
    E(f"buffer_load_dwordx4 {vr(vT+4+4*p)}, v{vT}, {sr(sWS)}, s{sR0} offen offset:{640*p} sc1")
E("s_waitcnt vmcnt(0)")
E(f"s_mov_b64 s[{sBAD}:{sBAD+1}], 0")
for p in range(4):
    E(f"v_cmp_ne_u64 vcc, s[{sTAG}:{sTAG+1}], v[{vT+4+4*p+2}:{vT+4+4*p+3}]")
    E(f"s_or_b64 s[{sBAD}:{sBAD+1}], s[{sBAD}:{sBAD+1}], vcc")
E(f"s_cmp_eq_u64 s[{sBAD}:{sBAD+1}], 0")
E("s_cbranch_scc1 K1_GF_OK")
E("s_sub_u32 s3, s3, 1")
E("s_cbranch_scc1 K1_GF_OK")
E("s_sleep 1")
E("s_branch K1_GF_LOOP")
L("K1_GF_OK:")
for p in range(1, 4):
    E(f"v_add_f32 v{vT+4}, v{vT+4}, v{vT+4+4*p}")
    E(f"v_add_f32 v{vT+5}, v{vT+5}, v{vT+5+4*p}")
E(f"v_lshlrev_b32 v{vT}, 3, v{vL}")
E(f"s_mul_i32 s{sT}, s{sW}, 320")
E(f"v_add_u32 v{vT}, s{sT}, v{vT}")
E(f"ds_write_b64 v{vT}, v[{vT+4}:{vT+5}] offset:{FR_OFF}")
E("s_mov_b64 exec, -1")
E("s_waitcnt lgkmcnt(0)")
E("s_barrier")
E(f"s_cmp_lg_u32 s{sW}, 0")
E("s_cbranch_scc1 K1_STAMPS")
E("s_mov_b32 exec_lo, -1")
E("s_mov_b32 exec_hi, 0xff")
E(f"v_lshlrev_b32 v{vT}, 3, v{vL}")
for w in range(8):
    E(f"ds_read_b64 v[{vT+4+2*w}:{vT+5+2*w}], v{vT} offset:{FR_OFF + 320*w}")
E(f"s_mov_b32 s{sWG}, s28")
E(f"s_and_b32 s{sWG+1}, s29, 0xffff")
E(f"s_mov_b32 s{sWG+2}, 1280")
E(f"s_mov_b32 s{sWG+3}, 0x00020000")
E("s_waitcnt lgkmcnt(0)")
for st in (4, 2, 1):
    for s in range(st):
        for q in range(2):
            E(f"v_add_f32 v{vT+4+2*s+q}, v{vT+4+2*s+q}, v{vT+4+2*(s+st)+q}")
E(f"v_cvt_pk_bf16_f32 v{vT+4}, v{vT+4}, v{vT+5}")
E(f"v_lshlrev_b32 v{vT}, 2, v{vL}")
E(f"s_mul_i32 s{sT}, s{sC}, 160")
E(f"buffer_store_dword v{vT+4}, v{vT}, {sr(sWG)}, s{sT} offen")
E(f"s_cmp_lg_u32 s{sC}, 0")
E("s_cbranch_scc1 K1_NOEP")
E("s_mov_b64 exec, 1")
E(f"v_mov_b32 v{vT+6}, s{sTAG}")
E(f"v_mov_b32 v{vT+7}, s{sTAG+1}")
E(f"v_mov_b32 v{vT}, 0")
E(f"buffer_store_dwordx2 v[{vT+6}:{vT+7}], v{vT}, {sr(sWS)}, 0 offen")
L("K1_NOEP:")
E("s_mov_b64 exec, -1")
L("K1_STAMPS:")
if DBG:
    E("s_mov_b64 exec, -1")
    E("s_waitcnt vmcnt(0) lgkmcnt(0)")
    E(f"s_cmp_lg_u32 s{sW}, 0")
    E("s_cbranch_scc1 K1_END")
    E("s_cmp_lg_u32 s93, 0")
    E("s_cbranch_scc1 K1_END")
    E("s_memrealtime s[2:3]")
    E("s_memtime s[6:7]")
    E("s_waitcnt lgkmcnt(0)")
    E("s_sub_u32 s6, s6, s95")
    E("s_sub_u32 s2, s2, s94")
    E("v_mov_b32 v10, 0")
    E("v_writelane_b32 v10, s6, 0")
    E("v_writelane_b32 v10, s2, 1")
    for i in range(1, stamp_n[0]):
        r = stamp_regs[i]
        E(f"s_sub_u32 s6, s{r}, s94")
        E(f"v_writelane_b32 v10, s6, {i+1}")
    E("v_lshlrev_b32 v11, 2, v1")
    E("v_cmp_gt_u32 vcc, 16, v1")
    E("s_and_saveexec_b64 s[86:87], vcc")
    E("global_store_dword v11, v10, s[30:31]")
elif ST:
    E("s_mov_b64 exec, -1")
    E("s_waitcnt vmcnt(0) lgkmcnt(0)")
    E(f"s_cmp_lg_u32 s{sW}, {STW}")
    E("s_cbranch_scc1 K1_END")
    E("s_memrealtime s[2:3]")
    E("s_waitcnt lgkmcnt(0)")
    regs = stamp_regs[:stamp_n[0]]
    for i, r in enumerate(regs):
        E(f"v_writelane_b32 v10, s{r}, {2*i}")
        E(f"v_writelane_b32 v10, s{r+1}, {2*i+1}")
    n = len(regs)
    E(f"v_writelane_b32 v10, s2, {2*n}")
    E(f"v_writelane_b32 v10, s3, {2*n+1}")
    E("v_lshlrev_b32 v11, 2, v1")
    E(f"s_lshl_b32 s39, s93, 7")
    E("s_add_u32 s39, s39, 0x300000")
    E(f"v_cmp_gt_u32 vcc, {2*n+2}, v1")
    E("s_and_saveexec_b64 s[86:87], vcc")
    E(f"buffer_store_dword v10, v11, {sr(sWS)}, s39 offen")
L("K1_END:")
E("s_endpgm")

L('.section .rodata,"a"')
L(".p2align 6")
L(f".amdhsa_kernel {K1}")
L(f"  .amdhsa_next_free_vgpr 256")
L(f"  .amdhsa_next_free_sgpr 102")
L(f"  .amdhsa_accum_offset 256")
L("  .amdhsa_group_segment_fixed_size 0")
L("  .amdhsa_kernarg_size 104")
L("  .amdhsa_user_sgpr_count 2")
L("  .amdhsa_user_sgpr_kernarg_segment_ptr 1")
L("  .amdhsa_system_sgpr_workgroup_id_x 1")
L(".end_amdhsa_kernel")
open(sys.argv[1], 'w').write('\n'.join(out) + '\n')
```

```python
import sys, struct

NAME = "gated_mix__sliding_block_cached__glu_gated_reglu__decode"
out = []
def E(s): out.append("    " + s)
def L(s): out.append(s)

HEADER = open('cdna_kernels/' + NAME + '.s.ref').read().split('\n')
hdr = []
for ln in HEADER:
    if ln.startswith('; @launch') or ln.startswith('.amdgcn_target'):
        break
    hdr.append(ln)

opts = (sys.argv[2] if len(sys.argv) > 2 else "").split(',')
def opt(name, default=None):
    for o in opts:
        if o == name: return True
        if o.startswith(name + '='): return o.split('=')[1]
    return default
NT = " nt" if not opt('nont') else ""
KNT = "" if opt('kplain') else NT
VNT = "" if opt('vplain') else NT
WNT = " nt" if (opt('wnt') or opt('allnt')) else ""
ANT = " nt" if opt('allnt') else ""
ST = opt('st') or opt('dbg')
DBG = opt('dbg')
STW = int(opt('stw', 0))
NK0 = int(opt('nk0', 8))
NV1 = int(opt('nv1', 15))

P0_OFF = 0;      P0_STR = 1312
P2_OFF = 16 * P0_STR;  P2_STR = 800
Y_OFF  = P2_OFF + 16 * P2_STR; Y_STR = 544
QBF_OFF = Y_OFF + 16 * Y_STR
GU_OFF  = QBF_OFF + 384
OBF_OFF = GU_OFF + 384
ST_OFF  = OBF_OFF + 512
Z_OFF   = ST_OFF + 64
FR_OFF  = Z_OFF + 64
LDS_SZ  = FR_OFF + 8 * 320
assert LDS_SZ <= 65536

WS_G0 = 0x1000
WS_G2 = 0x100000
WS_G3 = 0x200000

SCALE_LOG2E = (192.0 ** -0.5) * 1.4426950408889634
def f32bits(x): return struct.unpack('<I', struct.pack('<f', x))[0]

K1 = NAME + "_kernel"
L('\n'.join(hdr))
L(f"; @launch grid=(256,1,1) block=(512,1,1) lds=65536")
L('.amdgcn_target "amdgcn-amd-amdhsa--gfx950"')
L(".text")
L(f".globl {K1}")
L(".p2align 8")
L(f".type {K1},@function")
L(f"{K1}:")

vL, vG, vJ = 1, 2, 3
vM = [4, 5, 6, 7]
vA = 8
vKB = 40
vVB = 136
vQ = 232

sW, sXCD, sIDX, sH, sC, sT = 34, 35, 36, 37, 38, 39
sK, sV, sWQ, sWO, sWG, sWU, sWD, sX, sWS = 40, 44, 48, 52, 56, 60, 64, 68, 72
sHF = 78
sV2 = 80
sOFF = 82
sSC = 83
sROW = 85
sE = 86
sR0 = 88
sTAG = 4
sBAD = 6
sGW = 76
stamp_regs = [94] + [10, 12, 14, 16, 18, 20, 22, 24, 96, 98, 100, 32, 8]
stamp_n = [0]
def stamp():
    if not ST: return
    r = stamp_regs[stamp_n[0]]; stamp_n[0] += 1
    E(f"s_memrealtime s[{r}:{r+1}]")
def vr(a, n=4): return f"v[{a}:{a+n-1}]"
def sr(a, n=4): return f"s[{a}:{a+n-1}]"

vmq = []
def VM(s, tag):
    E(s); vmq.append(tag)
def WAIT(tag):
    idx = max(i for i, t in enumerate(vmq) if t == tag)
    n = len(vmq) - 1 - idx
    assert n <= 63, n
    E(f"s_waitcnt vmcnt({n})")

def srd(dst, plo, off_s, nrec):
    E(f"s_add_u32 s{dst}, s{plo}, s{off_s}")
    E(f"s_addc_u32 s{dst+1}, s{plo+1}, 0")
    E(f"s_and_b32 s{dst+1}, s{dst+1}, 0xffff")
    E(f"s_mov_b32 s{dst+2}, {nrec}")
    E(f"s_mov_b32 s{dst+3}, 0x00020000")

def dpp_reduce(regs):
    for ctl in ["row_shr:1", "row_shr:2", "row_shr:4", "row_shr:8"]:
        for r in regs:
            E(f"v_add_f32_dpp v{r}, v{r}, v{r} {ctl} row_mask:0xf bank_mask:0xf bound_ctrl:0")
        if len(regs) < 3: E("s_nop 1")
    for r in regs:
        E(f"v_add_f32_dpp v{r}, v{r}, v{r} row_bcast:15 row_mask:0xa bank_mask:0xf")
    if len(regs) < 3: E("s_nop 1")
    for r in regs:
        E(f"v_add_f32_dpp v{r}, v{r}, v{r} row_bcast:31 row_mask:0xc bank_mask:0xf")

def expand(dup, dst):
    for w in range(4):
        E(f"v_and_b32 v{dst+w}, v{dup}, v{vM[w]}")

def mfma(d, a, b, c):
    E(f"v_mfma_f32_16x16x32_bf16 {vr(d)}, {vr(a)}, {vr(b)}, {'0' if c is None else vr(c)}")

E("s_cmp_ge_u32 s2, 256")
E("s_cbranch_scc1 K1_END")
if ST: E("s_mov_b32 s93, s2")
stamp()
if DBG: E("s_memtime s[6:7]")
E("s_load_dwordx16 s[8:23], s[0:1], 0")
E("s_load_dwordx8 s[24:31], s[0:1], 64")
E("s_load_dwordx2 s[32:33], s[0:1], 96")
E(f"v_and_b32 v{vL}, 63, v0")
E(f"v_bfe_u32 v{vG}, v0, 4, 2")
E(f"v_and_b32 v{vJ}, 15, v0")
E(f"v_lshrrev_b32 v{vA}, 6, v0")
E("s_nop 0")
E(f"v_readfirstlane_b32 s{sW}, v{vA}")
E(f"s_and_b32 s{sXCD}, s2, 7")
E(f"s_lshr_b32 s{sIDX}, s2, 3")
E(f"s_and_b32 s{sH}, s{sIDX}, 3")
E(f"s_lshl_b32 s{sT}, s{sXCD}, 2")
E(f"s_add_u32 s{sH}, s{sH}, s{sT}")
E(f"s_lshr_b32 s{sC}, s{sIDX}, 2")
E(f"s_lshl_b32 s{sROW}, s{sH}, 3")
E(f"s_add_u32 s{sROW}, s{sROW}, s{sC}")
sROT = 84
if opt('norot'):
    E(f"s_mov_b32 s{sROT}, 0")
else:
    E(f"s_mul_i32 s{sROT}, s{sH}, 5")
    E(f"s_mul_i32 s{sT}, s{sC}, 3")
    E(f"s_add_u32 s{sROT}, s{sROT}, s{sT}")
    if opt('rotw'): E(f"s_add_u32 s{sROT}, s{sROT}, s{sW}")
    E(f"s_and_b32 s{sROT}, s{sROT}, 7")
E("s_mov_b32 s3, 0x40000")
E(f"s_mov_b32 s{sHF}, 0xFF00FF00")
E(f"s_mov_b32 s{sHF+1}, 0xFF00FF00")
E(f"s_mov_b32 s{sV2}, 0x00FF00FF")
E(f"s_mov_b32 s{sV2+1}, 0xFF00FF00")
E(f"s_mov_b32 s{sSC}, 0x{f32bits(SCALE_LOG2E):08x}")
t0, t1, t2, t3 = vA, vA+1, vA+2, vA+3
E(f"v_and_b32 v{t0}, 1, v{vJ}")
E(f"v_lshlrev_b32 v{t0}, 4, v{t0}")
E(f"v_mov_b32 v{t1}, 0xffff")
E(f"v_lshlrev_b32 v{t1}, v{t0}, v{t1}")
E(f"v_bfe_u32 v{t2}, v{vJ}, 1, 2")
for w in range(4):
    E(f"v_cmp_eq_u32 vcc, {w}, v{t2}")
    E("s_nop 1")
    E(f"v_cndmask_b32 v{vM[w]}, 0, v{t1}, vcc")
vHF, vGH, vJ7 = vA, vA+1, vA+2
E(f"v_lshrrev_b32 v{vHF}, 3, v{vJ}")
E(f"v_lshl_add_u32 v{vGH}, v{vHF}, 2, v{vG}")
E(f"v_and_b32 v{vJ7}, 7, v{vJ}")
oWA, oWA2, oWB, oG, oX, oKa, oKb, oGX = 32, 33, 34, 35, 36, 38, 39, 37
E(f"v_mul_u32_u24 v{oWA}, 12288, v{vG}")
E(f"v_lshl_add_u32 v{oWA}, v{vJ}, 4, v{oWA}")
E(f"v_add_u32 v{oWA2}, 49152, v{oWA}")
E(f"v_mul_u32_u24 v{oWB}, 12288, v{vGH}")
E(f"v_lshl_add_u32 v{oWB}, v{vJ7}, 4, v{oWB}")
E(f"v_add_u32 v{oWB}, 256, v{oWB}")
E(f"v_mul_u32_u24 v{oG}, 3072, v{vGH}")
E(f"v_lshl_add_u32 v{oG}, v{vJ7}, 4, v{oG}")
E(f"v_mov_b32 v{t3}, 0x40000000")
E(f"v_cmp_gt_u32 vcc, 6, v{vJ7}")
E("s_nop 1")
E(f"v_cndmask_b32 v{oG}, v{t3}, v{oG}, vcc")
E(f"v_lshlrev_b32 v{oX}, 1, v{vGH}")
E(f"v_lshlrev_b32 v{oGX}, 2, v0")
oK = [[252, 253], [254, 255]]
for Q in range(2):
    a_, b_ = oK[Q]
    E(f"v_and_b32 v{a_}, 3, v{vJ}")
    E(f"v_add_u32 v{a_}, s{sROT}, v{a_}")
    if Q: E(f"v_add_u32 v{a_}, 4, v{a_}")
    E(f"v_and_b32 v{a_}, 7, v{a_}")
    E(f"v_lshlrev_b32 v{a_}, 3, v{a_}")
    E(f"v_bfe_u32 v{t3}, v{vJ}, 2, 1")
    E(f"v_add_u32 v{a_}, v{a_}, v{t3}")
    E(f"v_mul_u32_u24 v{a_}, 384, v{a_}")
    E(f"v_lshl_add_u32 v{a_}, v{vG}, 4, v{a_}")
    E(f"v_lshlrev_b32 v{t3}, 6, v{vHF}")
    E(f"v_sub_u32 v{b_}, v{a_}, v{t3}")
    E(f"v_add_u32 v{b_}, 64, v{b_}")
    E(f"v_add_u32 v{a_}, v{a_}, v{t3}")
E("s_waitcnt lgkmcnt(0)")
if DBG: E("s_mov_b32 s95, s6")
E(f"s_load_dwordx2 s[{sTAG}:{sTAG+1}], s[32:33], 0")
E(f"s_mul_i32 s{sT}, s{sH}, 12582912")
E(f"s_mul_i32 s{sOFF}, s{sC}, 196608")
E(f"s_add_u32 s{sT}, s{sT}, s{sOFF}")
E(f"s_mul_i32 s{sOFF}, s{sW}, 24576")
E(f"s_add_u32 s{sT}, s{sT}, s{sOFF}")
E(f"s_add_u32 s{sT}, s{sT}, 11010048")
srd(sK, 10, sT, 24576)
srd(sV, 12, sT, 24576)
E(f"s_mul_i32 s{sR0}, s{sC}, 80")
E(f"s_lshl_b32 s{sOFF}, s{sW}, 3")
E(f"s_add_u32 s{sR0}, s{sR0}, s{sOFF}")
E(f"s_mul_i32 s{sT}, s{sR0}, 12288")
E(f"s_mul_i32 s{sOFF}, s{sH}, 384")
E(f"s_add_u32 s{sT}, s{sT}, s{sOFF}")
srd(sWQ, 14, sT, 72 * 12288)
E(f"s_mul_i32 s{sT}, s{sR0}, 3072")
E(f"s_mul_i32 s{sOFF}, s{sH}, 96")
E(f"s_add_u32 s{sT}, s{sT}, s{sOFF}")
srd(sWG, 20, sT, 72 * 3072)
srd(sWU, 22, sT, 72 * 3072)
E(f"s_lshl_b32 s{sR0+1}, s{sR0}, 1")
E(f"s_mov_b32 s{sT}, 0")
srd(sX, 8, sT, 1280)
srd(sWS, 32, sT, 0x400000)
E(f"s_cmp_lt_u32 s{sW}, 2")
E(f"s_cselect_b32 s{sR0+2}, 786432, 0x40000000")
E(f"s_cselect_b32 s{sR0+3}, 196608, 0x40000000")
GOFF = [0, 2, 6, 4]
def kload(n):
    Q, gi, s = n // 12, (n // 3) % 4, n % 3
    b = vKB + n * 4
    va = oK[Q][0] if gi in (0, 2) else oK[Q][1]
    VM(f"buffer_load_dwordx4 {vr(b)}, v{va}, {sr(sK)}, 0 offen offset:{GOFF[gi]*384+s*128}{KNT}", f"K{Q}{gi}")
vX0, vX1, vGX, vGW = vA+4, vA+5, vA+6, vA+7
VM(f"buffer_load_ushort v{vX0}, v{oX}, {sr(sX)}, s{sR0+1} offen", "X")
VM(f"buffer_load_ushort v{vX1}, v{oX}, {sr(sX)}, s{sR0+1} offen offset:128", "X")
def p0reg(k, q): return vVB + 20 * k + 4 * q
VM(f"buffer_load_dwordx4 {vr(p0reg(0,0))}, v{oWA}, {sr(sWQ)}, 0 offen{WNT}", "P0")
VM(f"buffer_load_dwordx4 {vr(p0reg(0,1))}, v{oWA2}, {sr(sWQ)}, 0 offen{WNT}", "P0")
VM(f"buffer_load_dwordx4 {vr(p0reg(0,2))}, v{oWB}, {sr(sWQ)}, 0 offen{WNT}", "P0")
VM(f"buffer_load_dwordx4 {vr(p0reg(0,3))}, v{oG}, {sr(sWG)}, 0 offen{ANT}", "P0")
VM(f"buffer_load_dwordx4 {vr(p0reg(0,4))}, v{oG}, {sr(sWU)}, 0 offen{ANT}", "P0")
for o_, s_ in ((oWA, sR0+2), (oWA2, sR0+2), (oWB, sR0+2), (oG, sR0+3)):
    E(f"v_add_u32 v{o_}, s{s_}, v{o_}")
VM(f"buffer_load_dwordx4 {vr(p0reg(1,0))}, v{oWA}, {sr(sWQ)}, 0 offen{WNT}", "P1")
VM(f"buffer_load_dwordx4 {vr(p0reg(1,1))}, v{oWA2}, {sr(sWQ)}, 0 offen{WNT}", "P1")
VM(f"buffer_load_dwordx4 {vr(p0reg(1,2))}, v{oWB}, {sr(sWQ)}, 0 offen{WNT}", "P1")
VM(f"buffer_load_dwordx4 {vr(p0reg(1,3))}, v{oG}, {sr(sWG)}, 0 offen{ANT}", "P1")
VM(f"buffer_load_dwordx4 {vr(p0reg(1,4))}, v{oG}, {sr(sWU)}, 0 offen{ANT}", "P1")
E(f"s_mov_b32 s{sWO}, s26")
E(f"s_and_b32 s{sWO+1}, s27, 0xffff")
E(f"s_mov_b32 s{sWO+2}, 1280")
E(f"s_mov_b32 s{sWO+3}, 0x00020000")
VM(f"buffer_load_dword v{vGX}, v{oGX}, {sr(sX)}, 0 offen", "G")
VM(f"buffer_load_dword v{vGW}, v{oGX}, {sr(sWO)}, 0 offen", "G")
E(f"s_mul_i32 s{sT}, s{sH}, 245760")
E(f"s_mul_i32 s{sOFF}, s{sC}, 160")
E(f"s_add_u32 s{sT}, s{sT}, s{sOFF}")
srd(sWO, 16, sT, 245760 - 1120)
E(f"s_mul_i32 s{sT}, s{sH}, 61440")
E(f"s_add_u32 s{sT}, s{sT}, s{sOFF}")
srd(sWD, 24, sT, 61440 - 1120)
E(f"s_mov_b32 s{sOFF}, 12288")
for n in range(NK0): kload(n)
stamp()
vAC = 16
vBX = vQ
WAIT("X")
E(f"v_lshl_or_b32 v{vX0}, v{vX0}, 16, v{vX0}")
E(f"v_lshl_or_b32 v{vX1}, v{vX1}, 16, v{vX1}")
expand(vX0, vBX)
expand(vX1, vBX + 4)
WAIT("P0")
for q in range(5):
    mfma(vAC + 4*q, p0reg(0, q), vBX, None)
WAIT("P1")
for q in range(5):
    mfma(vAC + 4*q, p0reg(1, q), vBX + 4, vAC + 4*q)
WAIT("G")
E(f"v_lshlrev_b32 v{vX0}, 16, v{vGX}")
E(f"v_and_b32 v{vGX}, 0xffff0000, v{vGX}")
E(f"v_lshlrev_b32 v{vX1}, 16, v{vGW}")
E(f"v_and_b32 v{vGW}, 0xffff0000, v{vGW}")
E(f"v_mul_f32 v{vX0}, v{vX0}, v{vX1}")
E(f"v_fmac_f32 v{vX0}, v{vGX}, v{vGW}")
E("s_nop 1")
dpp_reduce([vX0])
a1, a2, tt = vA, vA+1, vA+2
E(f"v_lshrrev_b32 v{tt}, 3, v{vJ}")
E(f"s_lshl_b32 s{sT}, s{sW}, 1")
E(f"v_add_u32 v{tt}, s{sT}, v{tt}")
E(f"v_mul_u32_u24 v{a1}, {P0_STR}, v{tt}")
E(f"v_and_b32 v{tt}, 7, v{vJ}")
E(f"v_lshl_add_u32 v{a1}, v{tt}, 2, v{a1}")
E(f"v_and_b32 v{tt}, 1, v{vG}")
E(f"v_lshl_add_u32 v{a2}, v{tt}, 7, v{a1}")
E(f"v_lshl_add_u32 v{a1}, v{vG}, 7, v{a1}")
E(f"s_lshl_b32 s{sT}, s{sW}, 2")
E(f"v_mov_b32 v{tt}, s{sT}")
E("s_mov_b32 exec_lo, 0")
E("s_mov_b32 exec_hi, 0x80000000")
E(f"ds_write_b32 v{tt}, v{vX0} offset:{Z_OFF}")
E("s_mov_b64 exec, -1")
E("s_nop 3")
for r in range(4):
    E(f"v_cndmask_b32 v{vAC+r}, v{vAC+r}, v{vAC+4+r}, s[{sHF}:{sHF+1}]")
for r in range(4):
    E(f"ds_write_b32 v{a1}, v{vAC+r} offset:{P0_OFF + r*32}")
E(f"s_mov_b64 exec, s[{sV2}:{sV2+1}]")
for q in range(3):
    for r in range(4):
        E(f"ds_write_b32 v{a2}, v{vAC+8+4*q+r} offset:{P0_OFF + 512 + 256*q + r*32}")
E("s_mov_b64 exec, -1")
E("s_waitcnt lgkmcnt(0)")
E("s_barrier")
stamp()
E(f"s_add_u32 s{sTAG}, s{sTAG}, 1")
E(f"s_addc_u32 s{sTAG+1}, s{sTAG+1}, 0")
E(f"s_cmp_ge_u32 s{sW}, 3")
E("s_cbranch_scc1 K1_PUB0_DONE")
E("v_cmp_gt_u32 vcc, 144, v0")
E(f"s_and_saveexec_b64 s[{sE}:{sE+1}], vcc")
E(f"v_lshlrev_b32 v{vA}, 3, v0")
E(f"v_add_u32 v{vA+1}, 64, v{vA}")
E("v_cmp_gt_u32 vcc, 120, v0")
E("s_nop 1")
E(f"v_cndmask_b32 v{vA}, v{vA+1}, v{vA}, vcc")
vR = vQ - 36
for s in range(16):
    E(f"ds_read_b64 v[{vR+2*s}:{vR+2*s+1}], v{vA} offset:{P0_OFF + s*P0_STR}")
E("s_waitcnt lgkmcnt(0)")
for st in (8, 4, 2, 1):
    for s in range(st):
        for q in range(2):
            E(f"v_add_f32 v{vR+2*s+q}, v{vR+2*s+q}, v{vR+2*(s+st)+q}")
E(f"v_mov_b32 v{vR+2}, s{sTAG}")
E(f"v_mov_b32 v{vR+3}, s{sTAG+1}")
E(f"v_lshlrev_b32 v{vA}, 4, v0")
E(f"s_mul_i32 s{sT}, s{sROW}, 2304")
E(f"s_add_u32 s{sT}, s{sT}, {WS_G0}")
E(f"buffer_store_dwordx4 {vr(vR)}, v{vA}, {sr(sWS)}, s{sT} offen sc1")
E(f"s_mov_b64 exec, s[{sE}:{sE+1}]")
E("s_nop 1")
L("K1_PUB0_DONE:")
for n in range(NK0, 24): kload(n)
vGa = vR
E(f"s_mul_i32 s{sT}, s{sW}, 288")
E(f"v_lshlrev_b32 v{vA}, 4, v{vL}")
E(f"v_add_u32 v{vA}, s{sT}, v{vA}")
E(f"s_mul_i32 s{sR0}, s{sH}, {8*2304}")
E(f"s_add_u32 s{sR0}, s{sR0}, {WS_G0}")
E("s_mov_b64 exec, 0x3ffff")
def gather_q():
    for p in range(8):
        E(f"s_add_u32 s{sT}, s{sR0}, {p*2304}")
        VM(f"buffer_load_dwordx4 {vr(vGa+4*p)}, v{vA}, {sr(sWS)}, s{sT} offen sc1", "GQ")
gather_q()
E("s_mov_b64 exec, -1")
oVA, oVB = 38, 39
E(f"v_mul_u32_u24 v{oVA}, 384, v{vG}")
E(f"v_lshl_add_u32 v{oVA}, v{vJ}, 4, v{oVA}")
E(f"v_lshrrev_b32 v{vA+1}, 3, v{vJ}")
E(f"v_lshl_add_u32 v{vA+1}, v{vA+1}, 2, v{vG}")
E(f"v_mul_u32_u24 v{oVB}, 384, v{vA+1}")
E(f"v_and_b32 v{vA+1}, 7, v{vJ}")
E(f"v_lshl_add_u32 v{oVB}, v{vA+1}, 4, v{oVB}")
E(f"v_add_u32 v{oVB}, 256, v{oVB}")
def vload(n):
    k, q = n // 3, n % 3
    b = vVB + 12 * k + 4 * q
    if q == 0 or n == NV1:
        E(f"s_add_u32 s{sOFF}, s{sROT}, {k}")
        E(f"s_and_b32 s{sOFF}, s{sOFF}, 7")
        E(f"s_mul_i32 s{sOFF}, s{sOFF}, 3072")
    if q < 2:
        VM(f"buffer_load_dwordx4 {vr(b)}, v{oVA}, {sr(sV)}, s{sOFF} offen offset:{q*1536}{VNT}", f"V{k}")
    else:
        VM(f"buffer_load_dwordx4 {vr(b)}, v{oVB}, {sr(sV)}, s{sOFF} offen{VNT}", f"V{k}")
for n in range(NV1): vload(n)
stamp()
WAIT("GQ")
E("s_mov_b64 exec, 0x3ffff")
L("K1_GQ_CHECK:")
E(f"s_mov_b64 s[{sBAD}:{sBAD+1}], 0")
for p in range(8):
    E(f"v_cmp_ne_u64 vcc, s[{sTAG}:{sTAG+1}], v[{vGa+4*p+2}:{vGa+4*p+3}]")
    E(f"s_or_b64 s[{sBAD}:{sBAD+1}], s[{sBAD}:{sBAD+1}], vcc")
E(f"s_cmp_eq_u64 s[{sBAD}:{sBAD+1}], 0")
E("s_cbranch_scc1 K1_GQ_OK")
E("s_sub_u32 s3, s3, 1")
E("s_cbranch_scc1 K1_GQ_OK")
E("s_sleep 2")
sv = list(vmq)
gather_q()
vmq[:] = sv
E("s_waitcnt vmcnt(0)")
E("s_branch K1_GQ_CHECK")
L("K1_GQ_OK:")
for p in range(1, 8):
    E(f"v_add_f32 v{vGa}, v{vGa}, v{vGa+4*p}")
    E(f"v_add_f32 v{vGa+1}, v{vGa+1}, v{vGa+4*p+1}")
E(f"s_mul_i32 s{sT}, s{sW}, 18")
E(f"v_add_u32 v{vA}, s{sT}, v{vL}")
E(f"v_cvt_pk_bf16_f32 v{vA+1}, v{vGa}, v{vGa+1}")
E(f"v_lshlrev_b32 v{vA+2}, 2, v{vA}")
E(f"v_lshlrev_b32 v{vA+3}, 3, v{vA}")
E(f"v_cmp_gt_u32 vcc, 96, v{vA}")
E(f"s_and_saveexec_b64 s[{sE}:{sE+1}], vcc")
E(f"ds_write_b32 v{vA+2}, v{vA+1} offset:{QBF_OFF}")
E(f"s_andn2_b64 exec, s[{sE}:{sE+1}], vcc")
E(f"ds_write_b64 v{vA+3}, v[{vGa}:{vGa+1}] offset:{GU_OFF - 96*8}")
E("s_mov_b64 exec, -1")
E("s_waitcnt lgkmcnt(0)")
E("s_barrier")
stamp()
E(f"v_lshrrev_b32 v{vA+1}, 3, v{vJ}")
E(f"v_lshlrev_b32 v{vA+1}, 6, v{vA+1}")
E(f"v_lshl_add_u32 v{vA}, v{vG}, 4, v{vA+1}")
for s in range(3):
    E(f"ds_read_b128 {vr(vQ+4*s)}, v{vA} offset:{QBF_OFF + 128*s}")
E(f"v_xor_b32 v{vA+2}, 40, v{vL}")
E(f"v_lshlrev_b32 v{vA+2}, 2, v{vA+2}")
E("s_waitcnt lgkmcnt(0)")
vS = 16
vD = 16
vF = vQ + 12
for Q in range(2):
    for gi in range(4):
        WAIT(f"K{Q}{gi}")
        for s in range(3):
            b = vKB + ((Q * 4 + gi) * 3 + s) * 4
            mfma(vD + 4*gi, b, vQ + 4*s, None if s == 0 else vD + 4*gi)
    E("s_nop 7")
    for r in range(4):
        a, b_, c_, d = vD + r, vD + 4 + r, vD + 8 + r, vD + 12 + r
        u1, u2 = vA + 4, vA + 5
        E(f"v_cndmask_b32 v{u1}, v{b_}, v{a}, s[{sV2}:{sV2+1}]")
        E(f"v_cndmask_b32 v{u2}, v{d}, v{c_}, s[{sV2}:{sV2+1}]")
        E(f"v_cndmask_b32 v{vF+4*Q+r}, v{u1}, v{u2}, s[{sHF}:{sHF+1}]")
        E(f"v_cndmask_b32 v{a}, v{u2}, v{u1}, s[{sHF}:{sHF+1}]")
    for r in range(4):
        E(f"ds_bpermute_b32 v{vD+4+r}, v{vA+2}, v{vD+r}")
    E("s_waitcnt lgkmcnt(0)")
    for r in range(4):
        E(f"v_add_f32 v{vF+4*Q+r}, v{vF+4*Q+r}, v{vD+4+r}")
for r in range(8):
    E(f"v_mov_b32 v{vS+r}, v{vF+r}")
stamp()
for n in range(NV1, 24): vload(n)
oWO = vA
E(f"v_mul_u32_u24 v{oWO}, 1280, v{vG}")
E(f"v_lshl_add_u32 v{oWO}, v{vJ}, 4, v{oWO}")
E(f"v_mov_b32 v{vA+1}, 0x40000000")
E(f"v_cmp_gt_u32 vcc, 10, v{vJ}")
E("s_nop 1")
E(f"v_cndmask_b32 v{oWO}, v{vA+1}, v{oWO}, vcc")
E(f"s_mul_i32 s{sOFF}, s{sW}, 10240")
for k in range(3):
    E(f"s_add_u32 s{sT}, s{sOFF}, {k*81920}")
    VM(f"buffer_load_dwordx4 {vr(vKB+8*k)}, v{oWO}, {sr(sWO)}, s{sT} offen{ANT}", "WO")
    E(f"s_add_u32 s{sT}, s{sOFF}, {k*81920 + 5120}")
    VM(f"buffer_load_dwordx4 {vr(vKB+8*k+4)}, v{oWO}, {sr(sWO)}, s{sT} offen{ANT}", "WO")
E(f"s_cmp_lt_u32 s{sW}, 6")
E(f"s_cselect_b32 s{sT}, 0, 0x40000000")
E(f"v_add_u32 v{vA+1}, s{sT}, v{oWO}")
E(f"v_or_b32 v{vA+1}, v{vA+1}, v{oWO}")
VM(f"buffer_load_dwordx4 {vr(vKB+24)}, v{vA+1}, {sr(sWD)}, s{sOFF} offen{ANT}", "WO")
E(f"s_add_u32 s{sT}, s{sOFF}, 5120")
VM(f"buffer_load_dwordx4 {vr(vKB+28)}, v{vA+1}, {sr(sWD)}, s{sT} offen{ANT}", "WO")
t = vA + 1
E(f"v_max3_f32 v{t}, v{vS}, v{vS+1}, v{vS+2}")
E(f"v_max3_f32 v{t}, v{t}, v{vS+3}, v{vS+4}")
E(f"v_max3_f32 v{t}, v{t}, v{vS+5}, v{vS+6}")
E(f"v_max_f32 v{t}, v{t}, v{vS+7}")
E("s_nop 1")
E(f"v_max_f32_dpp v{t}, v{t}, v{t} row_ror:8 row_mask:0xf bank_mask:0xf")
E("s_nop 1")
for q in range(4):
    E(f"v_readlane_b32 s{sR0+q}, v{t}, {16*q}")
E("s_nop 1")
E(f"v_mov_b32 v{t}, s{sR0}")
E(f"v_max_f32 v{t}, s{sR0+1}, v{t}")
E(f"v_max_f32 v{t}, s{sR0+2}, v{t}")
E(f"v_max_f32 v{t}, s{sR0+3}, v{t}")
E(f"s_lshl_b32 s{sT}, s{sW}, 2")
E(f"v_mov_b32 v{t+1}, s{sT}")
E(f"ds_write_b32 v{t+1}, v{t} offset:{ST_OFF}")
E(f"v_mul_f32 v{t}, s{sSC}, v{t}")
for r in range(8):
    E(f"v_fma_f32 v{vS+r}, v{vS+r}, s{sSC}, -v{t}")
for r in range(8):
    E(f"v_exp_f32 v{vS+r}, v{vS+r}")
E("s_nop 0")
t2 = vA + 3
E(f"v_add_f32 v{t2}, v{vS}, v{vS+1}")
for r in range(2, 8):
    E(f"v_add_f32 v{t2}, v{t2}, v{vS+r}")
E("s_nop 1")
E(f"v_add_f32_dpp v{t2}, v{t2}, v{t2} row_ror:8 row_mask:0xf bank_mask:0xf")
E("s_nop 1")
for q in range(4):
    E(f"v_readlane_b32 s{sR0+q}, v{t2}, {16*q}")
E("s_nop 1")
E(f"v_mov_b32 v{t2}, s{sR0}")
E(f"v_add_f32 v{t2}, s{sR0+1}, v{t2}")
E(f"v_add_f32 v{t2}, s{sR0+2}, v{t2}")
E(f"v_add_f32 v{t2}, s{sR0+3}, v{t2}")
E(f"ds_write_b32 v{t+1}, v{t2} offset:{ST_OFF+32}")
for r in range(8):
    E(f"v_cvt_pk_bf16_f32 v{vS+r}, v{vS+r}, v{vS+r}")
E("s_waitcnt lgkmcnt(0)")
stamp()
vPA = vS + 8
vBP = vA
for k in range(8):
    expand(vS + k, vBP)
    WAIT(f"V{k}")
    E("s_nop 0")
    b = vVB + 12 * k
    for q in range(3):
        mfma(vPA + 4*q, b + 4*q, vBP, None if k == 0 else vPA + 4*q)
stamp()
a1, a2, tt = vS, vS+1, vS+2
E(f"v_lshrrev_b32 v{tt}, 3, v{vJ}")
E(f"s_lshl_b32 s{sT}, s{sW}, 1")
E(f"v_add_u32 v{tt}, s{sT}, v{tt}")
E(f"v_mul_u32_u24 v{a1}, {P2_STR}, v{tt}")
E(f"v_and_b32 v{tt}, 7, v{vJ}")
E(f"v_lshl_add_u32 v{a1}, v{tt}, 2, v{a1}")
E(f"v_and_b32 v{tt}, 1, v{vG}")
E(f"v_lshl_add_u32 v{a2}, v{tt}, 7, v{a1}")
E(f"v_lshl_add_u32 v{a1}, v{vG}, 7, v{a1}")
E("s_nop 7")
for r in range(4):
    E(f"v_cndmask_b32 v{vPA+r}, v{vPA+r}, v{vPA+4+r}, s[{sHF}:{sHF+1}]")
for r in range(4):
    E(f"ds_write_b32 v{a1}, v{vPA+r} offset:{P2_OFF + r*32}")
E(f"s_mov_b64 exec, s[{sV2}:{sV2+1}]")
for r in range(4):
    E(f"ds_write_b32 v{a2}, v{vPA+8+r} offset:{P2_OFF + 512 + r*32}")
E("s_mov_b64 exec, -1")
E("s_waitcnt lgkmcnt(0)")
E("s_barrier")
stamp()
vT = vVB
E(f"v_mov_b32 v{vT+1}, 0")
for w in range(5):
    E(f"ds_read_b32 v{vT+60+w}, v{vT+1} offset:{Z_OFF + 4*w}")
E(f"s_cmp_ge_u32 s{sW}, 3")
E("s_cbranch_scc1 K1_T_WAIT")
E(f"s_cmp_eq_u32 s{sW}, 2")
E("s_cbranch_scc1 K1_T_H")
E(f"v_lshlrev_b32 v{vT}, 3, v0")
E(f"ds_read_b128 {vr(vT+4)}, v{vT+1} offset:{ST_OFF}")
E(f"ds_read_b128 {vr(vT+8)}, v{vT+1} offset:{ST_OFF+16}")
E(f"ds_read_b128 {vr(vT+12)}, v{vT+1} offset:{ST_OFF+32}")
E(f"ds_read_b128 {vr(vT+16)}, v{vT+1} offset:{ST_OFF+48}")
for s in range(16):
    E(f"ds_read_b64 v[{vT+20+2*s}:{vT+21+2*s}], v{vT} offset:{P2_OFF + s*P2_STR}")
E("s_waitcnt lgkmcnt(0)")
mm, ll = vT + 2, vT + 3
E(f"v_max3_f32 v{mm}, v{vT+4}, v{vT+5}, v{vT+6}")
E(f"v_max3_f32 v{mm}, v{mm}, v{vT+7}, v{vT+8}")
E(f"v_max3_f32 v{mm}, v{mm}, v{vT+9}, v{vT+10}")
E(f"v_max_f32 v{mm}, v{mm}, v{vT+11}")
for w in range(8):
    E(f"v_sub_f32 v{vT+4+w}, v{vT+4+w}, v{mm}")
for w in range(8):
    E(f"v_mul_f32 v{vT+4+w}, s{sSC}, v{vT+4+w}")
for w in range(8):
    E(f"v_exp_f32 v{vT+4+w}, v{vT+4+w}")
E("s_nop 0")
E(f"v_mul_f32 v{ll}, v{vT+4}, v{vT+12}")
for w in range(1, 8):
    E(f"v_fmac_f32 v{ll}, v{vT+4+w}, v{vT+12+w}")
for w in range(8):
    for q in range(2):
        E(f"v_add_f32 v{vT+20+4*w+q}, v{vT+20+4*w+q}, v{vT+22+4*w+q}")
vO = vT + 52
for q in range(2):
    E(f"v_mul_f32 v{vO+q}, v{vT+4}, v{vT+20+q}")
    for w in range(1, 8):
        E(f"v_fmac_f32 v{vO+q}, v{vT+4+w}, v{vT+20+4*w+q}")
E("v_cmp_eq_u32 vcc, 96, v0")
E(f"v_lshlrev_b32 v{vT+56}, 4, v0")
E(f"v_add_u32 v{vT+56}, 16, v{vT+56}")
E(f"v_cndmask_b32 v{vO}, v{vO}, v{mm}, vcc")
E(f"v_cndmask_b32 v{vO+1}, v{vO+1}, v{ll}, vcc")
E(f"v_cndmask_b32 v{vT+57}, v{vT+56}, 0, vcc")
E(f"v_mov_b32 v{vO+2}, s{sTAG}")
E(f"v_mov_b32 v{vO+3}, s{sTAG+1}")
E(f"s_lshl_b32 s{sT}, s{sROW}, 11")
E(f"s_add_u32 s{sT}, s{sT}, {WS_G2}")
E("v_cmp_gt_u32 vcc, 97, v0")
E(f"s_and_saveexec_b64 s[{sE}:{sE+1}], vcc")
E(f"buffer_store_dwordx4 {vr(vO)}, v{vT+57}, {sr(sWS)}, s{sT} offen sc1")
E(f"s_mov_b64 exec, s[{sE}:{sE+1}]")
stamp()
def calc_g(dst, z):
    for w in range(1, 5):
        E(f"v_add_f32 v{z}, v{z}, v{z+w}")
    E(f"v_mul_f32 v{dst}, 0xbfb8aa3b, v{z}")
    E(f"v_exp_f32 v{dst}, v{dst}")
    E("s_nop 0")
    E(f"v_add_f32 v{dst}, 1.0, v{dst}")
    E(f"v_rcp_f32 v{dst}, v{dst}")
    E("s_nop 0")
vGg = vT + 58
calc_g(vGg, vT + 60)
E(f"s_lshl_b32 s{sR0}, s{sH}, 14")
E(f"s_add_u32 s{sR0}, s{sR0}, {WS_G2}")
E("v_cmp_gt_u32 vcc, 96, v0")
E(f"s_and_saveexec_b64 s[{sE}:{sE+1}], vcc")
vGo = vT + 64
vGo = vKB + 32
L("K1_GO_LOOP:")
for p in range(8):
    E(f"s_add_u32 s{sT}, s{sR0}, {p*2048}")
    E(f"buffer_load_dwordx4 {vr(vGo+4*p)}, v{vT+56}, {sr(sWS)}, s{sT} offen sc1")
    E(f"buffer_load_dwordx4 {vr(vGo+32+4*p)}, v{vT+1}, {sr(sWS)}, s{sT} offen sc1")
E("s_waitcnt vmcnt(0)")
E(f"s_mov_b64 s[{sBAD}:{sBAD+1}], 0")
for p in range(16):
    E(f"v_cmp_ne_u64 vcc, s[{sTAG}:{sTAG+1}], v[{vGo+4*p+2}:{vGo+4*p+3}]")
    E(f"s_or_b64 s[{sBAD}:{sBAD+1}], s[{sBAD}:{sBAD+1}], vcc")
E(f"s_cmp_eq_u64 s[{sBAD}:{sBAD+1}], 0")
E("s_cbranch_scc1 K1_GO_OK")
E("s_sub_u32 s3, s3, 1")
E("s_cbranch_scc1 K1_GO_OK")
E("s_sleep 1")
E("s_branch K1_GO_LOOP")
L("K1_GO_OK:")
stamp()
sm = vGo + 32
E(f"v_max3_f32 v{mm}, v{sm}, v{sm+4}, v{sm+8}")
E(f"v_max3_f32 v{mm}, v{mm}, v{sm+12}, v{sm+16}")
E(f"v_max3_f32 v{mm}, v{mm}, v{sm+20}, v{sm+24}")
E(f"v_max_f32 v{mm}, v{mm}, v{sm+28}")
for p in range(8):
    E(f"v_sub_f32 v{sm+4*p}, v{sm+4*p}, v{mm}")
for p in range(8):
    E(f"v_mul_f32 v{sm+4*p}, s{sSC}, v{sm+4*p}")
for p in range(8):
    E(f"v_exp_f32 v{sm+4*p}, v{sm+4*p}")
E("s_nop 0")
E(f"v_mul_f32 v{ll}, v{sm}, v{sm+1}")
for p in range(1, 8):
    E(f"v_fmac_f32 v{ll}, v{sm+4*p}, v{sm+4*p+1}")
E(f"v_rcp_f32 v{ll}, v{ll}")
for q in range(2):
    E(f"v_mul_f32 v{vO+q}, v{sm}, v{vGo+q}")
    for p in range(1, 8):
        E(f"v_fmac_f32 v{vO+q}, v{sm+4*p}, v{vGo+4*p+q}")
E(f"v_mul_f32 v{ll}, v{ll}, v{vGg}")
E(f"v_mul_f32 v{vO}, v{vO}, v{ll}")
E(f"v_mul_f32 v{vO+1}, v{vO+1}, v{ll}")
E(f"v_cvt_pk_bf16_f32 v{vO}, v{vO}, v{vO+1}")
E(f"v_lshlrev_b32 v{vT}, 2, v0")
E(f"ds_write_b32 v{vT}, v{vO} offset:{OBF_OFF}")
E(f"s_mov_b64 exec, s[{sE}:{sE+1}]")
E("s_branch K1_T_WAIT")
L("K1_T_H:")
E(f"v_lshlrev_b32 v{vT}, 3, v{vL}")
E(f"ds_read_b64 v[{vT+4}:{vT+5}], v{vT} offset:{GU_OFF}")
E(f"ds_read_b64 v[{vT+6}:{vT+7}], v{vT} offset:{GU_OFF + 192}")
E("s_waitcnt lgkmcnt(0)")
calc_g(vGg, vT + 60)
E(f"v_sub_f32 v{vGg}, 1.0, v{vGg}")
E(f"v_cvt_pk_bf16_f32 v{vT+4}, v{vT+4}, v{vT+5}")
E(f"v_cvt_pk_bf16_f32 v{vT+6}, v{vT+6}, v{vT+7}")
E(f"v_lshlrev_b32 v{vT+8}, 16, v{vT+4}")
E(f"v_and_b32 v{vT+9}, 0xffff0000, v{vT+4}")
E(f"v_lshlrev_b32 v{vT+10}, 16, v{vT+6}")
E(f"v_and_b32 v{vT+11}, 0xffff0000, v{vT+6}")
E(f"v_max_f32 v{vT+8}, 0, v{vT+8}")
E(f"v_max_f32 v{vT+9}, 0, v{vT+9}")
E(f"v_mul_f32 v{vT+8}, v{vT+8}, v{vT+10}")
E(f"v_mul_f32 v{vT+9}, v{vT+9}, v{vT+11}")
E(f"v_cvt_pk_bf16_f32 v{vT+8}, v{vT+8}, v{vT+9}")
E(f"v_lshlrev_b32 v{vT+10}, 16, v{vT+8}")
E(f"v_and_b32 v{vT+11}, 0xffff0000, v{vT+8}")
E(f"v_mul_f32 v{vT+10}, v{vT+10}, v{vGg}")
E(f"v_mul_f32 v{vT+11}, v{vT+11}, v{vGg}")
E(f"v_cvt_pk_bf16_f32 v{vT+8}, v{vT+10}, v{vT+11}")
E(f"v_cmp_gt_u32 vcc, 24, v{vL}")
E("s_nop 1")
E(f"v_cndmask_b32 v{vT+8}, 0, v{vT+8}, vcc")
E(f"v_lshlrev_b32 v{vT}, 2, v{vL}")
E("s_mov_b64 exec, 0xffffffff")
E(f"ds_write_b32 v{vT}, v{vT+8} offset:{OBF_OFF + 384}")
E("s_mov_b64 exec, -1")
L("K1_T_WAIT:")
E("s_waitcnt lgkmcnt(0)")
E("s_barrier")
stamp()
vB = vT + 4
E(f"v_lshrrev_b32 v{vT}, 3, v{vJ}")
E(f"v_lshl_add_u32 v{vT}, v{vT}, 2, v{vG}")
E(f"v_lshlrev_b32 v{vT}, 1, v{vT}")
E(f"s_lshl_b32 s{sT}, s{sW}, 4")
E(f"v_add_u32 v{vT}, s{sT}, v{vT}")
for k in range(4):
    E(f"ds_read_u16 v{vT+20+k}, v{vT} offset:{OBF_OFF + 128*k}")
E("s_waitcnt lgkmcnt(0)")
for k in range(4):
    E(f"v_lshl_or_b32 v{vT+20+k}, v{vT+20+k}, 16, v{vT+20+k}")
for k in range(4):
    expand(vT + 20 + k, vB + 4*k)
E("s_waitcnt vmcnt(0)")
vY = vT + 24
for k in range(4):
    mfma(vY, vKB + 8*k, vB + 4*k, None if k == 0 else vY)
    mfma(vY + 4, vKB + 8*k + 4, vB + 4*k, None if k == 0 else vY + 4)
E(f"v_lshrrev_b32 v{vT+1}, 3, v{vJ}")
E(f"s_lshl_b32 s{sT}, s{sW}, 1")
E(f"v_add_u32 v{vT+1}, s{sT}, v{vT+1}")
E(f"v_mul_u32_u24 v{vT}, {Y_STR}, v{vT+1}")
E(f"v_and_b32 v{vT+1}, 7, v{vJ}")
E(f"v_lshl_add_u32 v{vT}, v{vT+1}, 2, v{vT}")
E(f"v_lshl_add_u32 v{vT}, v{vG}, 7, v{vT}")
E("s_nop 7")
for r in range(4):
    E(f"v_cndmask_b32 v{vY+r}, v{vY+r}, v{vY+4+r}, s[{sHF}:{sHF+1}]")
for r in range(4):
    E(f"ds_write_b32 v{vT}, v{vY+r} offset:{Y_OFF + r*32}")
E("s_waitcnt lgkmcnt(0)")
E("s_barrier")
E(f"s_cmp_lg_u32 s{sW}, 0")
E("s_cbranch_scc1 K1_PUB3_DONE")
E("s_mov_b32 exec_lo, -1")
E("s_mov_b32 exec_hi, 0xff")
E(f"v_lshlrev_b32 v{vT}, 3, v0")
for s in range(16):
    E(f"ds_read_b64 v[{vT+4+2*s}:{vT+5+2*s}], v{vT} offset:{Y_OFF + s*Y_STR}")
E("s_waitcnt lgkmcnt(0)")
for st in (8, 4, 2, 1):
    for s in range(st):
        for q in range(2):
            E(f"v_add_f32 v{vT+4+2*s+q}, v{vT+4+2*s+q}, v{vT+4+2*(s+st)+q}")
E(f"v_mov_b32 v{vT+6}, s{sTAG}")
E(f"v_mov_b32 v{vT+7}, s{sTAG+1}")
E(f"v_lshlrev_b32 v{vT}, 4, v0")
E(f"s_lshl_b32 s{sT}, s{sC}, 5")
E(f"s_add_u32 s{sT}, s{sT}, s{sH}")
E(f"s_mul_i32 s{sT}, s{sT}, 640")
E(f"s_add_u32 s{sT}, s{sT}, {WS_G3}")
E(f"buffer_store_dwordx4 {vr(vT+4)}, v{vT}, {sr(sWS)}, s{sT} offen sc1")
E("s_mov_b64 exec, -1")
L("K1_PUB3_DONE:")
stamp()
E(f"s_lshl_b32 s{sT}, s{sC}, 2")
E(f"s_cmp_lg_u32 s{sT}, s{sH}")
E("s_cbranch_scc1 K1_STAMPS")
E(f"s_lshl_b32 s{sR0}, s{sC}, 5")
E(f"s_lshl_b32 s{sT}, s{sW}, 2")
E(f"s_add_u32 s{sR0}, s{sR0}, s{sT}")
E(f"s_mul_i32 s{sR0}, s{sR0}, 640")
E(f"s_add_u32 s{sR0}, s{sR0}, {WS_G3}")
E(f"v_lshlrev_b32 v{vT}, 4, v{vL}")
E("s_mov_b32 exec_lo, -1")
E("s_mov_b32 exec_hi, 0xff")
L("K1_GF_LOOP:")
for p in range(4):
    E(f"buffer_load_dwordx4 {vr(vT+4+4*p)}, v{vT}, {sr(sWS)}, s{sR0} offen offset:{640*p} sc1")
E("s_waitcnt vmcnt(0)")
E(f"s_mov_b64 s[{sBAD}:{sBAD+1}], 0")
for p in range(4):
    E(f"v_cmp_ne_u64 vcc, s[{sTAG}:{sTAG+1}], v[{vT+4+4*p+2}:{vT+4+4*p+3}]")
    E(f"s_or_b64 s[{sBAD}:{sBAD+1}], s[{sBAD}:{sBAD+1}], vcc")
E(f"s_cmp_eq_u64 s[{sBAD}:{sBAD+1}], 0")
E("s_cbranch_scc1 K1_GF_OK")
E("s_sub_u32 s3, s3, 1")
E("s_cbranch_scc1 K1_GF_OK")
E("s_sleep 1")
E("s_branch K1_GF_LOOP")
L("K1_GF_OK:")
for p in range(1, 4):
    E(f"v_add_f32 v{vT+4}, v{vT+4}, v{vT+4+4*p}")
    E(f"v_add_f32 v{vT+5}, v{vT+5}, v{vT+5+4*p}")
E(f"v_lshlrev_b32 v{vT}, 3, v{vL}")
E(f"s_mul_i32 s{sT}, s{sW}, 320")
E(f"v_add_u32 v{vT}, s{sT}, v{vT}")
E(f"ds_write_b64 v{vT}, v[{vT+4}:{vT+5}] offset:{FR_OFF}")
E("s_mov_b64 exec, -1")
E("s_waitcnt lgkmcnt(0)")
E("s_barrier")
E(f"s_cmp_lg_u32 s{sW}, 0")
E("s_cbranch_scc1 K1_STAMPS")
E("s_mov_b32 exec_lo, -1")
E("s_mov_b32 exec_hi, 0xff")
E(f"v_lshlrev_b32 v{vT}, 3, v{vL}")
for w in range(8):
    E(f"ds_read_b64 v[{vT+4+2*w}:{vT+5+2*w}], v{vT} offset:{FR_OFF + 320*w}")
E(f"s_mov_b32 s{sWG}, s28")
E(f"s_and_b32 s{sWG+1}, s29, 0xffff")
E(f"s_mov_b32 s{sWG+2}, 1280")
E(f"s_mov_b32 s{sWG+3}, 0x00020000")
E("s_waitcnt lgkmcnt(0)")
for st in (4, 2, 1):
    for s in range(st):
        for q in range(2):
            E(f"v_add_f32 v{vT+4+2*s+q}, v{vT+4+2*s+q}, v{vT+4+2*(s+st)+q}")
E(f"v_cvt_pk_bf16_f32 v{vT+4}, v{vT+4}, v{vT+5}")
E(f"v_lshlrev_b32 v{vT}, 2, v{vL}")
E(f"s_mul_i32 s{sT}, s{sC}, 160")
E(f"buffer_store_dword v{vT+4}, v{vT}, {sr(sWG)}, s{sT} offen")
E(f"s_cmp_lg_u32 s{sC}, 0")
E("s_cbranch_scc1 K1_NOEP")
E("s_mov_b64 exec, 1")
E(f"v_mov_b32 v{vT+6}, s{sTAG}")
E(f"v_mov_b32 v{vT+7}, s{sTAG+1}")
E(f"v_mov_b32 v{vT}, 0")
E(f"buffer_store_dwordx2 v[{vT+6}:{vT+7}], v{vT}, {sr(sWS)}, 0 offen")
L("K1_NOEP:")
E("s_mov_b64 exec, -1")
L("K1_STAMPS:")
if DBG:
    E("s_mov_b64 exec, -1")
    E("s_waitcnt vmcnt(0) lgkmcnt(0)")
    E(f"s_cmp_lg_u32 s{sW}, 0")
    E("s_cbranch_scc1 K1_END")
    E("s_cmp_lg_u32 s93, 0")
    E("s_cbranch_scc1 K1_END")
    E("s_memrealtime s[2:3]")
    E("s_memtime s[6:7]")
    E("s_waitcnt lgkmcnt(0)")
    E("s_sub_u32 s6, s6, s95")
    E("s_sub_u32 s2, s2, s94")
    E("v_mov_b32 v10, 0")
    E("v_writelane_b32 v10, s6, 0")
    E("v_writelane_b32 v10, s2, 1")
    for i in range(1, stamp_n[0]):
        r = stamp_regs[i]
        E(f"s_sub_u32 s6, s{r}, s94")
        E(f"v_writelane_b32 v10, s6, {i+1}")
    E("v_lshlrev_b32 v11, 2, v1")
    E("v_cmp_gt_u32 vcc, 16, v1")
    E("s_and_saveexec_b64 s[86:87], vcc")
    E("global_store_dword v11, v10, s[30:31]")
elif ST:
    E("s_mov_b64 exec, -1")
    E("s_waitcnt vmcnt(0) lgkmcnt(0)")
    E(f"s_cmp_lg_u32 s{sW}, {STW}")
    E("s_cbranch_scc1 K1_END")
    E("s_memrealtime s[2:3]")
    E("s_waitcnt lgkmcnt(0)")
    regs = stamp_regs[:stamp_n[0]]
    for i, r in enumerate(regs):
        E(f"v_writelane_b32 v10, s{r}, {2*i}")
        E(f"v_writelane_b32 v10, s{r+1}, {2*i+1}")
    n = len(regs)
    E(f"v_writelane_b32 v10, s2, {2*n}")
    E(f"v_writelane_b32 v10, s3, {2*n+1}")
    E("v_lshlrev_b32 v11, 2, v1")
    E(f"s_lshl_b32 s39, s93, 7")
    E("s_add_u32 s39, s39, 0x300000")
    E(f"v_cmp_gt_u32 vcc, {2*n+2}, v1")
    E("s_and_saveexec_b64 s[86:87], vcc")
    E(f"buffer_store_dword v10, v11, {sr(sWS)}, s39 offen")
L("K1_END:")
E("s_endpgm")

L('.section .rodata,"a"')
L(".p2align 6")
L(f".amdhsa_kernel {K1}")
L(f"  .amdhsa_next_free_vgpr 256")
L(f"  .amdhsa_next_free_sgpr 102")
L(f"  .amdhsa_accum_offset 256")
L("  .amdhsa_group_segment_fixed_size 0")
L("  .amdhsa_kernarg_size 104")
L("  .amdhsa_user_sgpr_count 2")
L("  .amdhsa_user_sgpr_kernarg_segment_ptr 1")
L("  .amdhsa_system_sgpr_workgroup_id_x 1")
L(".end_amdhsa_kernel")
open(sys.argv[1], 'w').write('\n'.join(out) + '\n')
```

```python
import sys, struct

NAME = "gated_mix__sliding_block_cached__glu_gated_reglu__decode"
out = []
def E(s): out.append("    " + s)
def L(s): out.append(s)

HEADER = open('cdna_kernels/' + NAME + '.s.ref').read().split('\n')
hdr = []
for ln in HEADER:
    if ln.startswith('; @launch') or ln.startswith('.amdgcn_target'):
        break
    hdr.append(ln)

opts = (sys.argv[2] if len(sys.argv) > 2 else "").split(',')
def opt(name, default=None):
    for o in opts:
        if o == name: return True
        if o.startswith(name + '='): return o.split('=')[1]
    return default
NT = " nt" if not opt('nont') else ""
if opt('pol'): NT = " " + opt('pol').replace('+', ' ')
KNT = "" if opt('kplain') else NT
VNT = "" if opt('vplain') else NT
WNT = " nt" if (opt('wnt') or opt('allnt')) else ""
ANT = " nt" if opt('allnt') else ""
ST = opt('st') or opt('dbg')
DBG = opt('dbg')
STW = int(opt('stw', 0))
NK0 = int(opt('nk0', 8))
NV1 = int(opt('nv1', 15))

P0_OFF = 0;      P0_STR = 1312
P2_OFF = 16 * P0_STR;  P2_STR = 800
Y_OFF  = P2_OFF + 16 * P2_STR; Y_STR = 544
QBF_OFF = Y_OFF + 16 * Y_STR
GU_OFF  = QBF_OFF + 384
OBF_OFF = GU_OFF + 384
ST_OFF  = OBF_OFF + 512
Z_OFF   = ST_OFF + 64
FR_OFF  = Z_OFF + 64
LDS_SZ  = FR_OFF + 8 * 320
assert LDS_SZ <= 65536

WS_G0 = 0x1000
WS_G2 = 0x100000
WS_G2A = 0x180000
WS_G3 = 0x200000

SCALE_LOG2E = (192.0 ** -0.5) * 1.4426950408889634
def f32bits(x): return struct.unpack('<I', struct.pack('<f', x))[0]

K1 = NAME + "_kernel"
L('\n'.join(hdr))
L(f"; @launch grid=(256,1,1) block=(512,1,1) lds=65536")
L('.amdgcn_target "amdgcn-amd-amdhsa--gfx950"')
L(".text")
L(f".globl {K1}")
L(".p2align 8")
L(f".type {K1},@function")
L(f"{K1}:")

vL, vG, vJ = 1, 2, 3
vM = [4, 5, 6, 7]
vA = 8
vKB = 40
vVB = 136
vQ = 232

sW, sXCD, sIDX, sH, sC, sT = 34, 35, 36, 37, 38, 39
sK, sV, sWQ, sWO, sWG, sWU, sWD, sX, sWS = 40, 44, 48, 52, 56, 60, 64, 68, 72
sHF = 78
sV2 = 80
sOFF = 82
sSC = 83
sROW = 85
sE = 86
sR0 = 88
sTAG = 4
sBAD = 6
sGW = 76
stamp_regs = [94] + [10, 12, 14, 16, 18, 20, 22, 24, 96, 98, 100, 32, 8]
stamp_n = [0]
def stamp():
    if not ST: return
    r = stamp_regs[stamp_n[0]]; stamp_n[0] += 1
    E(f"s_memrealtime s[{r}:{r+1}]")
def vr(a, n=4): return f"v[{a}:{a+n-1}]"
def sr(a, n=4): return f"s[{a}:{a+n-1}]"

vmq = []
def VM(s, tag):
    E(s); vmq.append(tag)
def WAIT(tag):
    idx = max(i for i, t in enumerate(vmq) if t == tag)
    n = len(vmq) - 1 - idx
    assert n <= 63, n
    E(f"s_waitcnt vmcnt({n})")

def srd(dst, plo, off_s, nrec):
    E(f"s_add_u32 s{dst}, s{plo}, s{off_s}")
    E(f"s_addc_u32 s{dst+1}, s{plo+1}, 0")
    E(f"s_and_b32 s{dst+1}, s{dst+1}, 0xffff")
    E(f"s_mov_b32 s{dst+2}, {nrec}")
    E(f"s_mov_b32 s{dst+3}, 0x00020000")

def dpp_reduce(regs):
    for ctl in ["row_shr:1", "row_shr:2", "row_shr:4", "row_shr:8"]:
        for r in regs:
            E(f"v_add_f32_dpp v{r}, v{r}, v{r} {ctl} row_mask:0xf bank_mask:0xf bound_ctrl:0")
        if len(regs) < 3: E("s_nop 1")
    for r in regs:
        E(f"v_add_f32_dpp v{r}, v{r}, v{r} row_bcast:15 row_mask:0xa bank_mask:0xf")
    if len(regs) < 3: E("s_nop 1")
    for r in regs:
        E(f"v_add_f32_dpp v{r}, v{r}, v{r} row_bcast:31 row_mask:0xc bank_mask:0xf")

def expand(dup, dst):
    for w in range(4):
        E(f"v_and_b32 v{dst+w}, v{dup}, v{vM[w]}")

def mfma(d, a, b, c):
    E(f"v_mfma_f32_16x16x32_bf16 {vr(d)}, {vr(a)}, {vr(b)}, {'0' if c is None else vr(c)}")

E("s_cmp_ge_u32 s2, 256")
E("s_cbranch_scc1 K1_END")
if ST: E("s_mov_b32 s93, s2")
stamp()
if DBG: E("s_memtime s[6:7]")
E("s_load_dwordx16 s[8:23], s[0:1], 0")
E("s_load_dwordx8 s[24:31], s[0:1], 64")
E("s_load_dwordx2 s[32:33], s[0:1], 96")
E(f"v_and_b32 v{vL}, 63, v0")
E(f"v_bfe_u32 v{vG}, v0, 4, 2")
E(f"v_and_b32 v{vJ}, 15, v0")
E(f"v_lshrrev_b32 v{vA}, 6, v0")
E("s_nop 0")
E(f"v_readfirstlane_b32 s{sW}, v{vA}")
E(f"s_and_b32 s{sXCD}, s2, 7")
E(f"s_lshr_b32 s{sIDX}, s2, 3")
E(f"s_and_b32 s{sH}, s{sIDX}, 3")
E(f"s_lshl_b32 s{sT}, s{sXCD}, 2")
E(f"s_add_u32 s{sH}, s{sH}, s{sT}")
E(f"s_lshr_b32 s{sC}, s{sIDX}, 2")
E(f"s_lshl_b32 s{sROW}, s{sH}, 3")
E(f"s_add_u32 s{sROW}, s{sROW}, s{sC}")
sROT = 84
if opt('norot'):
    E(f"s_mov_b32 s{sROT}, 0")
else:
    E(f"s_mul_i32 s{sROT}, s{sH}, 5")
    E(f"s_mul_i32 s{sT}, s{sC}, 3")
    E(f"s_add_u32 s{sROT}, s{sROT}, s{sT}")
    if opt('rotw'): E(f"s_add_u32 s{sROT}, s{sROT}, s{sW}")
    E(f"s_and_b32 s{sROT}, s{sROT}, 7")
E("s_mov_b32 s3, 0x40003")
E(f"s_mov_b32 s{sHF}, 0xFF00FF00")
E(f"s_mov_b32 s{sHF+1}, 0xFF00FF00")
E(f"s_mov_b32 s{sV2}, 0x00FF00FF")
E(f"s_mov_b32 s{sV2+1}, 0xFF00FF00")
E(f"s_mov_b32 s{sSC}, 0x{f32bits(SCALE_LOG2E):08x}")
t0, t1, t2, t3 = vA, vA+1, vA+2, vA+3
E(f"v_and_b32 v{t0}, 1, v{vJ}")
E(f"v_lshlrev_b32 v{t0}, 4, v{t0}")
E(f"v_mov_b32 v{t1}, 0xffff")
E(f"v_lshlrev_b32 v{t1}, v{t0}, v{t1}")
E(f"v_bfe_u32 v{t2}, v{vJ}, 1, 2")
for w in range(4):
    E(f"v_cmp_eq_u32 vcc, {w}, v{t2}")
    E("s_nop 1")
    E(f"v_cndmask_b32 v{vM[w]}, 0, v{t1}, vcc")
vHF, vGH, vJ7 = vA, vA+1, vA+2
E(f"v_lshrrev_b32 v{vHF}, 3, v{vJ}")
E(f"v_lshl_add_u32 v{vGH}, v{vHF}, 2, v{vG}")
E(f"v_and_b32 v{vJ7}, 7, v{vJ}")
oWA, oWA2, oWB, oG, oX, oKa, oKb, oGX = 32, 33, 34, 35, 36, 38, 39, 37
E(f"v_mul_u32_u24 v{oWA}, 12288, v{vG}")
E(f"v_lshl_add_u32 v{oWA}, v{vJ}, 4, v{oWA}")
E(f"v_add_u32 v{oWA2}, 49152, v{oWA}")
E(f"v_mul_u32_u24 v{oWB}, 12288, v{vGH}")
E(f"v_lshl_add_u32 v{oWB}, v{vJ7}, 4, v{oWB}")
E(f"v_add_u32 v{oWB}, 256, v{oWB}")
E(f"v_mul_u32_u24 v{oG}, 3072, v{vGH}")
E(f"v_lshl_add_u32 v{oG}, v{vJ7}, 4, v{oG}")
E(f"v_mov_b32 v{t3}, 0x40000000")
E(f"v_cmp_gt_u32 vcc, 6, v{vJ7}")
E("s_nop 1")
E(f"v_cndmask_b32 v{oG}, v{t3}, v{oG}, vcc")
E(f"v_lshlrev_b32 v{oX}, 1, v{vGH}")
E(f"v_lshlrev_b32 v{oGX}, 2, v0")
oK = [[252, 253], [254, 255]]
for Q in range(2):
    a_, b_ = oK[Q]
    E(f"v_and_b32 v{a_}, 3, v{vJ}")
    E(f"v_add_u32 v{a_}, s{sROT}, v{a_}")
    if Q: E(f"v_add_u32 v{a_}, 4, v{a_}")
    E(f"v_and_b32 v{a_}, 7, v{a_}")
    E(f"v_lshlrev_b32 v{a_}, 3, v{a_}")
    E(f"v_bfe_u32 v{t3}, v{vJ}, 2, 1")
    E(f"v_add_u32 v{a_}, v{a_}, v{t3}")
    E(f"v_mul_u32_u24 v{a_}, 384, v{a_}")
    E(f"v_lshl_add_u32 v{a_}, v{vG}, 4, v{a_}")
    E(f"v_lshlrev_b32 v{t3}, 6, v{vHF}")
    E(f"v_sub_u32 v{b_}, v{a_}, v{t3}")
    E(f"v_add_u32 v{b_}, 64, v{b_}")
    E(f"v_add_u32 v{a_}, v{a_}, v{t3}")
E("s_waitcnt lgkmcnt(0)")
if DBG: E("s_mov_b32 s95, s6")
E(f"s_load_dwordx2 s[{sTAG}:{sTAG+1}], s[32:33], 0")
E(f"s_mul_i32 s{sT}, s{sH}, 12582912")
E(f"s_mul_i32 s{sOFF}, s{sC}, 196608")
E(f"s_add_u32 s{sT}, s{sT}, s{sOFF}")
E(f"s_mul_i32 s{sOFF}, s{sW}, 24576")
E(f"s_add_u32 s{sT}, s{sT}, s{sOFF}")
E(f"s_add_u32 s{sT}, s{sT}, 11010048")
srd(sK, 10, sT, 24576)
srd(sV, 12, sT, 24576)
E(f"s_mul_i32 s{sR0}, s{sC}, 80")
E(f"s_lshl_b32 s{sOFF}, s{sW}, 3")
E(f"s_add_u32 s{sR0}, s{sR0}, s{sOFF}")
E(f"s_mul_i32 s{sT}, s{sR0}, 12288")
E(f"s_mul_i32 s{sOFF}, s{sH}, 384")
E(f"s_add_u32 s{sT}, s{sT}, s{sOFF}")
srd(sWQ, 14, sT, 72 * 12288)
E(f"s_mul_i32 s{sT}, s{sR0}, 3072")
E(f"s_mul_i32 s{sOFF}, s{sH}, 96")
E(f"s_add_u32 s{sT}, s{sT}, s{sOFF}")
srd(sWG, 20, sT, 72 * 3072)
srd(sWU, 22, sT, 72 * 3072)
E(f"s_lshl_b32 s{sR0+1}, s{sR0}, 1")
E(f"s_mov_b32 s{sT}, 0")
srd(sX, 8, sT, 1280)
srd(sWS, 32, sT, 0x400000)
E(f"s_cmp_lt_u32 s{sW}, 2")
E(f"s_cselect_b32 s{sR0+2}, 786432, 0x40000000")
E(f"s_cselect_b32 s{sR0+3}, 196608, 0x40000000")
GOFF = [0, 2, 6, 4]
def kload(n):
    Q, gi, s = n // 12, (n // 3) % 4, n % 3
    b = vKB + n * 4
    va = oK[Q][0] if gi in (0, 2) else oK[Q][1]
    VM(f"buffer_load_dwordx4 {vr(b)}, v{va}, {sr(sK)}, 0 offen offset:{GOFF[gi]*384+s*128}{KNT}", f"K{Q}{gi}")
vX0, vX1, vGX, vGW = vA+4, vA+5, vA+6, vA+7
VM(f"buffer_load_ushort v{vX0}, v{oX}, {sr(sX)}, s{sR0+1} offen", "X")
VM(f"buffer_load_ushort v{vX1}, v{oX}, {sr(sX)}, s{sR0+1} offen offset:128", "X")
def p0reg(k, q): return vVB + 20 * k + 4 * q
VM(f"buffer_load_dwordx4 {vr(p0reg(0,0))}, v{oWA}, {sr(sWQ)}, 0 offen{WNT}", "P0")
VM(f"buffer_load_dwordx4 {vr(p0reg(0,1))}, v{oWA2}, {sr(sWQ)}, 0 offen{WNT}", "P0")
VM(f"buffer_load_dwordx4 {vr(p0reg(0,2))}, v{oWB}, {sr(sWQ)}, 0 offen{WNT}", "P0")
VM(f"buffer_load_dwordx4 {vr(p0reg(0,3))}, v{oG}, {sr(sWG)}, 0 offen{ANT}", "P0")
VM(f"buffer_load_dwordx4 {vr(p0reg(0,4))}, v{oG}, {sr(sWU)}, 0 offen{ANT}", "P0")
for o_, s_ in ((oWA, sR0+2), (oWA2, sR0+2), (oWB, sR0+2), (oG, sR0+3)):
    E(f"v_add_u32 v{o_}, s{s_}, v{o_}")
VM(f"buffer_load_dwordx4 {vr(p0reg(1,0))}, v{oWA}, {sr(sWQ)}, 0 offen{WNT}", "P1")
VM(f"buffer_load_dwordx4 {vr(p0reg(1,1))}, v{oWA2}, {sr(sWQ)}, 0 offen{WNT}", "P1")
VM(f"buffer_load_dwordx4 {vr(p0reg(1,2))}, v{oWB}, {sr(sWQ)}, 0 offen{WNT}", "P1")
VM(f"buffer_load_dwordx4 {vr(p0reg(1,3))}, v{oG}, {sr(sWG)}, 0 offen{ANT}", "P1")
VM(f"buffer_load_dwordx4 {vr(p0reg(1,4))}, v{oG}, {sr(sWU)}, 0 offen{ANT}", "P1")
E(f"s_mov_b32 s{sWO}, s26")
E(f"s_and_b32 s{sWO+1}, s27, 0xffff")
E(f"s_mov_b32 s{sWO+2}, 1280")
E(f"s_mov_b32 s{sWO+3}, 0x00020000")
VM(f"buffer_load_dword v{vGX}, v{oGX}, {sr(sX)}, 0 offen", "G")
VM(f"buffer_load_dword v{vGW}, v{oGX}, {sr(sWO)}, 0 offen", "G")
E(f"s_mul_i32 s{sT}, s{sH}, 245760")
E(f"s_mul_i32 s{sOFF}, s{sC}, 160")
E(f"s_add_u32 s{sT}, s{sT}, s{sOFF}")
srd(sWO, 16, sT, 245760 - 1120)
E(f"s_mul_i32 s{sT}, s{sH}, 61440")
E(f"s_add_u32 s{sT}, s{sT}, s{sOFF}")
srd(sWD, 24, sT, 61440 - 1120)
E(f"s_mov_b32 s{sOFF}, 12288")
for n in range(NK0): kload(n)
stamp()
vAC = 16
vBX = vQ
WAIT("X")
E(f"v_lshl_or_b32 v{vX0}, v{vX0}, 16, v{vX0}")
E(f"v_lshl_or_b32 v{vX1}, v{vX1}, 16, v{vX1}")
expand(vX0, vBX)
expand(vX1, vBX + 4)
WAIT("P0")
for q in range(5):
    mfma(vAC + 4*q, p0reg(0, q), vBX, None)
WAIT("P1")
for q in range(5):
    mfma(vAC + 4*q, p0reg(1, q), vBX + 4, vAC + 4*q)
WAIT("G")
E(f"v_lshlrev_b32 v{vX0}, 16, v{vGX}")
E(f"v_and_b32 v{vGX}, 0xffff0000, v{vGX}")
E(f"v_lshlrev_b32 v{vX1}, 16, v{vGW}")
E(f"v_and_b32 v{vGW}, 0xffff0000, v{vGW}")
E(f"v_mul_f32 v{vX0}, v{vX0}, v{vX1}")
E(f"v_fmac_f32 v{vX0}, v{vGX}, v{vGW}")
E("s_nop 1")
dpp_reduce([vX0])
a1, a2, tt = vA, vA+1, vA+2
E(f"v_lshrrev_b32 v{tt}, 3, v{vJ}")
E(f"s_lshl_b32 s{sT}, s{sW}, 1")
E(f"v_add_u32 v{tt}, s{sT}, v{tt}")
E(f"v_mul_u32_u24 v{a1}, {P0_STR}, v{tt}")
E(f"v_and_b32 v{tt}, 7, v{vJ}")
E(f"v_lshl_add_u32 v{a1}, v{tt}, 2, v{a1}")
E(f"v_and_b32 v{tt}, 1, v{vG}")
E(f"v_lshl_add_u32 v{a2}, v{tt}, 7, v{a1}")
E(f"v_lshl_add_u32 v{a1}, v{vG}, 7, v{a1}")
E(f"s_lshl_b32 s{sT}, s{sW}, 2")
E(f"v_mov_b32 v{tt}, s{sT}")
E("s_mov_b32 exec_lo, 0")
E("s_mov_b32 exec_hi, 0x80000000")
E(f"ds_write_b32 v{tt}, v{vX0} offset:{Z_OFF}")
E("s_mov_b64 exec, -1")
E("s_nop 3")
for r in range(4):
    E(f"v_cndmask_b32 v{vAC+r}, v{vAC+r}, v{vAC+4+r}, s[{sHF}:{sHF+1}]")
for r in range(4):
    E(f"ds_write_b32 v{a1}, v{vAC+r} offset:{P0_OFF + r*32}")
E(f"s_mov_b64 exec, s[{sV2}:{sV2+1}]")
for q in range(3):
    for r in range(4):
        E(f"ds_write_b32 v{a2}, v{vAC+8+4*q+r} offset:{P0_OFF + 512 + 256*q + r*32}")
E("s_mov_b64 exec, -1")
E("s_waitcnt lgkmcnt(0)")
E("s_barrier")
stamp()
E(f"s_add_u32 s{sTAG}, s{sTAG}, 1")
E(f"s_addc_u32 s{sTAG+1}, s{sTAG+1}, 0")
E(f"s_cmp_ge_u32 s{sW}, 3")
E("s_cbranch_scc1 K1_PUB0_DONE")
E("v_cmp_gt_u32 vcc, 144, v0")
E(f"s_and_saveexec_b64 s[{sE}:{sE+1}], vcc")
E(f"v_lshlrev_b32 v{vA}, 3, v0")
E(f"v_add_u32 v{vA+1}, 64, v{vA}")
E("v_cmp_gt_u32 vcc, 120, v0")
E("s_nop 1")
E(f"v_cndmask_b32 v{vA}, v{vA+1}, v{vA}, vcc")
vR = vQ - 36
for s in range(16):
    E(f"ds_read_b64 v[{vR+2*s}:{vR+2*s+1}], v{vA} offset:{P0_OFF + s*P0_STR}")
E("s_waitcnt lgkmcnt(0)")
for st in (8, 4, 2, 1):
    for s in range(st):
        for q in range(2):
            E(f"v_add_f32 v{vR+2*s+q}, v{vR+2*s+q}, v{vR+2*(s+st)+q}")
E(f"v_mov_b32 v{vR+2}, s{sTAG}")
E(f"v_mov_b32 v{vR+3}, s{sTAG+1}")
E(f"v_lshlrev_b32 v{vA}, 4, v0")
E(f"s_mul_i32 s{sT}, s{sROW}, 2304")
E(f"s_add_u32 s{sT}, s{sT}, {WS_G0}")
E(f"buffer_store_dwordx4 {vr(vR)}, v{vA}, {sr(sWS)}, s{sT} offen sc1")
E(f"s_mov_b64 exec, s[{sE}:{sE+1}]")
E("s_nop 1")
L("K1_PUB0_DONE:")
for n in range(NK0, 24): kload(n)
vGa = vR
E(f"s_mul_i32 s{sT}, s{sW}, 288")
E(f"v_lshlrev_b32 v{vA}, 4, v{vL}")
E(f"v_add_u32 v{vA}, s{sT}, v{vA}")
E(f"s_mul_i32 s{sR0}, s{sH}, {8*2304}")
E(f"s_add_u32 s{sR0}, s{sR0}, {WS_G0}")
E("s_mov_b64 exec, 0x3ffff")
def gather_q():
    for p in range(8):
        E(f"s_add_u32 s{sT}, s{sR0}, {p*2304}")
        VM(f"buffer_load_dwordx4 {vr(vGa+4*p)}, v{vA}, {sr(sWS)}, s{sT} offen sc1", "GQ")
gather_q()
E("s_mov_b64 exec, -1")
oVA, oVB = 38, 39
E(f"v_mul_u32_u24 v{oVA}, 384, v{vG}")
E(f"v_lshl_add_u32 v{oVA}, v{vJ}, 4, v{oVA}")
E(f"v_lshrrev_b32 v{vA+1}, 3, v{vJ}")
E(f"v_lshl_add_u32 v{vA+1}, v{vA+1}, 2, v{vG}")
E(f"v_mul_u32_u24 v{oVB}, 384, v{vA+1}")
E(f"v_and_b32 v{vA+1}, 7, v{vJ}")
E(f"v_lshl_add_u32 v{oVB}, v{vA+1}, 4, v{oVB}")
E(f"v_add_u32 v{oVB}, 256, v{oVB}")
def vload(n):
    k, q = n // 3, n % 3
    b = vVB + 12 * k + 4 * q
    if q == 0 or n == NV1:
        E(f"s_add_u32 s{sOFF}, s{sROT}, {k}")
        E(f"s_and_b32 s{sOFF}, s{sOFF}, 7")
        E(f"s_mul_i32 s{sOFF}, s{sOFF}, 3072")
    if q < 2:
        VM(f"buffer_load_dwordx4 {vr(b)}, v{oVA}, {sr(sV)}, s{sOFF} offen offset:{q*1536}{VNT}", f"V{k}")
    else:
        VM(f"buffer_load_dwordx4 {vr(b)}, v{oVB}, {sr(sV)}, s{sOFF} offen{VNT}", f"V{k}")
for n in range(NV1): vload(n)
stamp()
WAIT("GQ")
E("s_mov_b64 exec, 0x3ffff")
L("K1_GQ_CHECK:")
E(f"s_mov_b64 s[{sBAD}:{sBAD+1}], 0")
for p in range(8):
    E(f"v_cmp_ne_u64 vcc, s[{sTAG}:{sTAG+1}], v[{vGa+4*p+2}:{vGa+4*p+3}]")
    E(f"s_or_b64 s[{sBAD}:{sBAD+1}], s[{sBAD}:{sBAD+1}], vcc")
E(f"s_cmp_eq_u64 s[{sBAD}:{sBAD+1}], 0")
E("s_cbranch_scc1 K1_GQ_OK")
E("s_sub_u32 s3, s3, 1")
E("s_cbranch_scc1 K1_GQ_OK")
E("s_sleep 2")
sv = list(vmq)
gather_q()
vmq[:] = sv
E("s_waitcnt vmcnt(0)")
E("s_branch K1_GQ_CHECK")
L("K1_GQ_OK:")
for p in range(1, 8):
    E(f"v_add_f32 v{vGa}, v{vGa}, v{vGa+4*p}")
    E(f"v_add_f32 v{vGa+1}, v{vGa+1}, v{vGa+4*p+1}")
E(f"s_mul_i32 s{sT}, s{sW}, 18")
E(f"v_add_u32 v{vA}, s{sT}, v{vL}")
E(f"v_cvt_pk_bf16_f32 v{vA+1}, v{vGa}, v{vGa+1}")
E(f"v_lshlrev_b32 v{vA+2}, 2, v{vA}")
E(f"v_lshlrev_b32 v{vA+3}, 3, v{vA}")
E(f"v_cmp_gt_u32 vcc, 96, v{vA}")
E(f"s_and_saveexec_b64 s[{sE}:{sE+1}], vcc")
E(f"ds_write_b32 v{vA+2}, v{vA+1} offset:{QBF_OFF}")
E(f"s_andn2_b64 exec, s[{sE}:{sE+1}], vcc")
E(f"ds_write_b64 v{vA+3}, v[{vGa}:{vGa+1}] offset:{GU_OFF - 96*8}")
E("s_mov_b64 exec, -1")
E("s_waitcnt lgkmcnt(0)")
E("s_barrier")
stamp()
E(f"v_lshrrev_b32 v{vA+1}, 3, v{vJ}")
E(f"v_lshlrev_b32 v{vA+1}, 6, v{vA+1}")
E(f"v_lshl_add_u32 v{vA}, v{vG}, 4, v{vA+1}")
for s in range(3):
    E(f"ds_read_b128 {vr(vQ+4*s)}, v{vA} offset:{QBF_OFF + 128*s}")
E(f"v_xor_b32 v{vA+2}, 40, v{vL}")
E(f"v_lshlrev_b32 v{vA+2}, 2, v{vA+2}")
E("s_waitcnt lgkmcnt(0)")
vS = 16
vD = 16
vF = vQ + 12
for Q in range(2):
    for gi in range(4):
        WAIT(f"K{Q}{gi}")
        for s in range(3):
            b = vKB + ((Q * 4 + gi) * 3 + s) * 4
            mfma(vD + 4*gi, b, vQ + 4*s, None if s == 0 else vD + 4*gi)
    E("s_nop 7")
    for r in range(4):
        a, b_, c_, d = vD + r, vD + 4 + r, vD + 8 + r, vD + 12 + r
        u1, u2 = vA + 4, vA + 5
        E(f"v_cndmask_b32 v{u1}, v{b_}, v{a}, s[{sV2}:{sV2+1}]")
        E(f"v_cndmask_b32 v{u2}, v{d}, v{c_}, s[{sV2}:{sV2+1}]")
        E(f"v_cndmask_b32 v{vF+4*Q+r}, v{u1}, v{u2}, s[{sHF}:{sHF+1}]")
        E(f"v_cndmask_b32 v{a}, v{u2}, v{u1}, s[{sHF}:{sHF+1}]")
    for r in range(4):
        E(f"ds_bpermute_b32 v{vD+4+r}, v{vA+2}, v{vD+r}")
    E("s_waitcnt lgkmcnt(0)")
    for r in range(4):
        E(f"v_add_f32 v{vF+4*Q+r}, v{vF+4*Q+r}, v{vD+4+r}")
for r in range(8):
    E(f"v_mov_b32 v{vS+r}, v{vF+r}")
stamp()
for n in range(NV1, 24): vload(n)
oWO = vA
E(f"v_mul_u32_u24 v{oWO}, 1280, v{vG}")
E(f"v_lshl_add_u32 v{oWO}, v{vJ}, 4, v{oWO}")
E(f"v_mov_b32 v{vA+1}, 0x40000000")
E(f"v_cmp_gt_u32 vcc, 10, v{vJ}")
E("s_nop 1")
E(f"v_cndmask_b32 v{oWO}, v{vA+1}, v{oWO}, vcc")
E(f"s_mul_i32 s{sOFF}, s{sW}, 10240")
for k in range(3):
    E(f"s_add_u32 s{sT}, s{sOFF}, {k*81920}")
    VM(f"buffer_load_dwordx4 {vr(vKB+8*k)}, v{oWO}, {sr(sWO)}, s{sT} offen{ANT}", "WO")
    E(f"s_add_u32 s{sT}, s{sOFF}, {k*81920 + 5120}")
    VM(f"buffer_load_dwordx4 {vr(vKB+8*k+4)}, v{oWO}, {sr(sWO)}, s{sT} offen{ANT}", "WO")
E(f"s_cmp_lt_u32 s{sW}, 6")
E(f"s_cselect_b32 s{sT}, 0, 0x40000000")
E(f"v_add_u32 v{vA+1}, s{sT}, v{oWO}")
E(f"v_or_b32 v{vA+1}, v{vA+1}, v{oWO}")
VM(f"buffer_load_dwordx4 {vr(vKB+24)}, v{vA+1}, {sr(sWD)}, s{sOFF} offen{ANT}", "WO")
E(f"s_add_u32 s{sT}, s{sOFF}, 5120")
VM(f"buffer_load_dwordx4 {vr(vKB+28)}, v{vA+1}, {sr(sWD)}, s{sT} offen{ANT}", "WO")
t = vA + 1
E(f"v_max3_f32 v{t}, v{vS}, v{vS+1}, v{vS+2}")
E(f"v_max3_f32 v{t}, v{t}, v{vS+3}, v{vS+4}")
E(f"v_max3_f32 v{t}, v{t}, v{vS+5}, v{vS+6}")
E(f"v_max_f32 v{t}, v{t}, v{vS+7}")
E("s_nop 1")
E(f"v_max_f32_dpp v{t}, v{t}, v{t} row_ror:8 row_mask:0xf bank_mask:0xf")
E("s_nop 1")
for q in range(4):
    E(f"v_readlane_b32 s{sR0+q}, v{t}, {16*q}")
E("s_nop 1")
E(f"v_mov_b32 v{t}, s{sR0}")
E(f"v_max_f32 v{t}, s{sR0+1}, v{t}")
E(f"v_max_f32 v{t}, s{sR0+2}, v{t}")
E(f"v_max_f32 v{t}, s{sR0+3}, v{t}")
E(f"s_lshl_b32 s{sT}, s{sW}, 2")
E(f"v_mov_b32 v{t+1}, s{sT}")
E(f"ds_write_b32 v{t+1}, v{t} offset:{ST_OFF}")
E(f"v_mul_f32 v{t}, s{sSC}, v{t}")
for r in range(8):
    E(f"v_fma_f32 v{vS+r}, v{vS+r}, s{sSC}, -v{t}")
for r in range(8):
    E(f"v_exp_f32 v{vS+r}, v{vS+r}")
E("s_nop 0")
t2 = vA + 3
E(f"v_add_f32 v{t2}, v{vS}, v{vS+1}")
for r in range(2, 8):
    E(f"v_add_f32 v{t2}, v{t2}, v{vS+r}")
E("s_nop 1")
E(f"v_add_f32_dpp v{t2}, v{t2}, v{t2} row_ror:8 row_mask:0xf bank_mask:0xf")
E("s_nop 1")
for q in range(4):
    E(f"v_readlane_b32 s{sR0+q}, v{t2}, {16*q}")
E("s_nop 1")
E(f"v_mov_b32 v{t2}, s{sR0}")
E(f"v_add_f32 v{t2}, s{sR0+1}, v{t2}")
E(f"v_add_f32 v{t2}, s{sR0+2}, v{t2}")
E(f"v_add_f32 v{t2}, s{sR0+3}, v{t2}")
E(f"ds_write_b32 v{t+1}, v{t2} offset:{ST_OFF+32}")
for r in range(8):
    E(f"v_cvt_pk_bf16_f32 v{vS+r}, v{vS+r}, v{vS+r}")
E("s_waitcnt lgkmcnt(0)")
stamp()
vPA = vS + 8
vBP = vA
for k in range(8):
    expand(vS + k, vBP)
    WAIT(f"V{k}")
    E("s_nop 0")
    b = vVB + 12 * k
    for q in range(3):
        mfma(vPA + 4*q, b + 4*q, vBP, None if k == 0 else vPA + 4*q)
stamp()
a1, a2, tt = vS, vS+1, vS+2
E(f"v_lshrrev_b32 v{tt}, 3, v{vJ}")
E(f"s_lshl_b32 s{sT}, s{sW}, 1")
E(f"v_add_u32 v{tt}, s{sT}, v{tt}")
E(f"v_mul_u32_u24 v{a1}, {P2_STR}, v{tt}")
E(f"v_and_b32 v{tt}, 7, v{vJ}")
E(f"v_lshl_add_u32 v{a1}, v{tt}, 2, v{a1}")
E(f"v_and_b32 v{tt}, 1, v{vG}")
E(f"v_lshl_add_u32 v{a2}, v{tt}, 7, v{a1}")
E(f"v_lshl_add_u32 v{a1}, v{vG}, 7, v{a1}")
E("s_nop 7")
for r in range(4):
    E(f"v_cndmask_b32 v{vPA+r}, v{vPA+r}, v{vPA+4+r}, s[{sHF}:{sHF+1}]")
for r in range(4):
    E(f"ds_write_b32 v{a1}, v{vPA+r} offset:{P2_OFF + r*32}")
E(f"s_mov_b64 exec, s[{sV2}:{sV2+1}]")
for r in range(4):
    E(f"ds_write_b32 v{a2}, v{vPA+8+r} offset:{P2_OFF + 512 + r*32}")
E("s_mov_b64 exec, -1")
E("s_waitcnt lgkmcnt(0)")
E("s_barrier")
stamp()
vT = vVB
E(f"v_mov_b32 v{vT+1}, 0")
for w in range(5):
    E(f"ds_read_b32 v{vT+60+w}, v{vT+1} offset:{Z_OFF + 4*w}")
E(f"s_cmp_ge_u32 s{sW}, 3")
E("s_cbranch_scc1 K1_T_WAIT")
E(f"s_cmp_eq_u32 s{sW}, 2")
E("s_cbranch_scc1 K1_T_H")
E(f"v_lshlrev_b32 v{vT}, 3, v0")
E(f"ds_read_b128 {vr(vT+4)}, v{vT+1} offset:{ST_OFF}")
E(f"ds_read_b128 {vr(vT+8)}, v{vT+1} offset:{ST_OFF+16}")
E(f"ds_read_b128 {vr(vT+12)}, v{vT+1} offset:{ST_OFF+32}")
E(f"ds_read_b128 {vr(vT+16)}, v{vT+1} offset:{ST_OFF+48}")
for s in range(16):
    E(f"ds_read_b64 v[{vT+20+2*s}:{vT+21+2*s}], v{vT} offset:{P2_OFF + s*P2_STR}")
E("s_waitcnt lgkmcnt(0)")
mm, ll = vT + 2, vT + 3
E(f"v_max3_f32 v{mm}, v{vT+4}, v{vT+5}, v{vT+6}")
E(f"v_max3_f32 v{mm}, v{mm}, v{vT+7}, v{vT+8}")
E(f"v_max3_f32 v{mm}, v{mm}, v{vT+9}, v{vT+10}")
E(f"v_max_f32 v{mm}, v{mm}, v{vT+11}")
for w in range(8):
    E(f"v_sub_f32 v{vT+4+w}, v{vT+4+w}, v{mm}")
for w in range(8):
    E(f"v_mul_f32 v{vT+4+w}, s{sSC}, v{vT+4+w}")
for w in range(8):
    E(f"v_exp_f32 v{vT+4+w}, v{vT+4+w}")
E("s_nop 0")
E(f"v_mul_f32 v{ll}, v{vT+4}, v{vT+12}")
for w in range(1, 8):
    E(f"v_fmac_f32 v{ll}, v{vT+4+w}, v{vT+12+w}")
for w in range(8):
    for q in range(2):
        E(f"v_add_f32 v{vT+20+4*w+q}, v{vT+20+4*w+q}, v{vT+22+4*w+q}")
vO = vT + 52
for q in range(2):
    E(f"v_mul_f32 v{vO+q}, v{vT+4}, v{vT+20+q}")
    for w in range(1, 8):
        E(f"v_fmac_f32 v{vO+q}, v{vT+4+w}, v{vT+20+4*w+q}")
E("v_cmp_eq_u32 vcc, 96, v0")
E(f"v_lshlrev_b32 v{vT+56}, 4, v0")
E(f"v_add_u32 v{vT+56}, 16, v{vT+56}")
E(f"v_cndmask_b32 v{vO}, v{vO}, v{mm}, vcc")
E(f"v_cndmask_b32 v{vO+1}, v{vO+1}, v{ll}, vcc")
E(f"v_cndmask_b32 v{vT+57}, v{vT+56}, 0, vcc")
E(f"v_mov_b32 v{vO+2}, s{sTAG}")
E(f"v_mov_b32 v{vO+3}, s{sTAG+1}")
E(f"s_lshl_b32 s{sT}, s{sROW}, 11")
E(f"s_add_u32 s{sT}, s{sT}, {WS_G2}")
E("v_cmp_gt_u32 vcc, 97, v0")
E(f"s_and_saveexec_b64 s[{sE}:{sE+1}], vcc")
E(f"s_add_u32 s{sOFF}, s{sT}, {WS_G2A - WS_G2}")
E(f"buffer_store_dwordx4 {vr(vO)}, v{vT+57}, {sr(sWS)}, s{sOFF} offen")
E(f"buffer_store_dwordx4 {vr(vO)}, v{vT+57}, {sr(sWS)}, s{sT} offen sc1")
E(f"s_mov_b64 exec, s[{sE}:{sE+1}]")
stamp()
def calc_g(dst, z):
    for w in range(1, 5):
        E(f"v_add_f32 v{z}, v{z}, v{z+w}")
    E(f"v_mul_f32 v{dst}, 0xbfb8aa3b, v{z}")
    E(f"v_exp_f32 v{dst}, v{dst}")
    E("s_nop 0")
    E(f"v_add_f32 v{dst}, 1.0, v{dst}")
    E(f"v_rcp_f32 v{dst}, v{dst}")
    E("s_nop 0")
vGg = vT + 58
calc_g(vGg, vT + 60)
E(f"s_lshl_b32 s{sR0}, s{sH}, 14")
E(f"s_add_u32 s{sR0}, s{sR0}, {WS_G2}")
vGo = vKB + 32
sm = vGo + 32
E(f"v_min_u32 v{vT+56}, {96*16}, v{vT+56}")
E(f"v_and_b32 v{vT+59}, 7, v{vL}")
E(f"v_lshlrev_b32 v{vT+59}, 11, v{vT+59}")
L("K1_GO_LOOP:")
E("s_and_b32 s92, s3, 3")
E("s_cmp_eq_u32 s92, 0")
E(f"s_cselect_b32 s92, 0, {WS_G2A - WS_G2}")
E(f"s_add_u32 s92, s92, s{sR0}")
E(f"buffer_load_dwordx4 {vr(sm)}, v{vT+59}, {sr(sWS)}, s92 offen sc1")
for p in range(8):
    E(f"buffer_load_dwordx4 {vr(vGo+4*p)}, v{vT+56}, {sr(sWS)}, s92 offen offset:{(p*2048) % 4096} sc1" if p < 2 else
      f"buffer_load_dwordx4 {vr(vGo+4*p)}, v{vT+56}, {sr(sWS)}, s91 offen offset:{(p*2048) % 4096} sc1")
    if p % 2 == 1 and p < 7:
        E(f"s_add_u32 s91, s92, {(p+1)*2048}")
E("s_waitcnt vmcnt(0)")
E(f"s_mov_b64 s[{sBAD}:{sBAD+1}], 0")
for p in range(9):
    E(f"v_cmp_ne_u64 vcc, s[{sTAG}:{sTAG+1}], v[{vGo+4*p+2}:{vGo+4*p+3}]")
    E(f"s_or_b64 s[{sBAD}:{sBAD+1}], s[{sBAD}:{sBAD+1}], vcc")
E(f"s_cmp_eq_u64 s[{sBAD}:{sBAD+1}], 0")
E("s_cbranch_scc1 K1_GO_OK")
E("s_sub_u32 s3, s3, 1")
E("s_cbranch_scc1 K1_GO_OK")
E("s_branch K1_GO_LOOP")
L("K1_GO_OK:")
stamp()
E(f"v_max_f32_dpp v{mm}, v{sm}, v{sm} quad_perm:[1,0,3,2] row_mask:0xf bank_mask:0xf")
E("s_nop 1")
E(f"v_max_f32_dpp v{mm}, v{mm}, v{mm} quad_perm:[2,3,0,1] row_mask:0xf bank_mask:0xf")
E("s_nop 1")
E(f"v_max_f32_dpp v{mm}, v{mm}, v{mm} row_half_mirror row_mask:0xf bank_mask:0xf")
E("s_nop 0")
E(f"v_sub_f32 v{sm}, v{sm}, v{mm}")
E(f"v_mul_f32 v{sm}, s{sSC}, v{sm}")
E(f"v_exp_f32 v{sm}, v{sm}")
E("s_nop 0")
E(f"v_mul_f32 v{ll}, v{sm}, v{sm+1}")
E("s_nop 1")
E(f"v_add_f32_dpp v{ll}, v{ll}, v{ll} quad_perm:[1,0,3,2] row_mask:0xf bank_mask:0xf")
E("s_nop 1")
E(f"v_add_f32_dpp v{ll}, v{ll}, v{ll} quad_perm:[2,3,0,1] row_mask:0xf bank_mask:0xf")
E("s_nop 1")
E(f"v_add_f32_dpp v{ll}, v{ll}, v{ll} row_half_mirror row_mask:0xf bank_mask:0xf")
for p in range(8):
    E(f"v_readlane_b32 s{40+p}, v{sm}, {p}")
E(f"v_rcp_f32 v{ll}, v{ll}")
for q in range(2):
    E(f"v_mul_f32 v{vO+q}, s40, v{vGo+q}")
    for p in range(1, 8):
        E(f"v_fmac_f32 v{vO+q}, s{40+p}, v{vGo+4*p+q}")
E(f"v_mul_f32 v{ll}, v{ll}, v{vGg}")
E(f"v_mul_f32 v{vO}, v{vO}, v{ll}")
E(f"v_mul_f32 v{vO+1}, v{vO+1}, v{ll}")
E("v_cmp_gt_u32 vcc, 96, v0")
E(f"s_and_saveexec_b64 s[{sE}:{sE+1}], vcc")
E(f"v_cvt_pk_bf16_f32 v{vO}, v{vO}, v{vO+1}")
E(f"v_lshlrev_b32 v{vT}, 2, v0")
E(f"ds_write_b32 v{vT}, v{vO} offset:{OBF_OFF}")
E(f"s_mov_b64 exec, s[{sE}:{sE+1}]")
E("s_branch K1_T_WAIT")
L("K1_T_H:")
E(f"v_lshlrev_b32 v{vT}, 3, v{vL}")
E(f"ds_read_b64 v[{vT+4}:{vT+5}], v{vT} offset:{GU_OFF}")
E(f"ds_read_b64 v[{vT+6}:{vT+7}], v{vT} offset:{GU_OFF + 192}")
E("s_waitcnt lgkmcnt(0)")
calc_g(vGg, vT + 60)
E(f"v_sub_f32 v{vGg}, 1.0, v{vGg}")
E(f"v_cvt_pk_bf16_f32 v{vT+4}, v{vT+4}, v{vT+5}")
E(f"v_cvt_pk_bf16_f32 v{vT+6}, v{vT+6}, v{vT+7}")
E(f"v_lshlrev_b32 v{vT+8}, 16, v{vT+4}")
E(f"v_and_b32 v{vT+9}, 0xffff0000, v{vT+4}")
E(f"v_lshlrev_b32 v{vT+10}, 16, v{vT+6}")
E(f"v_and_b32 v{vT+11}, 0xffff0000, v{vT+6}")
E(f"v_max_f32 v{vT+8}, 0, v{vT+8}")
E(f"v_max_f32 v{vT+9}, 0, v{vT+9}")
E(f"v_mul_f32 v{vT+8}, v{vT+8}, v{vT+10}")
E(f"v_mul_f32 v{vT+9}, v{vT+9}, v{vT+11}")
E(f"v_cvt_pk_bf16_f32 v{vT+8}, v{vT+8}, v{vT+9}")
E(f"v_lshlrev_b32 v{vT+10}, 16, v{vT+8}")
E(f"v_and_b32 v{vT+11}, 0xffff0000, v{vT+8}")
E(f"v_mul_f32 v{vT+10}, v{vT+10}, v{vGg}")
E(f"v_mul_f32 v{vT+11}, v{vT+11}, v{vGg}")
E(f"v_cvt_pk_bf16_f32 v{vT+8}, v{vT+10}, v{vT+11}")
E(f"v_cmp_gt_u32 vcc, 24, v{vL}")
E("s_nop 1")
E(f"v_cndmask_b32 v{vT+8}, 0, v{vT+8}, vcc")
E(f"v_lshlrev_b32 v{vT}, 2, v{vL}")
E("s_mov_b64 exec, 0xffffffff")
E(f"ds_write_b32 v{vT}, v{vT+8} offset:{OBF_OFF + 384}")
E("s_mov_b64 exec, -1")
L("K1_T_WAIT:")
E("s_waitcnt lgkmcnt(0)")
E("s_barrier")
stamp()
vB = vT + 4
E(f"v_lshrrev_b32 v{vT}, 3, v{vJ}")
E(f"v_lshl_add_u32 v{vT}, v{vT}, 2, v{vG}")
E(f"v_lshlrev_b32 v{vT}, 1, v{vT}")
E(f"s_lshl_b32 s{sT}, s{sW}, 4")
E(f"v_add_u32 v{vT}, s{sT}, v{vT}")
for k in range(4):
    E(f"ds_read_u16 v{vT+20+k}, v{vT} offset:{OBF_OFF + 128*k}")
E("s_waitcnt lgkmcnt(0)")
for k in range(4):
    E(f"v_lshl_or_b32 v{vT+20+k}, v{vT+20+k}, 16, v{vT+20+k}")
for k in range(4):
    expand(vT + 20 + k, vB + 4*k)
E("s_waitcnt vmcnt(0)")
vY = vT + 24
for k in range(4):
    mfma(vY, vKB + 8*k, vB + 4*k, None if k == 0 else vY)
    mfma(vY + 4, vKB + 8*k + 4, vB + 4*k, None if k == 0 else vY + 4)
E(f"v_lshrrev_b32 v{vT+1}, 3, v{vJ}")
E(f"s_lshl_b32 s{sT}, s{sW}, 1")
E(f"v_add_u32 v{vT+1}, s{sT}, v{vT+1}")
E(f"v_mul_u32_u24 v{vT}, {Y_STR}, v{vT+1}")
E(f"v_and_b32 v{vT+1}, 7, v{vJ}")
E(f"v_lshl_add_u32 v{vT}, v{vT+1}, 2, v{vT}")
E(f"v_lshl_add_u32 v{vT}, v{vG}, 7, v{vT}")
E("s_nop 7")
for r in range(4):
    E(f"v_cndmask_b32 v{vY+r}, v{vY+r}, v{vY+4+r}, s[{sHF}:{sHF+1}]")
for r in range(4):
    E(f"ds_write_b32 v{vT}, v{vY+r} offset:{Y_OFF + r*32}")
E("s_waitcnt lgkmcnt(0)")
E("s_barrier")
E(f"s_cmp_lg_u32 s{sW}, 0")
E("s_cbranch_scc1 K1_PUB3_DONE")
E("s_mov_b32 exec_lo, -1")
E("s_mov_b32 exec_hi, 0xff")
E(f"v_lshlrev_b32 v{vT}, 3, v0")
for s in range(16):
    E(f"ds_read_b64 v[{vT+4+2*s}:{vT+5+2*s}], v{vT} offset:{Y_OFF + s*Y_STR}")
E("s_waitcnt lgkmcnt(0)")
for st in (8, 4, 2, 1):
    for s in range(st):
        for q in range(2):
            E(f"v_add_f32 v{vT+4+2*s+q}, v{vT+4+2*s+q}, v{vT+4+2*(s+st)+q}")
E(f"v_mov_b32 v{vT+6}, s{sTAG}")
E(f"v_mov_b32 v{vT+7}, s{sTAG+1}")
E(f"v_lshlrev_b32 v{vT}, 4, v0")
E(f"s_lshl_b32 s{sT}, s{sC}, 5")
E(f"s_add_u32 s{sT}, s{sT}, s{sH}")
E(f"s_mul_i32 s{sT}, s{sT}, 640")
E(f"s_add_u32 s{sT}, s{sT}, {WS_G3}")
E(f"buffer_store_dwordx4 {vr(vT+4)}, v{vT}, {sr(sWS)}, s{sT} offen sc1")
E("s_mov_b64 exec, -1")
L("K1_PUB3_DONE:")
stamp()
E(f"s_lshl_b32 s{sT}, s{sC}, 2")
E(f"s_cmp_lg_u32 s{sT}, s{sH}")
E("s_cbranch_scc1 K1_STAMPS")
E(f"s_lshl_b32 s{sR0}, s{sC}, 5")
E(f"s_lshl_b32 s{sT}, s{sW}, 2")
E(f"s_add_u32 s{sR0}, s{sR0}, s{sT}")
E(f"s_mul_i32 s{sR0}, s{sR0}, 640")
E(f"s_add_u32 s{sR0}, s{sR0}, {WS_G3}")
E(f"v_lshlrev_b32 v{vT}, 4, v{vL}")
E("s_mov_b32 exec_lo, -1")
E("s_mov_b32 exec_hi, 0xff")
L("K1_GF_LOOP:")
for p in range(4):
    E(f"buffer_load_dwordx4 {vr(vT+4+4*p)}, v{vT}, {sr(sWS)}, s{sR0} offen offset:{640*p} sc1")
E("s_waitcnt vmcnt(0)")
E(f"s_mov_b64 s[{sBAD}:{sBAD+1}], 0")
for p in range(4):
    E(f"v_cmp_ne_u64 vcc, s[{sTAG}:{sTAG+1}], v[{vT+4+4*p+2}:{vT+4+4*p+3}]")
    E(f"s_or_b64 s[{sBAD}:{sBAD+1}], s[{sBAD}:{sBAD+1}], vcc")
E(f"s_cmp_eq_u64 s[{sBAD}:{sBAD+1}], 0")
E("s_cbranch_scc1 K1_GF_OK")
E("s_sub_u32 s3, s3, 1")
E("s_cbranch_scc1 K1_GF_OK")
E("s_sleep 1")
E("s_branch K1_GF_LOOP")
L("K1_GF_OK:")
for p in range(1, 4):
    E(f"v_add_f32 v{vT+4}, v{vT+4}, v{vT+4+4*p}")
    E(f"v_add_f32 v{vT+5}, v{vT+5}, v{vT+5+4*p}")
E(f"v_lshlrev_b32 v{vT}, 3, v{vL}")
E(f"s_mul_i32 s{sT}, s{sW}, 320")
E(f"v_add_u32 v{vT}, s{sT}, v{vT}")
E(f"ds_write_b64 v{vT}, v[{vT+4}:{vT+5}] offset:{FR_OFF}")
E("s_mov_b64 exec, -1")
E("s_waitcnt lgkmcnt(0)")
E("s_barrier")
E(f"s_cmp_lg_u32 s{sW}, 0")
E("s_cbranch_scc1 K1_STAMPS")
E("s_mov_b32 exec_lo, -1")
E("s_mov_b32 exec_hi, 0xff")
E(f"v_lshlrev_b32 v{vT}, 3, v{vL}")
for w in range(8):
    E(f"ds_read_b64 v[{vT+4+2*w}:{vT+5+2*w}], v{vT} offset:{FR_OFF + 320*w}")
E(f"s_mov_b32 s{sWG}, s28")
E(f"s_and_b32 s{sWG+1}, s29, 0xffff")
E(f"s_mov_b32 s{sWG+2}, 1280")
E(f"s_mov_b32 s{sWG+3}, 0x00020000")
E("s_waitcnt lgkmcnt(0)")
for st in (4, 2, 1):
    for s in range(st):
        for q in range(2):
            E(f"v_add_f32 v{vT+4+2*s+q}, v{vT+4+2*s+q}, v{vT+4+2*(s+st)+q}")
E(f"v_cvt_pk_bf16_f32 v{vT+4}, v{vT+4}, v{vT+5}")
E(f"v_lshlrev_b32 v{vT}, 2, v{vL}")
E(f"s_mul_i32 s{sT}, s{sC}, 160")
E(f"buffer_store_dword v{vT+4}, v{vT}, {sr(sWG)}, s{sT} offen")
E(f"s_cmp_lg_u32 s{sC}, 0")
E("s_cbranch_scc1 K1_NOEP")
E("s_mov_b64 exec, 1")
E(f"v_mov_b32 v{vT+6}, s{sTAG}")
E(f"v_mov_b32 v{vT+7}, s{sTAG+1}")
E(f"v_mov_b32 v{vT}, 0")
E(f"buffer_store_dwordx2 v[{vT+6}:{vT+7}], v{vT}, {sr(sWS)}, 0 offen")
L("K1_NOEP:")
E("s_mov_b64 exec, -1")
L("K1_STAMPS:")
if DBG:
    E("s_mov_b64 exec, -1")
    E("s_waitcnt vmcnt(0) lgkmcnt(0)")
    E(f"s_cmp_lg_u32 s{sW}, 0")
    E("s_cbranch_scc1 K1_END")
    E("s_cmp_lg_u32 s93, 0")
    E("s_cbranch_scc1 K1_END")
    E("s_memrealtime s[2:3]")
    E("s_memtime s[6:7]")
    E("s_waitcnt lgkmcnt(0)")
    E("s_sub_u32 s6, s6, s95")
    E("s_sub_u32 s2, s2, s94")
    E("v_mov_b32 v10, 0")
    E("v_writelane_b32 v10, s6, 0")
    E("v_writelane_b32 v10, s2, 1")
    for i in range(1, stamp_n[0]):
        r = stamp_regs[i]
        E(f"s_sub_u32 s6, s{r}, s94")
        E(f"v_writelane_b32 v10, s6, {i+1}")
    E("v_lshlrev_b32 v11, 2, v1")
    E("v_cmp_gt_u32 vcc, 16, v1")
    E("s_and_saveexec_b64 s[86:87], vcc")
    E("global_store_dword v11, v10, s[30:31]")
elif ST:
    E("s_mov_b64 exec, -1")
    E("s_waitcnt vmcnt(0) lgkmcnt(0)")
    E(f"s_cmp_lg_u32 s{sW}, {STW}")
    E("s_cbranch_scc1 K1_END")
    E("s_memrealtime s[2:3]")
    E("s_waitcnt lgkmcnt(0)")
    regs = stamp_regs[:stamp_n[0]]
    for i, r in enumerate(regs):
        E(f"v_writelane_b32 v10, s{r}, {2*i}")
        E(f"v_writelane_b32 v10, s{r+1}, {2*i+1}")
    n = len(regs)
    E(f"v_writelane_b32 v10, s2, {2*n}")
    E(f"v_writelane_b32 v10, s3, {2*n+1}")
    E("v_lshlrev_b32 v11, 2, v1")
    E(f"s_lshl_b32 s39, s93, 7")
    E("s_add_u32 s39, s39, 0x300000")
    E(f"v_cmp_gt_u32 vcc, {2*n+2}, v1")
    E("s_and_saveexec_b64 s[86:87], vcc")
    E(f"buffer_store_dword v10, v11, {sr(sWS)}, s39 offen")
L("K1_END:")
E("s_endpgm")

L('.section .rodata,"a"')
L(".p2align 6")
L(f".amdhsa_kernel {K1}")
L(f"  .amdhsa_next_free_vgpr 256")
L(f"  .amdhsa_next_free_sgpr 102")
L(f"  .amdhsa_accum_offset 256")
L("  .amdhsa_group_segment_fixed_size 0")
L("  .amdhsa_kernarg_size 104")
L("  .amdhsa_user_sgpr_count 2")
L("  .amdhsa_user_sgpr_kernarg_segment_ptr 1")
L("  .amdhsa_system_sgpr_workgroup_id_x 1")
L(".end_amdhsa_kernel")
open(sys.argv[1], 'w').write('\n'.join(out) + '\n')
```

```python
import sys, struct

NAME = "gated_mix__sliding_block_cached__glu_gated_reglu__decode"
out = []
def E(s): out.append("    " + s)
def L(s): out.append(s)

HEADER = open('cdna_kernels/' + NAME + '.s.ref').read().split('\n')
hdr = []
for ln in HEADER:
    if ln.startswith('; @launch') or ln.startswith('.amdgcn_target'):
        break
    hdr.append(ln)

opts = (sys.argv[2] if len(sys.argv) > 2 else "").split(',')
def opt(name, default=None):
    for o in opts:
        if o == name: return True
        if o.startswith(name + '='): return o.split('=')[1]
    return default
NT = " nt" if not opt('nont') else ""
if opt('pol'): NT = " " + opt('pol').replace('+', ' ')
KNT = "" if opt('kplain') else NT
VNT = "" if opt('vplain') else NT
WNT = " nt" if (opt('wnt') or opt('allnt')) else ""
ANT = " nt" if opt('allnt') else ""
ST = opt('st') or opt('dbg')
DBG = opt('dbg')
STW = int(opt('stw', 0))
NK0 = int(opt('nk0', 8))
NV1 = int(opt('nv1', 15))

P0_OFF = 0;      P0_STR = 1312
P2_OFF = 16 * P0_STR;  P2_STR = 800
Y_OFF  = P2_OFF + 16 * P2_STR; Y_STR = 544
QBF_OFF = Y_OFF + 16 * Y_STR
GU_OFF  = QBF_OFF + 384
OBF_OFF = GU_OFF + 384
ST_OFF  = OBF_OFF + 512
Z_OFF   = ST_OFF + 64
FR_OFF  = Z_OFF + 64
LDS_SZ  = FR_OFF + 8 * 320
assert LDS_SZ <= 65536

WS_G0 = 0x1000
WS_G2 = 0x100000
WS_G2A = 0x180000
WS_G3 = 0x200000

SCALE_LOG2E = (192.0 ** -0.5) * 1.4426950408889634
def f32bits(x): return struct.unpack('<I', struct.pack('<f', x))[0]

K1 = NAME + "_kernel"
L('\n'.join(hdr))
L(f"; @launch grid=(256,1,1) block=(512,1,1) lds=65536")
L('.amdgcn_target "amdgcn-amd-amdhsa--gfx950"')
L(".text")
L(f".globl {K1}")
L(".p2align 8")
L(f".type {K1},@function")
L(f"{K1}:")

vL, vG, vJ = 1, 2, 3
vM = [4, 5, 6, 7]
vA = 8
vKB = 40
vVB = 136
vQ = 232

sW, sXCD, sIDX, sH, sC, sT = 34, 35, 36, 37, 38, 39
sK, sV, sWQ, sWO, sWG, sWU, sWD, sX, sWS = 40, 44, 48, 52, 56, 60, 64, 68, 72
sHF = 78
sV2 = 80
sOFF = 82
sSC = 83
sROW = 85
sE = 86
sR0 = 88
sTAG = 4
sBAD = 6
sGW = 76
stamp_regs = [94] + [10, 12, 14, 16, 18, 20, 22, 24, 96, 98, 100, 32, 8]
stamp_n = [0]
def stamp():
    if not ST: return
    r = stamp_regs[stamp_n[0]]; stamp_n[0] += 1
    E(f"s_memrealtime s[{r}:{r+1}]")
def vr(a, n=4): return f"v[{a}:{a+n-1}]"
def sr(a, n=4): return f"s[{a}:{a+n-1}]"

vmq = []
def VM(s, tag):
    E(s); vmq.append(tag)
def WAIT(tag):
    idx = max(i for i, t in enumerate(vmq) if t == tag)
    n = len(vmq) - 1 - idx
    assert n <= 63, n
    E(f"s_waitcnt vmcnt({n})")

def srd(dst, plo, off_s, nrec):
    E(f"s_add_u32 s{dst}, s{plo}, s{off_s}")
    E(f"s_addc_u32 s{dst+1}, s{plo+1}, 0")
    E(f"s_and_b32 s{dst+1}, s{dst+1}, 0xffff")
    E(f"s_mov_b32 s{dst+2}, {nrec}")
    E(f"s_mov_b32 s{dst+3}, 0x00020000")

def dpp_reduce(regs):
    for ctl in ["row_shr:1", "row_shr:2", "row_shr:4", "row_shr:8"]:
        for r in regs:
            E(f"v_add_f32_dpp v{r}, v{r}, v{r} {ctl} row_mask:0xf bank_mask:0xf bound_ctrl:0")
        if len(regs) < 3: E("s_nop 1")
    for r in regs:
        E(f"v_add_f32_dpp v{r}, v{r}, v{r} row_bcast:15 row_mask:0xa bank_mask:0xf")
    if len(regs) < 3: E("s_nop 1")
    for r in regs:
        E(f"v_add_f32_dpp v{r}, v{r}, v{r} row_bcast:31 row_mask:0xc bank_mask:0xf")

def expand(dup, dst):
    for w in range(4):
        E(f"v_and_b32 v{dst+w}, v{dup}, v{vM[w]}")

def mfma(d, a, b, c):
    E(f"v_mfma_f32_16x16x32_bf16 {vr(d)}, {vr(a)}, {vr(b)}, {'0' if c is None else vr(c)}")

E("s_cmp_ge_u32 s2, 256")
E("s_cbranch_scc1 K1_END")
if ST: E("s_mov_b32 s93, s2")
stamp()
if DBG: E("s_memtime s[6:7]")
E("s_load_dwordx16 s[8:23], s[0:1], 0")
E("s_load_dwordx8 s[24:31], s[0:1], 64")
E("s_load_dwordx2 s[32:33], s[0:1], 96")
E(f"v_and_b32 v{vL}, 63, v0")
E(f"v_bfe_u32 v{vG}, v0, 4, 2")
E(f"v_and_b32 v{vJ}, 15, v0")
E(f"v_lshrrev_b32 v{vA}, 6, v0")
E("s_nop 0")
E(f"v_readfirstlane_b32 s{sW}, v{vA}")
E(f"s_and_b32 s{sXCD}, s2, 7")
E(f"s_lshr_b32 s{sIDX}, s2, 3")
E(f"s_and_b32 s{sH}, s{sIDX}, 3")
E(f"s_lshl_b32 s{sT}, s{sXCD}, 2")
E(f"s_add_u32 s{sH}, s{sH}, s{sT}")
E(f"s_lshr_b32 s{sC}, s{sIDX}, 2")
E(f"s_lshl_b32 s{sROW}, s{sH}, 3")
E(f"s_add_u32 s{sROW}, s{sROW}, s{sC}")
sROT = 84
if opt('norot'):
    E(f"s_mov_b32 s{sROT}, 0")
else:
    E(f"s_mul_i32 s{sROT}, s{sH}, 5")
    E(f"s_mul_i32 s{sT}, s{sC}, 3")
    E(f"s_add_u32 s{sROT}, s{sROT}, s{sT}")
    if opt('rotw'): E(f"s_add_u32 s{sROT}, s{sROT}, s{sW}")
    E(f"s_and_b32 s{sROT}, s{sROT}, 7")
E("s_mov_b32 s3, 0x40007")
E(f"s_mov_b32 s{sHF}, 0xFF00FF00")
E(f"s_mov_b32 s{sHF+1}, 0xFF00FF00")
E(f"s_mov_b32 s{sV2}, 0x00FF00FF")
E(f"s_mov_b32 s{sV2+1}, 0xFF00FF00")
E(f"s_mov_b32 s{sSC}, 0x{f32bits(SCALE_LOG2E):08x}")
t0, t1, t2, t3 = vA, vA+1, vA+2, vA+3
E(f"v_and_b32 v{t0}, 1, v{vJ}")
E(f"v_lshlrev_b32 v{t0}, 4, v{t0}")
E(f"v_mov_b32 v{t1}, 0xffff")
E(f"v_lshlrev_b32 v{t1}, v{t0}, v{t1}")
E(f"v_bfe_u32 v{t2}, v{vJ}, 1, 2")
for w in range(4):
    E(f"v_cmp_eq_u32 vcc, {w}, v{t2}")
    E("s_nop 1")
    E(f"v_cndmask_b32 v{vM[w]}, 0, v{t1}, vcc")
vHF, vGH, vJ7 = vA, vA+1, vA+2
E(f"v_lshrrev_b32 v{vHF}, 3, v{vJ}")
E(f"v_lshl_add_u32 v{vGH}, v{vHF}, 2, v{vG}")
E(f"v_and_b32 v{vJ7}, 7, v{vJ}")
oWA, oWA2, oWB, oG, oX, oKa, oKb, oGX = 32, 33, 34, 35, 36, 38, 39, 37
E(f"v_mul_u32_u24 v{oWA}, 12288, v{vG}")
E(f"v_lshl_add_u32 v{oWA}, v{vJ}, 4, v{oWA}")
E(f"v_add_u32 v{oWA2}, 49152, v{oWA}")
E(f"v_mul_u32_u24 v{oWB}, 12288, v{vGH}")
E(f"v_lshl_add_u32 v{oWB}, v{vJ7}, 4, v{oWB}")
E(f"v_add_u32 v{oWB}, 256, v{oWB}")
E(f"v_mul_u32_u24 v{oG}, 3072, v{vGH}")
E(f"v_lshl_add_u32 v{oG}, v{vJ7}, 4, v{oG}")
E(f"v_mov_b32 v{t3}, 0x40000000")
E(f"v_cmp_gt_u32 vcc, 6, v{vJ7}")
E("s_nop 1")
E(f"v_cndmask_b32 v{oG}, v{t3}, v{oG}, vcc")
E(f"v_lshlrev_b32 v{oX}, 1, v{vGH}")
E(f"v_lshlrev_b32 v{oGX}, 2, v0")
oK = [[252, 253], [254, 255]]
for Q in range(2):
    a_, b_ = oK[Q]
    E(f"v_and_b32 v{a_}, 3, v{vJ}")
    E(f"v_add_u32 v{a_}, s{sROT}, v{a_}")
    if Q: E(f"v_add_u32 v{a_}, 4, v{a_}")
    E(f"v_and_b32 v{a_}, 7, v{a_}")
    E(f"v_lshlrev_b32 v{a_}, 3, v{a_}")
    E(f"v_bfe_u32 v{t3}, v{vJ}, 2, 1")
    E(f"v_add_u32 v{a_}, v{a_}, v{t3}")
    E(f"v_mul_u32_u24 v{a_}, 384, v{a_}")
    E(f"v_lshl_add_u32 v{a_}, v{vG}, 4, v{a_}")
    E(f"v_lshlrev_b32 v{t3}, 6, v{vHF}")
    E(f"v_sub_u32 v{b_}, v{a_}, v{t3}")
    E(f"v_add_u32 v{b_}, 64, v{b_}")
    E(f"v_add_u32 v{a_}, v{a_}, v{t3}")
E("s_waitcnt lgkmcnt(0)")
if DBG: E("s_mov_b32 s95, s6")
E(f"s_load_dwordx2 s[{sTAG}:{sTAG+1}], s[32:33], 0")
E(f"s_mul_i32 s{sT}, s{sH}, 12582912")
E(f"s_mul_i32 s{sOFF}, s{sC}, 196608")
E(f"s_add_u32 s{sT}, s{sT}, s{sOFF}")
E(f"s_mul_i32 s{sOFF}, s{sW}, 24576")
E(f"s_add_u32 s{sT}, s{sT}, s{sOFF}")
E(f"s_add_u32 s{sT}, s{sT}, 11010048")
srd(sK, 10, sT, 24576)
GOFF = [0, 2, 6, 4]
def kload(n):
    Q, gi, s = n // 12, (n // 3) % 4, n % 3
    b = vKB + n * 4
    va = oK[Q][0] if gi in (0, 2) else oK[Q][1]
    VM(f"buffer_load_dwordx4 {vr(b)}, v{va}, {sr(sK)}, 0 offen offset:{GOFF[gi]*384+s*128}{KNT}", f"K{Q}{gi}")
NKE = int(opt('nke', 4))
for n in range(NKE): kload(n)
srd(sV, 12, sT, 24576)
E(f"s_mul_i32 s{sR0}, s{sC}, 80")
E(f"s_lshl_b32 s{sOFF}, s{sW}, 3")
E(f"s_add_u32 s{sR0}, s{sR0}, s{sOFF}")
E(f"s_mul_i32 s{sT}, s{sR0}, 12288")
E(f"s_mul_i32 s{sOFF}, s{sH}, 384")
E(f"s_add_u32 s{sT}, s{sT}, s{sOFF}")
srd(sWQ, 14, sT, 72 * 12288)
E(f"s_mul_i32 s{sT}, s{sR0}, 3072")
E(f"s_mul_i32 s{sOFF}, s{sH}, 96")
E(f"s_add_u32 s{sT}, s{sT}, s{sOFF}")
srd(sWG, 20, sT, 72 * 3072)
srd(sWU, 22, sT, 72 * 3072)
E(f"s_lshl_b32 s{sR0+1}, s{sR0}, 1")
E(f"s_mov_b32 s{sT}, 0")
srd(sX, 8, sT, 1280)
srd(sWS, 32, sT, 0x400000)
E(f"s_cmp_lt_u32 s{sW}, 2")
E(f"s_cselect_b32 s{sR0+2}, 786432, 0x40000000")
E(f"s_cselect_b32 s{sR0+3}, 196608, 0x40000000")
vX0, vX1, vGX, vGW = vA+4, vA+5, vA+6, vA+7
VM(f"buffer_load_ushort v{vX0}, v{oX}, {sr(sX)}, s{sR0+1} offen", "X")
VM(f"buffer_load_ushort v{vX1}, v{oX}, {sr(sX)}, s{sR0+1} offen offset:128", "X")
def p0reg(k, q): return vVB + 20 * k + 4 * q
VM(f"buffer_load_dwordx4 {vr(p0reg(0,0))}, v{oWA}, {sr(sWQ)}, 0 offen{WNT}", "P0")
VM(f"buffer_load_dwordx4 {vr(p0reg(0,1))}, v{oWA2}, {sr(sWQ)}, 0 offen{WNT}", "P0")
VM(f"buffer_load_dwordx4 {vr(p0reg(0,2))}, v{oWB}, {sr(sWQ)}, 0 offen{WNT}", "P0")
VM(f"buffer_load_dwordx4 {vr(p0reg(0,3))}, v{oG}, {sr(sWG)}, 0 offen{ANT}", "P0")
VM(f"buffer_load_dwordx4 {vr(p0reg(0,4))}, v{oG}, {sr(sWU)}, 0 offen{ANT}", "P0")
for o_, s_ in ((oWA, sR0+2), (oWA2, sR0+2), (oWB, sR0+2), (oG, sR0+3)):
    E(f"v_add_u32 v{o_}, s{s_}, v{o_}")
VM(f"buffer_load_dwordx4 {vr(p0reg(1,0))}, v{oWA}, {sr(sWQ)}, 0 offen{WNT}", "P1")
VM(f"buffer_load_dwordx4 {vr(p0reg(1,1))}, v{oWA2}, {sr(sWQ)}, 0 offen{WNT}", "P1")
VM(f"buffer_load_dwordx4 {vr(p0reg(1,2))}, v{oWB}, {sr(sWQ)}, 0 offen{WNT}", "P1")
VM(f"buffer_load_dwordx4 {vr(p0reg(1,3))}, v{oG}, {sr(sWG)}, 0 offen{ANT}", "P1")
VM(f"buffer_load_dwordx4 {vr(p0reg(1,4))}, v{oG}, {sr(sWU)}, 0 offen{ANT}", "P1")
E(f"s_mov_b32 s{sWO}, s26")
E(f"s_and_b32 s{sWO+1}, s27, 0xffff")
E(f"s_mov_b32 s{sWO+2}, 1280")
E(f"s_mov_b32 s{sWO+3}, 0x00020000")
VM(f"buffer_load_dword v{vGX}, v{oGX}, {sr(sX)}, 0 offen", "G")
VM(f"buffer_load_dword v{vGW}, v{oGX}, {sr(sWO)}, 0 offen", "G")
E(f"s_mul_i32 s{sT}, s{sH}, 245760")
E(f"s_mul_i32 s{sOFF}, s{sC}, 160")
E(f"s_add_u32 s{sT}, s{sT}, s{sOFF}")
srd(sWO, 16, sT, 245760 - 1120)
E(f"s_mul_i32 s{sT}, s{sH}, 61440")
E(f"s_add_u32 s{sT}, s{sT}, s{sOFF}")
srd(sWD, 24, sT, 61440 - 1120)
E(f"s_mov_b32 s{sOFF}, 12288")
for n in range(NKE, NK0): kload(n)
stamp()
vAC = 16
vBX = vQ
WAIT("X")
E(f"v_lshl_or_b32 v{vX0}, v{vX0}, 16, v{vX0}")
E(f"v_lshl_or_b32 v{vX1}, v{vX1}, 16, v{vX1}")
expand(vX0, vBX)
expand(vX1, vBX + 4)
WAIT("P0")
for q in range(5):
    mfma(vAC + 4*q, p0reg(0, q), vBX, None)
WAIT("P1")
for q in range(5):
    mfma(vAC + 4*q, p0reg(1, q), vBX + 4, vAC + 4*q)
WAIT("G")
E(f"v_lshlrev_b32 v{vX0}, 16, v{vGX}")
E(f"v_and_b32 v{vGX}, 0xffff0000, v{vGX}")
E(f"v_lshlrev_b32 v{vX1}, 16, v{vGW}")
E(f"v_and_b32 v{vGW}, 0xffff0000, v{vGW}")
E(f"v_mul_f32 v{vX0}, v{vX0}, v{vX1}")
E(f"v_fmac_f32 v{vX0}, v{vGX}, v{vGW}")
E("s_nop 1")
dpp_reduce([vX0])
a1, a2, tt = vA, vA+1, vA+2
E(f"v_lshrrev_b32 v{tt}, 3, v{vJ}")
E(f"s_lshl_b32 s{sT}, s{sW}, 1")
E(f"v_add_u32 v{tt}, s{sT}, v{tt}")
E(f"v_mul_u32_u24 v{a1}, {P0_STR}, v{tt}")
E(f"v_and_b32 v{tt}, 7, v{vJ}")
E(f"v_lshl_add_u32 v{a1}, v{tt}, 2, v{a1}")
E(f"v_and_b32 v{tt}, 1, v{vG}")
E(f"v_lshl_add_u32 v{a2}, v{tt}, 7, v{a1}")
E(f"v_lshl_add_u32 v{a1}, v{vG}, 7, v{a1}")
E(f"s_lshl_b32 s{sT}, s{sW}, 2")
E(f"v_mov_b32 v{tt}, s{sT}")
E("s_mov_b32 exec_lo, 0")
E("s_mov_b32 exec_hi, 0x80000000")
E(f"ds_write_b32 v{tt}, v{vX0} offset:{Z_OFF}")
E("s_mov_b64 exec, -1")
E("s_nop 3")
for r in range(4):
    E(f"v_cndmask_b32 v{vAC+r}, v{vAC+r}, v{vAC+4+r}, s[{sHF}:{sHF+1}]")
for r in range(4):
    E(f"ds_write_b32 v{a1}, v{vAC+r} offset:{P0_OFF + r*32}")
E(f"s_mov_b64 exec, s[{sV2}:{sV2+1}]")
for q in range(3):
    for r in range(4):
        E(f"ds_write_b32 v{a2}, v{vAC+8+4*q+r} offset:{P0_OFF + 512 + 256*q + r*32}")
E("s_mov_b64 exec, -1")
E("s_waitcnt lgkmcnt(0)")
E("s_barrier")
stamp()
E(f"s_add_u32 s{sTAG}, s{sTAG}, 1")
E(f"s_addc_u32 s{sTAG+1}, s{sTAG+1}, 0")
E(f"s_cmp_ge_u32 s{sW}, 3")
E("s_cbranch_scc1 K1_PUB0_DONE")
E("v_cmp_gt_u32 vcc, 144, v0")
E(f"s_and_saveexec_b64 s[{sE}:{sE+1}], vcc")
E(f"v_lshlrev_b32 v{vA}, 3, v0")
E(f"v_add_u32 v{vA+1}, 64, v{vA}")
E("v_cmp_gt_u32 vcc, 120, v0")
E("s_nop 1")
E(f"v_cndmask_b32 v{vA}, v{vA+1}, v{vA}, vcc")
vR = vQ - 36
for s in range(16):
    E(f"ds_read_b64 v[{vR+2*s}:{vR+2*s+1}], v{vA} offset:{P0_OFF + s*P0_STR}")
E("s_waitcnt lgkmcnt(0)")
for st in (8, 4, 2, 1):
    for s in range(st):
        for q in range(2):
            E(f"v_add_f32 v{vR+2*s+q}, v{vR+2*s+q}, v{vR+2*(s+st)+q}")
E(f"v_mov_b32 v{vR+2}, s{sTAG}")
E(f"v_mov_b32 v{vR+3}, s{sTAG+1}")
E(f"v_lshlrev_b32 v{vA}, 4, v0")
E(f"s_mul_i32 s{sT}, s{sROW}, 2304")
E(f"s_add_u32 s{sT}, s{sT}, {WS_G0}")
E(f"buffer_store_dwordx4 {vr(vR)}, v{vA}, {sr(sWS)}, s{sT} offen sc1")
E(f"s_mov_b64 exec, s[{sE}:{sE+1}]")
E("s_nop 1")
L("K1_PUB0_DONE:")
for n in range(NK0, 24): kload(n)
vGa = vR
E(f"s_mul_i32 s{sT}, s{sW}, 288")
E(f"v_lshlrev_b32 v{vA}, 4, v{vL}")
E(f"v_add_u32 v{vA}, s{sT}, v{vA}")
E(f"s_mul_i32 s{sR0}, s{sH}, {8*2304}")
E(f"s_add_u32 s{sR0}, s{sR0}, {WS_G0}")
E("s_mov_b64 exec, 0x3ffff")
def gather_q():
    for p in range(8):
        E(f"s_add_u32 s{sT}, s{sR0}, {p*2304}")
        VM(f"buffer_load_dwordx4 {vr(vGa+4*p)}, v{vA}, {sr(sWS)}, s{sT} offen sc1", "GQ")
gather_q()
E("s_mov_b64 exec, -1")
oVA, oVB = 38, 39
E(f"v_mul_u32_u24 v{oVA}, 384, v{vG}")
E(f"v_lshl_add_u32 v{oVA}, v{vJ}, 4, v{oVA}")
E(f"v_lshrrev_b32 v{vA+1}, 3, v{vJ}")
E(f"v_lshl_add_u32 v{vA+1}, v{vA+1}, 2, v{vG}")
E(f"v_mul_u32_u24 v{oVB}, 384, v{vA+1}")
E(f"v_and_b32 v{vA+1}, 7, v{vJ}")
E(f"v_lshl_add_u32 v{oVB}, v{vA+1}, 4, v{oVB}")
E(f"v_add_u32 v{oVB}, 256, v{oVB}")
def vload(n):
    k, q = n // 3, n % 3
    b = vVB + 12 * k + 4 * q
    if q == 0 or n == NV1:
        E(f"s_add_u32 s{sOFF}, s{sROT}, {k}")
        E(f"s_and_b32 s{sOFF}, s{sOFF}, 7")
        E(f"s_mul_i32 s{sOFF}, s{sOFF}, 3072")
    if q < 2:
        VM(f"buffer_load_dwordx4 {vr(b)}, v{oVA}, {sr(sV)}, s{sOFF} offen offset:{q*1536}{VNT}", f"V{k}")
    else:
        VM(f"buffer_load_dwordx4 {vr(b)}, v{oVB}, {sr(sV)}, s{sOFF} offen{VNT}", f"V{k}")
for n in range(NV1): vload(n)
stamp()
WAIT("GQ")
E("s_mov_b64 exec, 0x3ffff")
L("K1_GQ_CHECK:")
E(f"s_mov_b64 s[{sBAD}:{sBAD+1}], 0")
for p in range(8):
    E(f"v_cmp_ne_u64 vcc, s[{sTAG}:{sTAG+1}], v[{vGa+4*p+2}:{vGa+4*p+3}]")
    E(f"s_or_b64 s[{sBAD}:{sBAD+1}], s[{sBAD}:{sBAD+1}], vcc")
E(f"s_cmp_eq_u64 s[{sBAD}:{sBAD+1}], 0")
E("s_cbranch_scc1 K1_GQ_OK")
E("s_sub_u32 s3, s3, 1")
E("s_cbranch_scc1 K1_GQ_OK")
E("s_sleep 2")
sv = list(vmq)
gather_q()
vmq[:] = sv
E("s_waitcnt vmcnt(0)")
E("s_branch K1_GQ_CHECK")
L("K1_GQ_OK:")
for p in range(1, 8):
    E(f"v_add_f32 v{vGa}, v{vGa}, v{vGa+4*p}")
    E(f"v_add_f32 v{vGa+1}, v{vGa+1}, v{vGa+4*p+1}")
E(f"s_mul_i32 s{sT}, s{sW}, 18")
E(f"v_add_u32 v{vA}, s{sT}, v{vL}")
E(f"v_cvt_pk_bf16_f32 v{vA+1}, v{vGa}, v{vGa+1}")
E(f"v_lshlrev_b32 v{vA+2}, 2, v{vA}")
E(f"v_lshlrev_b32 v{vA+3}, 3, v{vA}")
E(f"v_cmp_gt_u32 vcc, 96, v{vA}")
E(f"s_and_saveexec_b64 s[{sE}:{sE+1}], vcc")
E(f"ds_write_b32 v{vA+2}, v{vA+1} offset:{QBF_OFF}")
E(f"s_andn2_b64 exec, s[{sE}:{sE+1}], vcc")
E(f"ds_write_b64 v{vA+3}, v[{vGa}:{vGa+1}] offset:{GU_OFF - 96*8}")
E("s_mov_b64 exec, -1")
E("s_waitcnt lgkmcnt(0)")
E("s_barrier")
stamp()
E(f"v_lshrrev_b32 v{vA+1}, 3, v{vJ}")
E(f"v_lshlrev_b32 v{vA+1}, 6, v{vA+1}")
E(f"v_lshl_add_u32 v{vA}, v{vG}, 4, v{vA+1}")
for s in range(3):
    E(f"ds_read_b128 {vr(vQ+4*s)}, v{vA} offset:{QBF_OFF + 128*s}")
E(f"v_xor_b32 v{vA+2}, 40, v{vL}")
E(f"v_lshlrev_b32 v{vA+2}, 2, v{vA+2}")
E("s_waitcnt lgkmcnt(0)")
vS = 16
vD = 16
vF = vQ + 12
for Q in range(2):
    for gi in range(4):
        WAIT(f"K{Q}{gi}")
        for s in range(3):
            b = vKB + ((Q * 4 + gi) * 3 + s) * 4
            mfma(vD + 4*gi, b, vQ + 4*s, None if s == 0 else vD + 4*gi)
    E("s_nop 7")
    for r in range(4):
        a, b_, c_, d = vD + r, vD + 4 + r, vD + 8 + r, vD + 12 + r
        u1, u2 = vA + 4, vA + 5
        E(f"v_cndmask_b32 v{u1}, v{b_}, v{a}, s[{sV2}:{sV2+1}]")
        E(f"v_cndmask_b32 v{u2}, v{d}, v{c_}, s[{sV2}:{sV2+1}]")
        E(f"v_cndmask_b32 v{vF+4*Q+r}, v{u1}, v{u2}, s[{sHF}:{sHF+1}]")
        E(f"v_cndmask_b32 v{a}, v{u2}, v{u1}, s[{sHF}:{sHF+1}]")
    for r in range(4):
        E(f"ds_bpermute_b32 v{vD+4+r}, v{vA+2}, v{vD+r}")
    E("s_waitcnt lgkmcnt(0)")
    for r in range(4):
        E(f"v_add_f32 v{vF+4*Q+r}, v{vF+4*Q+r}, v{vD+4+r}")
for r in range(8):
    E(f"v_mov_b32 v{vS+r}, v{vF+r}")
stamp()
for n in range(NV1, 24): vload(n)
oWO = vA
E(f"v_mul_u32_u24 v{oWO}, 1280, v{vG}")
E(f"v_lshl_add_u32 v{oWO}, v{vJ}, 4, v{oWO}")
E(f"v_mov_b32 v{vA+1}, 0x40000000")
E(f"v_cmp_gt_u32 vcc, 10, v{vJ}")
E("s_nop 1")
E(f"v_cndmask_b32 v{oWO}, v{vA+1}, v{oWO}, vcc")
E(f"s_mul_i32 s{sOFF}, s{sW}, 10240")
for k in range(3):
    E(f"s_add_u32 s{sT}, s{sOFF}, {k*81920}")
    VM(f"buffer_load_dwordx4 {vr(vKB+8*k)}, v{oWO}, {sr(sWO)}, s{sT} offen{ANT}", "WO")
    E(f"s_add_u32 s{sT}, s{sOFF}, {k*81920 + 5120}")
    VM(f"buffer_load_dwordx4 {vr(vKB+8*k+4)}, v{oWO}, {sr(sWO)}, s{sT} offen{ANT}", "WO")
E(f"s_cmp_lt_u32 s{sW}, 6")
E(f"s_cselect_b32 s{sT}, 0, 0x40000000")
E(f"v_add_u32 v{vA+1}, s{sT}, v{oWO}")
E(f"v_or_b32 v{vA+1}, v{vA+1}, v{oWO}")
VM(f"buffer_load_dwordx4 {vr(vKB+24)}, v{vA+1}, {sr(sWD)}, s{sOFF} offen{ANT}", "WO")
E(f"s_add_u32 s{sT}, s{sOFF}, 5120")
VM(f"buffer_load_dwordx4 {vr(vKB+28)}, v{vA+1}, {sr(sWD)}, s{sT} offen{ANT}", "WO")
t = vA + 1
E(f"v_max3_f32 v{t}, v{vS}, v{vS+1}, v{vS+2}")
E(f"v_max3_f32 v{t}, v{t}, v{vS+3}, v{vS+4}")
E(f"v_max3_f32 v{t}, v{t}, v{vS+5}, v{vS+6}")
E(f"v_max_f32 v{t}, v{t}, v{vS+7}")
E("s_nop 1")
E(f"v_max_f32_dpp v{t}, v{t}, v{t} row_ror:8 row_mask:0xf bank_mask:0xf")
E("s_nop 1")
for q in range(4):
    E(f"v_readlane_b32 s{sR0+q}, v{t}, {16*q}")
E("s_nop 1")
E(f"v_mov_b32 v{t}, s{sR0}")
E(f"v_max_f32 v{t}, s{sR0+1}, v{t}")
E(f"v_max_f32 v{t}, s{sR0+2}, v{t}")
E(f"v_max_f32 v{t}, s{sR0+3}, v{t}")
E(f"s_lshl_b32 s{sT}, s{sW}, 2")
E(f"v_mov_b32 v{t+1}, s{sT}")
E(f"ds_write_b32 v{t+1}, v{t} offset:{ST_OFF}")
E(f"v_mul_f32 v{t}, s{sSC}, v{t}")
for r in range(8):
    E(f"v_fma_f32 v{vS+r}, v{vS+r}, s{sSC}, -v{t}")
for r in range(8):
    E(f"v_exp_f32 v{vS+r}, v{vS+r}")
E("s_nop 0")
t2 = vA + 3
E(f"v_add_f32 v{t2}, v{vS}, v{vS+1}")
for r in range(2, 8):
    E(f"v_add_f32 v{t2}, v{t2}, v{vS+r}")
E("s_nop 1")
E(f"v_add_f32_dpp v{t2}, v{t2}, v{t2} row_ror:8 row_mask:0xf bank_mask:0xf")
E("s_nop 1")
for q in range(4):
    E(f"v_readlane_b32 s{sR0+q}, v{t2}, {16*q}")
E("s_nop 1")
E(f"v_mov_b32 v{t2}, s{sR0}")
E(f"v_add_f32 v{t2}, s{sR0+1}, v{t2}")
E(f"v_add_f32 v{t2}, s{sR0+2}, v{t2}")
E(f"v_add_f32 v{t2}, s{sR0+3}, v{t2}")
E(f"ds_write_b32 v{t+1}, v{t2} offset:{ST_OFF+32}")
for r in range(8):
    E(f"v_cvt_pk_bf16_f32 v{vS+r}, v{vS+r}, v{vS+r}")
E("s_waitcnt lgkmcnt(0)")
stamp()
vPA = vS + 8
vBP = vA
for k in range(8):
    expand(vS + k, vBP)
    WAIT(f"V{k}")
    E("s_nop 0")
    b = vVB + 12 * k
    for q in range(3):
        mfma(vPA + 4*q, b + 4*q, vBP, None if k == 0 else vPA + 4*q)
stamp()
a1, a2, tt = vS, vS+1, vS+2
E(f"v_lshrrev_b32 v{tt}, 3, v{vJ}")
E(f"s_lshl_b32 s{sT}, s{sW}, 1")
E(f"v_add_u32 v{tt}, s{sT}, v{tt}")
E(f"v_mul_u32_u24 v{a1}, {P2_STR}, v{tt}")
E(f"v_and_b32 v{tt}, 7, v{vJ}")
E(f"v_lshl_add_u32 v{a1}, v{tt}, 2, v{a1}")
E(f"v_and_b32 v{tt}, 1, v{vG}")
E(f"v_lshl_add_u32 v{a2}, v{tt}, 7, v{a1}")
E(f"v_lshl_add_u32 v{a1}, v{vG}, 7, v{a1}")
E("s_nop 7")
for r in range(4):
    E(f"v_cndmask_b32 v{vPA+r}, v{vPA+r}, v{vPA+4+r}, s[{sHF}:{sHF+1}]")
for r in range(4):
    E(f"ds_write_b32 v{a1}, v{vPA+r} offset:{P2_OFF + r*32}")
E(f"s_mov_b64 exec, s[{sV2}:{sV2+1}]")
for r in range(4):
    E(f"ds_write_b32 v{a2}, v{vPA+8+r} offset:{P2_OFF + 512 + r*32}")
E("s_mov_b64 exec, -1")
E("s_waitcnt lgkmcnt(0)")
E("s_barrier")
stamp()
vT = vVB
E(f"v_mov_b32 v{vT+1}, 0")
for w in range(5):
    E(f"ds_read_b32 v{vT+60+w}, v{vT+1} offset:{Z_OFF + 4*w}")
E(f"s_cmp_ge_u32 s{sW}, 3")
E("s_cbranch_scc1 K1_T_WAIT")
E(f"s_cmp_eq_u32 s{sW}, 2")
E("s_cbranch_scc1 K1_T_H")
E(f"v_lshlrev_b32 v{vT}, 3, v0")
E(f"ds_read_b128 {vr(vT+4)}, v{vT+1} offset:{ST_OFF}")
E(f"ds_read_b128 {vr(vT+8)}, v{vT+1} offset:{ST_OFF+16}")
E(f"ds_read_b128 {vr(vT+12)}, v{vT+1} offset:{ST_OFF+32}")
E(f"ds_read_b128 {vr(vT+16)}, v{vT+1} offset:{ST_OFF+48}")
for s in range(16):
    E(f"ds_read_b64 v[{vT+20+2*s}:{vT+21+2*s}], v{vT} offset:{P2_OFF + s*P2_STR}")
E("s_waitcnt lgkmcnt(0)")
mm, ll = vT + 2, vT + 3
E(f"v_max3_f32 v{mm}, v{vT+4}, v{vT+5}, v{vT+6}")
E(f"v_max3_f32 v{mm}, v{mm}, v{vT+7}, v{vT+8}")
E(f"v_max3_f32 v{mm}, v{mm}, v{vT+9}, v{vT+10}")
E(f"v_max_f32 v{mm}, v{mm}, v{vT+11}")
for w in range(8):
    E(f"v_sub_f32 v{vT+4+w}, v{vT+4+w}, v{mm}")
for w in range(8):
    E(f"v_mul_f32 v{vT+4+w}, s{sSC}, v{vT+4+w}")
for w in range(8):
    E(f"v_exp_f32 v{vT+4+w}, v{vT+4+w}")
E("s_nop 0")
E(f"v_mul_f32 v{ll}, v{vT+4}, v{vT+12}")
for w in range(1, 8):
    E(f"v_fmac_f32 v{ll}, v{vT+4+w}, v{vT+12+w}")
for w in range(8):
    for q in range(2):
        E(f"v_add_f32 v{vT+20+4*w+q}, v{vT+20+4*w+q}, v{vT+22+4*w+q}")
vO = vT + 52
for q in range(2):
    E(f"v_mul_f32 v{vO+q}, v{vT+4}, v{vT+20+q}")
    for w in range(1, 8):
        E(f"v_fmac_f32 v{vO+q}, v{vT+4+w}, v{vT+20+4*w+q}")
E("v_cmp_eq_u32 vcc, 96, v0")
E(f"v_lshlrev_b32 v{vT+56}, 4, v0")
E(f"v_add_u32 v{vT+56}, 16, v{vT+56}")
E(f"v_cndmask_b32 v{vO}, v{vO}, v{mm}, vcc")
E(f"v_cndmask_b32 v{vO+1}, v{vO+1}, v{ll}, vcc")
E(f"v_cndmask_b32 v{vT+57}, v{vT+56}, 0, vcc")
E(f"v_mov_b32 v{vO+2}, s{sTAG}")
E(f"v_mov_b32 v{vO+3}, s{sTAG+1}")
E(f"s_lshl_b32 s{sT}, s{sROW}, 11")
E(f"s_add_u32 s{sT}, s{sT}, {WS_G2}")
E("v_cmp_gt_u32 vcc, 97, v0")
E(f"s_and_saveexec_b64 s[{sE}:{sE+1}], vcc")
E(f"s_add_u32 s{sOFF}, s{sT}, {WS_G2A - WS_G2}")
E(f"buffer_store_dwordx4 {vr(vO)}, v{vT+57}, {sr(sWS)}, s{sOFF} offen")
E(f"buffer_store_dwordx4 {vr(vO)}, v{vT+57}, {sr(sWS)}, s{sT} offen sc1")
E(f"s_mov_b64 exec, s[{sE}:{sE+1}]")
stamp()
def calc_g(dst, z):
    for w in range(1, 5):
        E(f"v_add_f32 v{z}, v{z}, v{z+w}")
    E(f"v_mul_f32 v{dst}, 0xbfb8aa3b, v{z}")
    E(f"v_exp_f32 v{dst}, v{dst}")
    E("s_nop 0")
    E(f"v_add_f32 v{dst}, 1.0, v{dst}")
    E(f"v_rcp_f32 v{dst}, v{dst}")
    E("s_nop 0")
vGg = vT + 58
calc_g(vGg, vT + 60)
E(f"s_lshl_b32 s{sR0}, s{sH}, 14")
E(f"s_add_u32 s{sR0}, s{sR0}, {WS_G2}")
vGo = vKB + 32
sm = vGo + 32
E(f"v_min_u32 v{vT+56}, {96*16}, v{vT+56}")
E(f"v_and_b32 v{vT+59}, 7, v{vL}")
E(f"v_lshlrev_b32 v{vT+59}, 11, v{vT+59}")
L("K1_GO_LOOP:")
E(f"s_and_b32 s92, s3, {int(opt('bmask', 7))}")
E("s_cmp_eq_u32 s92, 0")
E(f"s_cselect_b32 s92, 0, {WS_G2A - WS_G2}")
E(f"s_add_u32 s92, s92, s{sR0}")
E(f"buffer_load_dwordx4 {vr(sm)}, v{vT+59}, {sr(sWS)}, s92 offen sc1")
for p in range(8):
    E(f"buffer_load_dwordx4 {vr(vGo+4*p)}, v{vT+56}, {sr(sWS)}, s92 offen offset:{(p*2048) % 4096} sc1" if p < 2 else
      f"buffer_load_dwordx4 {vr(vGo+4*p)}, v{vT+56}, {sr(sWS)}, s91 offen offset:{(p*2048) % 4096} sc1")
    if p % 2 == 1 and p < 7:
        E(f"s_add_u32 s91, s92, {(p+1)*2048}")
E("s_waitcnt vmcnt(0)")
E(f"s_mov_b64 s[{sBAD}:{sBAD+1}], 0")
for p in range(9):
    E(f"v_cmp_ne_u64 vcc, s[{sTAG}:{sTAG+1}], v[{vGo+4*p+2}:{vGo+4*p+3}]")
    E(f"s_or_b64 s[{sBAD}:{sBAD+1}], s[{sBAD}:{sBAD+1}], vcc")
E(f"s_cmp_eq_u64 s[{sBAD}:{sBAD+1}], 0")
E("s_cbranch_scc1 K1_GO_OK")
E("s_sub_u32 s3, s3, 1")
E("s_cbranch_scc1 K1_GO_OK")
E("s_branch K1_GO_LOOP")
L("K1_GO_OK:")
stamp()
E(f"v_max_f32_dpp v{mm}, v{sm}, v{sm} quad_perm:[1,0,3,2] row_mask:0xf bank_mask:0xf")
E("s_nop 1")
E(f"v_max_f32_dpp v{mm}, v{mm}, v{mm} quad_perm:[2,3,0,1] row_mask:0xf bank_mask:0xf")
E("s_nop 1")
E(f"v_max_f32_dpp v{mm}, v{mm}, v{mm} row_half_mirror row_mask:0xf bank_mask:0xf")
E("s_nop 0")
E(f"v_sub_f32 v{sm}, v{sm}, v{mm}")
E(f"v_mul_f32 v{sm}, s{sSC}, v{sm}")
E(f"v_exp_f32 v{sm}, v{sm}")
E("s_nop 0")
E(f"v_mul_f32 v{ll}, v{sm}, v{sm+1}")
E("s_nop 1")
E(f"v_add_f32_dpp v{ll}, v{ll}, v{ll} quad_perm:[1,0,3,2] row_mask:0xf bank_mask:0xf")
E("s_nop 1")
E(f"v_add_f32_dpp v{ll}, v{ll}, v{ll} quad_perm:[2,3,0,1] row_mask:0xf bank_mask:0xf")
E("s_nop 1")
E(f"v_add_f32_dpp v{ll}, v{ll}, v{ll} row_half_mirror row_mask:0xf bank_mask:0xf")
for p in range(8):
    E(f"v_readlane_b32 s{40+p}, v{sm}, {p}")
E(f"v_rcp_f32 v{ll}, v{ll}")
for q in range(2):
    E(f"v_mul_f32 v{vO+q}, s40, v{vGo+q}")
    for p in range(1, 8):
        E(f"v_fmac_f32 v{vO+q}, s{40+p}, v{vGo+4*p+q}")
E(f"v_mul_f32 v{ll}, v{ll}, v{vGg}")
E(f"v_mul_f32 v{vO}, v{vO}, v{ll}")
E(f"v_mul_f32 v{vO+1}, v{vO+1}, v{ll}")
E("v_cmp_gt_u32 vcc, 96, v0")
E(f"s_and_saveexec_b64 s[{sE}:{sE+1}], vcc")
E(f"v_cvt_pk_bf16_f32 v{vO}, v{vO}, v{vO+1}")
E(f"v_lshlrev_b32 v{vT}, 2, v0")
E(f"ds_write_b32 v{vT}, v{vO} offset:{OBF_OFF}")
E(f"s_mov_b64 exec, s[{sE}:{sE+1}]")
E("s_branch K1_T_WAIT")
L("K1_T_H:")
E(f"v_lshlrev_b32 v{vT}, 3, v{vL}")
E(f"ds_read_b64 v[{vT+4}:{vT+5}], v{vT} offset:{GU_OFF}")
E(f"ds_read_b64 v[{vT+6}:{vT+7}], v{vT} offset:{GU_OFF + 192}")
E("s_waitcnt lgkmcnt(0)")
calc_g(vGg, vT + 60)
E(f"v_sub_f32 v{vGg}, 1.0, v{vGg}")
E(f"v_cvt_pk_bf16_f32 v{vT+4}, v{vT+4}, v{vT+5}")
E(f"v_cvt_pk_bf16_f32 v{vT+6}, v{vT+6}, v{vT+7}")
E(f"v_lshlrev_b32 v{vT+8}, 16, v{vT+4}")
E(f"v_and_b32 v{vT+9}, 0xffff0000, v{vT+4}")
E(f"v_lshlrev_b32 v{vT+10}, 16, v{vT+6}")
E(f"v_and_b32 v{vT+11}, 0xffff0000, v{vT+6}")
E(f"v_max_f32 v{vT+8}, 0, v{vT+8}")
E(f"v_max_f32 v{vT+9}, 0, v{vT+9}")
E(f"v_mul_f32 v{vT+8}, v{vT+8}, v{vT+10}")
E(f"v_mul_f32 v{vT+9}, v{vT+9}, v{vT+11}")
E(f"v_cvt_pk_bf16_f32 v{vT+8}, v{vT+8}, v{vT+9}")
E(f"v_lshlrev_b32 v{vT+10}, 16, v{vT+8}")
E(f"v_and_b32 v{vT+11}, 0xffff0000, v{vT+8}")
E(f"v_mul_f32 v{vT+10}, v{vT+10}, v{vGg}")
E(f"v_mul_f32 v{vT+11}, v{vT+11}, v{vGg}")
E(f"v_cvt_pk_bf16_f32 v{vT+8}, v{vT+10}, v{vT+11}")
E(f"v_cmp_gt_u32 vcc, 24, v{vL}")
E("s_nop 1")
E(f"v_cndmask_b32 v{vT+8}, 0, v{vT+8}, vcc")
E(f"v_lshlrev_b32 v{vT}, 2, v{vL}")
E("s_mov_b64 exec, 0xffffffff")
E(f"ds_write_b32 v{vT}, v{vT+8} offset:{OBF_OFF + 384}")
E("s_mov_b64 exec, -1")
L("K1_T_WAIT:")
E("s_waitcnt lgkmcnt(0)")
E("s_barrier")
stamp()
vB = vT + 4
E(f"v_lshrrev_b32 v{vT}, 3, v{vJ}")
E(f"v_lshl_add_u32 v{vT}, v{vT}, 2, v{vG}")
E(f"v_lshlrev_b32 v{vT}, 1, v{vT}")
E(f"s_lshl_b32 s{sT}, s{sW}, 4")
E(f"v_add_u32 v{vT}, s{sT}, v{vT}")
for k in range(4):
    E(f"ds_read_u16 v{vT+20+k}, v{vT} offset:{OBF_OFF + 128*k}")
E("s_waitcnt lgkmcnt(0)")
for k in range(4):
    E(f"v_lshl_or_b32 v{vT+20+k}, v{vT+20+k}, 16, v{vT+20+k}")
for k in range(4):
    expand(vT + 20 + k, vB + 4*k)
E("s_waitcnt vmcnt(0)")
vY = vT + 24
for k in range(4):
    mfma(vY, vKB + 8*k, vB + 4*k, None if k == 0 else vY)
    mfma(vY + 4, vKB + 8*k + 4, vB + 4*k, None if k == 0 else vY + 4)
E(f"v_lshrrev_b32 v{vT+1}, 3, v{vJ}")
E(f"s_lshl_b32 s{sT}, s{sW}, 1")
E(f"v_add_u32 v{vT+1}, s{sT}, v{vT+1}")
E(f"v_mul_u32_u24 v{vT}, {Y_STR}, v{vT+1}")
E(f"v_and_b32 v{vT+1}, 7, v{vJ}")
E(f"v_lshl_add_u32 v{vT}, v{vT+1}, 2, v{vT}")
E(f"v_lshl_add_u32 v{vT}, v{vG}, 7, v{vT}")
E("s_nop 7")
for r in range(4):
    E(f"v_cndmask_b32 v{vY+r}, v{vY+r}, v{vY+4+r}, s[{sHF}:{sHF+1}]")
for r in range(4):
    E(f"ds_write_b32 v{vT}, v{vY+r} offset:{Y_OFF + r*32}")
E("s_waitcnt lgkmcnt(0)")
E("s_barrier")
E(f"s_cmp_lg_u32 s{sW}, 0")
E("s_cbranch_scc1 K1_PUB3_DONE")
E("s_mov_b32 exec_lo, -1")
E("s_mov_b32 exec_hi, 0xff")
E(f"v_lshlrev_b32 v{vT}, 3, v0")
for s in range(16):
    E(f"ds_read_b64 v[{vT+4+2*s}:{vT+5+2*s}], v{vT} offset:{Y_OFF + s*Y_STR}")
E("s_waitcnt lgkmcnt(0)")
for st in (8, 4, 2, 1):
    for s in range(st):
        for q in range(2):
            E(f"v_add_f32 v{vT+4+2*s+q}, v{vT+4+2*s+q}, v{vT+4+2*(s+st)+q}")
E(f"v_mov_b32 v{vT+6}, s{sTAG}")
E(f"v_mov_b32 v{vT+7}, s{sTAG+1}")
E(f"v_lshlrev_b32 v{vT}, 4, v0")
E(f"s_lshl_b32 s{sT}, s{sC}, 5")
E(f"s_add_u32 s{sT}, s{sT}, s{sH}")
E(f"s_mul_i32 s{sT}, s{sT}, 640")
E(f"s_add_u32 s{sT}, s{sT}, {WS_G3}")
E(f"buffer_store_dwordx4 {vr(vT+4)}, v{vT}, {sr(sWS)}, s{sT} offen sc1")
E("s_mov_b64 exec, -1")
L("K1_PUB3_DONE:")
stamp()
E(f"s_lshl_b32 s{sT}, s{sC}, 2")
E(f"s_cmp_lg_u32 s{sT}, s{sH}")
E("s_cbranch_scc1 K1_STAMPS")
E(f"s_lshl_b32 s{sR0}, s{sC}, 5")
E(f"s_lshl_b32 s{sT}, s{sW}, 2")
E(f"s_add_u32 s{sR0}, s{sR0}, s{sT}")
E(f"s_mul_i32 s{sR0}, s{sR0}, 640")
E(f"s_add_u32 s{sR0}, s{sR0}, {WS_G3}")
E(f"v_lshlrev_b32 v{vT}, 4, v{vL}")
E("s_mov_b32 exec_lo, -1")
E("s_mov_b32 exec_hi, 0xff")
L("K1_GF_LOOP:")
for p in range(4):
    E(f"buffer_load_dwordx4 {vr(vT+4+4*p)}, v{vT}, {sr(sWS)}, s{sR0} offen offset:{640*p} sc1")
E("s_waitcnt vmcnt(0)")
E(f"s_mov_b64 s[{sBAD}:{sBAD+1}], 0")
for p in range(4):
    E(f"v_cmp_ne_u64 vcc, s[{sTAG}:{sTAG+1}], v[{vT+4+4*p+2}:{vT+4+4*p+3}]")
    E(f"s_or_b64 s[{sBAD}:{sBAD+1}], s[{sBAD}:{sBAD+1}], vcc")
E(f"s_cmp_eq_u64 s[{sBAD}:{sBAD+1}], 0")
E("s_cbranch_scc1 K1_GF_OK")
E("s_sub_u32 s3, s3, 1")
E("s_cbranch_scc1 K1_GF_OK")
E("s_sleep 1")
E("s_branch K1_GF_LOOP")
L("K1_GF_OK:")
for p in range(1, 4):
    E(f"v_add_f32 v{vT+4}, v{vT+4}, v{vT+4+4*p}")
    E(f"v_add_f32 v{vT+5}, v{vT+5}, v{vT+5+4*p}")
E(f"v_lshlrev_b32 v{vT}, 3, v{vL}")
E(f"s_mul_i32 s{sT}, s{sW}, 320")
E(f"v_add_u32 v{vT}, s{sT}, v{vT}")
E(f"ds_write_b64 v{vT}, v[{vT+4}:{vT+5}] offset:{FR_OFF}")
E("s_mov_b64 exec, -1")
E("s_waitcnt lgkmcnt(0)")
E("s_barrier")
E(f"s_cmp_lg_u32 s{sW}, 0")
E("s_cbranch_scc1 K1_STAMPS")
E("s_mov_b32 exec_lo, -1")
E("s_mov_b32 exec_hi, 0xff")
E(f"v_lshlrev_b32 v{vT}, 3, v{vL}")
for w in range(8):
    E(f"ds_read_b64 v[{vT+4+2*w}:{vT+5+2*w}], v{vT} offset:{FR_OFF + 320*w}")
E(f"s_mov_b32 s{sWG}, s28")
E(f"s_and_b32 s{sWG+1}, s29, 0xffff")
E(f"s_mov_b32 s{sWG+2}, 1280")
E(f"s_mov_b32 s{sWG+3}, 0x00020000")
E("s_waitcnt lgkmcnt(0)")
for st in (4, 2, 1):
    for s in range(st):
        for q in range(2):
            E(f"v_add_f32 v{vT+4+2*s+q}, v{vT+4+2*s+q}, v{vT+4+2*(s+st)+q}")
E(f"v_cvt_pk_bf16_f32 v{vT+4}, v{vT+4}, v{vT+5}")
E(f"v_lshlrev_b32 v{vT}, 2, v{vL}")
E(f"s_mul_i32 s{sT}, s{sC}, 160")
E(f"buffer_store_dword v{vT+4}, v{vT}, {sr(sWG)}, s{sT} offen")
E(f"s_cmp_lg_u32 s{sC}, 0")
E("s_cbranch_scc1 K1_NOEP")
E("s_mov_b64 exec, 1")
E(f"v_mov_b32 v{vT+6}, s{sTAG}")
E(f"v_mov_b32 v{vT+7}, s{sTAG+1}")
E(f"v_mov_b32 v{vT}, 0")
E(f"buffer_store_dwordx2 v[{vT+6}:{vT+7}], v{vT}, {sr(sWS)}, 0 offen")
L("K1_NOEP:")
E("s_mov_b64 exec, -1")
L("K1_STAMPS:")
if DBG:
    E("s_mov_b64 exec, -1")
    E("s_waitcnt vmcnt(0) lgkmcnt(0)")
    E(f"s_cmp_lg_u32 s{sW}, 0")
    E("s_cbranch_scc1 K1_END")
    E("s_cmp_lg_u32 s93, 0")
    E("s_cbranch_scc1 K1_END")
    E("s_memrealtime s[2:3]")
    E("s_memtime s[6:7]")
    E("s_waitcnt lgkmcnt(0)")
    E("s_sub_u32 s6, s6, s95")
    E("s_sub_u32 s2, s2, s94")
    E("v_mov_b32 v10, 0")
    E("v_writelane_b32 v10, s6, 0")
    E("v_writelane_b32 v10, s2, 1")
    for i in range(1, stamp_n[0]):
        r = stamp_regs[i]
        E(f"s_sub_u32 s6, s{r}, s94")
        E(f"v_writelane_b32 v10, s6, {i+1}")
    E("v_lshlrev_b32 v11, 2, v1")
    E("v_cmp_gt_u32 vcc, 16, v1")
    E("s_and_saveexec_b64 s[86:87], vcc")
    E("global_store_dword v11, v10, s[30:31]")
elif ST:
    E("s_mov_b64 exec, -1")
    E("s_waitcnt vmcnt(0) lgkmcnt(0)")
    E(f"s_cmp_lg_u32 s{sW}, {STW}")
    E("s_cbranch_scc1 K1_END")
    E("s_memrealtime s[2:3]")
    E("s_waitcnt lgkmcnt(0)")
    regs = stamp_regs[:stamp_n[0]]
    for i, r in enumerate(regs):
        E(f"v_writelane_b32 v10, s{r}, {2*i}")
        E(f"v_writelane_b32 v10, s{r+1}, {2*i+1}")
    n = len(regs)
    E(f"v_writelane_b32 v10, s2, {2*n}")
    E(f"v_writelane_b32 v10, s3, {2*n+1}")
    E("v_lshlrev_b32 v11, 2, v1")
    E(f"s_lshl_b32 s39, s93, 7")
    E("s_add_u32 s39, s39, 0x300000")
    E(f"v_cmp_gt_u32 vcc, {2*n+2}, v1")
    E("s_and_saveexec_b64 s[86:87], vcc")
    E(f"buffer_store_dword v10, v11, {sr(sWS)}, s39 offen")
L("K1_END:")
E("s_endpgm")

L('.section .rodata,"a"')
L(".p2align 6")
L(f".amdhsa_kernel {K1}")
L(f"  .amdhsa_next_free_vgpr 256")
L(f"  .amdhsa_next_free_sgpr 102")
L(f"  .amdhsa_accum_offset 256")
L("  .amdhsa_group_segment_fixed_size 0")
L("  .amdhsa_kernarg_size 104")
L("  .amdhsa_user_sgpr_count 2")
L("  .amdhsa_user_sgpr_kernarg_segment_ptr 1")
L("  .amdhsa_system_sgpr_workgroup_id_x 1")
L(".end_amdhsa_kernel")
open(sys.argv[1], 'w').write('\n'.join(out) + '\n')
```

```python
import sys, struct

NAME = "gated_mix__sliding_block_cached__glu_gated_reglu__decode"
out = []
def E(s): out.append("    " + s)
def L(s): out.append(s)

HEADER = open('cdna_kernels/' + NAME + '.s.ref').read().split('\n')
hdr = []
for ln in HEADER:
    if ln.startswith('; @launch') or ln.startswith('.amdgcn_target'):
        break
    hdr.append(ln)

opts = (sys.argv[2] if len(sys.argv) > 2 else "").split(',')
def opt(name, default=None):
    for o in opts:
        if o == name: return True
        if o.startswith(name + '='): return o.split('=')[1]
    return default
NT = " nt" if not opt('nont') else ""
if opt('pol'): NT = " " + opt('pol').replace('+', ' ')
KNT = "" if opt('kplain') else NT
VNT = "" if opt('vplain') else NT
WNT = " nt" if (opt('wnt') or opt('allnt')) else ""
ANT = " nt" if opt('allnt') else ""
ST = opt('st') or opt('dbg')
DBG = opt('dbg')
STW = int(opt('stw', 0))
NK0 = int(opt('nk0', 8))
NV1 = int(opt('nv1', 15))

P0_OFF = 0;      P0_STR = 1312
P2_OFF = 16 * P0_STR;  P2_STR = 800
Y_OFF  = P2_OFF + 16 * P2_STR; Y_STR = 544
QBF_OFF = Y_OFF + 16 * Y_STR
GU_OFF  = QBF_OFF + 384
OBF_OFF = GU_OFF + 384
ST_OFF  = OBF_OFF + 512
Z_OFF   = ST_OFF + 64
FR_OFF  = Z_OFF + 64
LDS_SZ  = FR_OFF + 8 * 320
assert LDS_SZ <= 65536

WS_G0 = 0x1000
WS_G2 = 0x100000
WS_G2A = 0x180000
WS_G3 = 0x200000

SCALE_LOG2E = (192.0 ** -0.5) * 1.4426950408889634
def f32bits(x): return struct.unpack('<I', struct.pack('<f', x))[0]

K1 = NAME + "_kernel"
L('\n'.join(hdr))
L(f"; @launch grid=(256,1,1) block=(512,1,1) lds=65536")
L('.amdgcn_target "amdgcn-amd-amdhsa--gfx950"')
L(".text")
L(f".globl {K1}")
L(".p2align 8")
L(f".type {K1},@function")
L(f"{K1}:")

vL, vG, vJ = 1, 2, 3
vM = [4, 5, 6, 7]
vA = 8
vKB = 40
vVB = 136
vQ = 232

sW, sXCD, sIDX, sH, sC, sT = 34, 35, 36, 37, 38, 39
sK, sV, sWQ, sWO, sWG, sWU, sWD, sX, sWS = 40, 44, 48, 52, 56, 60, 64, 68, 72
sHF = 78
sV2 = 80
sOFF = 82
sSC = 83
sROW = 85
sE = 86
sR0 = 88
sTAG = 4
sBAD = 6
sGW = 76
stamp_regs = [94] + [10, 12, 14, 16, 18, 20, 22, 24, 96, 98, 100, 32, 8]
stamp_n = [0]
def stamp():
    if not ST: return
    r = stamp_regs[stamp_n[0]]; stamp_n[0] += 1
    E(f"s_memrealtime s[{r}:{r+1}]")
def vr(a, n=4): return f"v[{a}:{a+n-1}]"
def sr(a, n=4): return f"s[{a}:{a+n-1}]"

vmq = []
def VM(s, tag):
    E(s); vmq.append(tag)
def WAIT(tag):
    idx = max(i for i, t in enumerate(vmq) if t == tag)
    n = len(vmq) - 1 - idx
    assert n <= 63, n
    E(f"s_waitcnt vmcnt({n})")

def srd(dst, plo, off_s, nrec):
    E(f"s_add_u32 s{dst}, s{plo}, s{off_s}")
    E(f"s_addc_u32 s{dst+1}, s{plo+1}, 0")
    E(f"s_and_b32 s{dst+1}, s{dst+1}, 0xffff")
    E(f"s_mov_b32 s{dst+2}, {nrec}")
    E(f"s_mov_b32 s{dst+3}, 0x00020000")

def dpp_reduce(regs):
    for ctl in ["row_shr:1", "row_shr:2", "row_shr:4", "row_shr:8"]:
        for r in regs:
            E(f"v_add_f32_dpp v{r}, v{r}, v{r} {ctl} row_mask:0xf bank_mask:0xf bound_ctrl:0")
        if len(regs) < 3: E("s_nop 1")
    for r in regs:
        E(f"v_add_f32_dpp v{r}, v{r}, v{r} row_bcast:15 row_mask:0xa bank_mask:0xf")
    if len(regs) < 3: E("s_nop 1")
    for r in regs:
        E(f"v_add_f32_dpp v{r}, v{r}, v{r} row_bcast:31 row_mask:0xc bank_mask:0xf")

def expand(dup, dst):
    for w in range(4):
        E(f"v_and_b32 v{dst+w}, v{dup}, v{vM[w]}")

def mfma(d, a, b, c):
    E(f"v_mfma_f32_16x16x32_bf16 {vr(d)}, {vr(a)}, {vr(b)}, {'0' if c is None else vr(c)}")

E("s_cmp_ge_u32 s2, 256")
E("s_cbranch_scc1 K1_END")
if opt('perm'):
    E("s_lshr_b32 s3, s2, 3")
    E("s_and_b32 s2, s2, 7")
    E("s_lshl_b32 s2, s2, 5")
    E("s_or_b32 s2, s2, s3")
if ST: E("s_mov_b32 s93, s2")
stamp()
if DBG: E("s_memtime s[6:7]")
E("s_load_dwordx16 s[8:23], s[0:1], 0")
E("s_load_dwordx8 s[24:31], s[0:1], 64")
E("s_load_dwordx2 s[32:33], s[0:1], 96")
E(f"v_and_b32 v{vL}, 63, v0")
E(f"v_bfe_u32 v{vG}, v0, 4, 2")
E(f"v_and_b32 v{vJ}, 15, v0")
E(f"v_lshrrev_b32 v{vA}, 6, v0")
E("s_nop 0")
E(f"v_readfirstlane_b32 s{sW}, v{vA}")
E(f"s_and_b32 s{sXCD}, s2, 7")
E(f"s_lshr_b32 s{sIDX}, s2, 3")
E(f"s_and_b32 s{sH}, s{sIDX}, 3")
E(f"s_lshl_b32 s{sT}, s{sXCD}, 2")
E(f"s_add_u32 s{sH}, s{sH}, s{sT}")
E(f"s_lshr_b32 s{sC}, s{sIDX}, 2")
E(f"s_lshl_b32 s{sROW}, s{sH}, 3")
E(f"s_add_u32 s{sROW}, s{sROW}, s{sC}")
sROT = 84
if opt('norot'):
    E(f"s_mov_b32 s{sROT}, 0")
else:
    E(f"s_mul_i32 s{sROT}, s{sH}, 5")
    E(f"s_mul_i32 s{sT}, s{sC}, 3")
    E(f"s_add_u32 s{sROT}, s{sROT}, s{sT}")
    if opt('rotw'): E(f"s_add_u32 s{sROT}, s{sROT}, s{sW}")
    E(f"s_and_b32 s{sROT}, s{sROT}, 7")
E("s_mov_b32 s3, 0x40003")
E(f"s_mov_b32 s{sHF}, 0xFF00FF00")
E(f"s_mov_b32 s{sHF+1}, 0xFF00FF00")
E(f"s_mov_b32 s{sV2}, 0x00FF00FF")
E(f"s_mov_b32 s{sV2+1}, 0xFF00FF00")
E(f"s_mov_b32 s{sSC}, 0x{f32bits(SCALE_LOG2E):08x}")
t0, t1, t2, t3 = vA, vA+1, vA+2, vA+3
E(f"v_and_b32 v{t0}, 1, v{vJ}")
E(f"v_lshlrev_b32 v{t0}, 4, v{t0}")
E(f"v_mov_b32 v{t1}, 0xffff")
E(f"v_lshlrev_b32 v{t1}, v{t0}, v{t1}")
E(f"v_bfe_u32 v{t2}, v{vJ}, 1, 2")
for w in range(4):
    E(f"v_cmp_eq_u32 vcc, {w}, v{t2}")
    E("s_nop 1")
    E(f"v_cndmask_b32 v{vM[w]}, 0, v{t1}, vcc")
vHF, vGH, vJ7 = vA, vA+1, vA+2
E(f"v_lshrrev_b32 v{vHF}, 3, v{vJ}")
E(f"v_lshl_add_u32 v{vGH}, v{vHF}, 2, v{vG}")
E(f"v_and_b32 v{vJ7}, 7, v{vJ}")
oWA, oWA2, oWB, oG, oX, oKa, oKb, oGX = 32, 33, 34, 35, 36, 38, 39, 37
E(f"v_mul_u32_u24 v{oWA}, 12288, v{vG}")
E(f"v_lshl_add_u32 v{oWA}, v{vJ}, 4, v{oWA}")
E(f"v_add_u32 v{oWA2}, 49152, v{oWA}")
E(f"v_mul_u32_u24 v{oWB}, 12288, v{vGH}")
E(f"v_lshl_add_u32 v{oWB}, v{vJ7}, 4, v{oWB}")
E(f"v_add_u32 v{oWB}, 256, v{oWB}")
E(f"v_mul_u32_u24 v{oG}, 3072, v{vGH}")
E(f"v_lshl_add_u32 v{oG}, v{vJ7}, 4, v{oG}")
E(f"v_mov_b32 v{t3}, 0x40000000")
E(f"v_cmp_gt_u32 vcc, 6, v{vJ7}")
E("s_nop 1")
E(f"v_cndmask_b32 v{oG}, v{t3}, v{oG}, vcc")
E(f"v_lshlrev_b32 v{oX}, 1, v{vGH}")
E(f"v_lshlrev_b32 v{oGX}, 2, v0")
oK = [[252, 253], [254, 255]]
for Q in range(2):
    a_, b_ = oK[Q]
    E(f"v_and_b32 v{a_}, 3, v{vJ}")
    E(f"v_add_u32 v{a_}, s{sROT}, v{a_}")
    if Q: E(f"v_add_u32 v{a_}, 4, v{a_}")
    E(f"v_and_b32 v{a_}, 7, v{a_}")
    E(f"v_lshlrev_b32 v{a_}, 3, v{a_}")
    E(f"v_bfe_u32 v{t3}, v{vJ}, 2, 1")
    E(f"v_add_u32 v{a_}, v{a_}, v{t3}")
    E(f"v_mul_u32_u24 v{a_}, 384, v{a_}")
    E(f"v_lshl_add_u32 v{a_}, v{vG}, 4, v{a_}")
    E(f"v_lshlrev_b32 v{t3}, 6, v{vHF}")
    E(f"v_sub_u32 v{b_}, v{a_}, v{t3}")
    E(f"v_add_u32 v{b_}, 64, v{b_}")
    E(f"v_add_u32 v{a_}, v{a_}, v{t3}")
E("s_waitcnt lgkmcnt(0)")
if DBG: E("s_mov_b32 s95, s6")
E(f"s_load_dwordx2 s[{sTAG}:{sTAG+1}], s[32:33], 0")
E(f"s_mul_i32 s{sT}, s{sH}, 12582912")
E(f"s_mul_i32 s{sOFF}, s{sC}, 196608")
E(f"s_add_u32 s{sT}, s{sT}, s{sOFF}")
E(f"s_mul_i32 s{sOFF}, s{sW}, 24576")
E(f"s_add_u32 s{sT}, s{sT}, s{sOFF}")
E(f"s_add_u32 s{sT}, s{sT}, 11010048")
srd(sK, 10, sT, 24576)
srd(sV, 12, sT, 24576)
E(f"s_mul_i32 s{sR0}, s{sC}, 80")
E(f"s_lshl_b32 s{sOFF}, s{sW}, 3")
E(f"s_add_u32 s{sR0}, s{sR0}, s{sOFF}")
E(f"s_mul_i32 s{sT}, s{sR0}, 12288")
E(f"s_mul_i32 s{sOFF}, s{sH}, 384")
E(f"s_add_u32 s{sT}, s{sT}, s{sOFF}")
srd(sWQ, 14, sT, 72 * 12288)
E(f"s_mul_i32 s{sT}, s{sR0}, 3072")
E(f"s_mul_i32 s{sOFF}, s{sH}, 96")
E(f"s_add_u32 s{sT}, s{sT}, s{sOFF}")
srd(sWG, 20, sT, 72 * 3072)
srd(sWU, 22, sT, 72 * 3072)
E(f"s_lshl_b32 s{sR0+1}, s{sR0}, 1")
E(f"s_mov_b32 s{sT}, 0")
srd(sX, 8, sT, 1280)
srd(sWS, 32, sT, 0x400000)
E(f"s_cmp_lt_u32 s{sW}, 2")
E(f"s_cselect_b32 s{sR0+2}, 786432, 0x40000000")
E(f"s_cselect_b32 s{sR0+3}, 196608, 0x40000000")
GOFF = [0, 2, 6, 4]
def kload(n):
    Q, gi, s = n // 12, (n // 3) % 4, n % 3
    b = vKB + n * 4
    va = oK[Q][0] if gi in (0, 2) else oK[Q][1]
    VM(f"buffer_load_dwordx4 {vr(b)}, v{va}, {sr(sK)}, 0 offen offset:{GOFF[gi]*384+s*128}{KNT}", f"K{Q}{gi}")
vX0, vX1, vGX, vGW = vA+4, vA+5, vA+6, vA+7
VM(f"buffer_load_ushort v{vX0}, v{oX}, {sr(sX)}, s{sR0+1} offen", "X")
VM(f"buffer_load_ushort v{vX1}, v{oX}, {sr(sX)}, s{sR0+1} offen offset:128", "X")
def p0reg(k, q): return vVB + 20 * k + 4 * q
VM(f"buffer_load_dwordx4 {vr(p0reg(0,0))}, v{oWA}, {sr(sWQ)}, 0 offen{WNT}", "P0")
VM(f"buffer_load_dwordx4 {vr(p0reg(0,1))}, v{oWA2}, {sr(sWQ)}, 0 offen{WNT}", "P0")
VM(f"buffer_load_dwordx4 {vr(p0reg(0,2))}, v{oWB}, {sr(sWQ)}, 0 offen{WNT}", "P0")
VM(f"buffer_load_dwordx4 {vr(p0reg(0,3))}, v{oG}, {sr(sWG)}, 0 offen{ANT}", "P0")
VM(f"buffer_load_dwordx4 {vr(p0reg(0,4))}, v{oG}, {sr(sWU)}, 0 offen{ANT}", "P0")
for o_, s_ in ((oWA, sR0+2), (oWA2, sR0+2), (oWB, sR0+2), (oG, sR0+3)):
    E(f"v_add_u32 v{o_}, s{s_}, v{o_}")
VM(f"buffer_load_dwordx4 {vr(p0reg(1,0))}, v{oWA}, {sr(sWQ)}, 0 offen{WNT}", "P1")
VM(f"buffer_load_dwordx4 {vr(p0reg(1,1))}, v{oWA2}, {sr(sWQ)}, 0 offen{WNT}", "P1")
VM(f"buffer_load_dwordx4 {vr(p0reg(1,2))}, v{oWB}, {sr(sWQ)}, 0 offen{WNT}", "P1")
VM(f"buffer_load_dwordx4 {vr(p0reg(1,3))}, v{oG}, {sr(sWG)}, 0 offen{ANT}", "P1")
VM(f"buffer_load_dwordx4 {vr(p0reg(1,4))}, v{oG}, {sr(sWU)}, 0 offen{ANT}", "P1")
E(f"s_mov_b32 s{sWO}, s26")
E(f"s_and_b32 s{sWO+1}, s27, 0xffff")
E(f"s_mov_b32 s{sWO+2}, 1280")
E(f"s_mov_b32 s{sWO+3}, 0x00020000")
VM(f"buffer_load_dword v{vGX}, v{oGX}, {sr(sX)}, 0 offen", "G")
VM(f"buffer_load_dword v{vGW}, v{oGX}, {sr(sWO)}, 0 offen", "G")
E(f"s_mul_i32 s{sT}, s{sH}, 245760")
E(f"s_mul_i32 s{sOFF}, s{sC}, 160")
E(f"s_add_u32 s{sT}, s{sT}, s{sOFF}")
srd(sWO, 16, sT, 245760 - 1120)
E(f"s_mul_i32 s{sT}, s{sH}, 61440")
E(f"s_add_u32 s{sT}, s{sT}, s{sOFF}")
srd(sWD, 24, sT, 61440 - 1120)
E(f"s_mov_b32 s{sOFF}, 12288")
for n in range(NK0): kload(n)
stamp()
vAC = 16
vBX = vQ
WAIT("X")
E(f"v_lshl_or_b32 v{vX0}, v{vX0}, 16, v{vX0}")
E(f"v_lshl_or_b32 v{vX1}, v{vX1}, 16, v{vX1}")
expand(vX0, vBX)
expand(vX1, vBX + 4)
WAIT("P0")
for q in range(5):
    mfma(vAC + 4*q, p0reg(0, q), vBX, None)
WAIT("P1")
for q in range(5):
    mfma(vAC + 4*q, p0reg(1, q), vBX + 4, vAC + 4*q)
WAIT("G")
E(f"v_lshlrev_b32 v{vX0}, 16, v{vGX}")
E(f"v_and_b32 v{vGX}, 0xffff0000, v{vGX}")
E(f"v_lshlrev_b32 v{vX1}, 16, v{vGW}")
E(f"v_and_b32 v{vGW}, 0xffff0000, v{vGW}")
E(f"v_mul_f32 v{vX0}, v{vX0}, v{vX1}")
E(f"v_fmac_f32 v{vX0}, v{vGX}, v{vGW}")
E("s_nop 1")
dpp_reduce([vX0])
a1, a2, tt = vA, vA+1, vA+2
E(f"v_lshrrev_b32 v{tt}, 3, v{vJ}")
E(f"s_lshl_b32 s{sT}, s{sW}, 1")
E(f"v_add_u32 v{tt}, s{sT}, v{tt}")
E(f"v_mul_u32_u24 v{a1}, {P0_STR}, v{tt}")
E(f"v_and_b32 v{tt}, 7, v{vJ}")
E(f"v_lshl_add_u32 v{a1}, v{tt}, 2, v{a1}")
E(f"v_and_b32 v{tt}, 1, v{vG}")
E(f"v_lshl_add_u32 v{a2}, v{tt}, 7, v{a1}")
E(f"v_lshl_add_u32 v{a1}, v{vG}, 7, v{a1}")
E(f"s_lshl_b32 s{sT}, s{sW}, 2")
E(f"v_mov_b32 v{tt}, s{sT}")
E("s_mov_b32 exec_lo, 0")
E("s_mov_b32 exec_hi, 0x80000000")
E(f"ds_write_b32 v{tt}, v{vX0} offset:{Z_OFF}")
E("s_mov_b64 exec, -1")
E("s_nop 3")
for r in range(4):
    E(f"v_cndmask_b32 v{vAC+r}, v{vAC+r}, v{vAC+4+r}, s[{sHF}:{sHF+1}]")
for r in range(4):
    E(f"ds_write_b32 v{a1}, v{vAC+r} offset:{P0_OFF + r*32}")
E(f"s_mov_b64 exec, s[{sV2}:{sV2+1}]")
for q in range(3):
    for r in range(4):
        E(f"ds_write_b32 v{a2}, v{vAC+8+4*q+r} offset:{P0_OFF + 512 + 256*q + r*32}")
E("s_mov_b64 exec, -1")
E("s_waitcnt lgkmcnt(0)")
E("s_barrier")
stamp()
E(f"s_add_u32 s{sTAG}, s{sTAG}, 1")
E(f"s_addc_u32 s{sTAG+1}, s{sTAG+1}, 0")
E(f"s_cmp_ge_u32 s{sW}, 3")
E("s_cbranch_scc1 K1_PUB0_DONE")
E("v_cmp_gt_u32 vcc, 144, v0")
E(f"s_and_saveexec_b64 s[{sE}:{sE+1}], vcc")
E(f"v_lshlrev_b32 v{vA}, 3, v0")
E(f"v_add_u32 v{vA+1}, 64, v{vA}")
E("v_cmp_gt_u32 vcc, 120, v0")
E("s_nop 1")
E(f"v_cndmask_b32 v{vA}, v{vA+1}, v{vA}, vcc")
vR = vQ - 36
for s in range(16):
    E(f"ds_read_b64 v[{vR+2*s}:{vR+2*s+1}], v{vA} offset:{P0_OFF + s*P0_STR}")
E("s_waitcnt lgkmcnt(0)")
for st in (8, 4, 2, 1):
    for s in range(st):
        for q in range(2):
            E(f"v_add_f32 v{vR+2*s+q}, v{vR+2*s+q}, v{vR+2*(s+st)+q}")
E(f"v_mov_b32 v{vR+2}, s{sTAG}")
E(f"v_mov_b32 v{vR+3}, s{sTAG+1}")
E(f"v_lshlrev_b32 v{vA}, 4, v0")
E(f"s_mul_i32 s{sT}, s{sROW}, 2304")
E(f"s_add_u32 s{sT}, s{sT}, {WS_G0}")
E(f"buffer_store_dwordx4 {vr(vR)}, v{vA}, {sr(sWS)}, s{sT} offen sc1")
E(f"s_mov_b64 exec, s[{sE}:{sE+1}]")
E("s_nop 1")
L("K1_PUB0_DONE:")
for n in range(NK0, 24): kload(n)
vGa = vR
E(f"s_mul_i32 s{sT}, s{sW}, 288")
E(f"v_lshlrev_b32 v{vA}, 4, v{vL}")
E(f"v_add_u32 v{vA}, s{sT}, v{vA}")
E(f"s_mul_i32 s{sR0}, s{sH}, {8*2304}")
E(f"s_add_u32 s{sR0}, s{sR0}, {WS_G0}")
E("s_mov_b64 exec, 0x3ffff")
def gather_q():
    for p in range(8):
        E(f"s_add_u32 s{sT}, s{sR0}, {p*2304}")
        VM(f"buffer_load_dwordx4 {vr(vGa+4*p)}, v{vA}, {sr(sWS)}, s{sT} offen sc1", "GQ")
gather_q()
E("s_mov_b64 exec, -1")
oVA, oVB = 38, 39
E(f"v_mul_u32_u24 v{oVA}, 384, v{vG}")
E(f"v_lshl_add_u32 v{oVA}, v{vJ}, 4, v{oVA}")
E(f"v_lshrrev_b32 v{vA+1}, 3, v{vJ}")
E(f"v_lshl_add_u32 v{vA+1}, v{vA+1}, 2, v{vG}")
E(f"v_mul_u32_u24 v{oVB}, 384, v{vA+1}")
E(f"v_and_b32 v{vA+1}, 7, v{vJ}")
E(f"v_lshl_add_u32 v{oVB}, v{vA+1}, 4, v{oVB}")
E(f"v_add_u32 v{oVB}, 256, v{oVB}")
def vload(n):
    k, q = n // 3, n % 3
    b = vVB + 12 * k + 4 * q
    if q == 0 or n == NV1:
        E(f"s_add_u32 s{sOFF}, s{sROT}, {k}")
        E(f"s_and_b32 s{sOFF}, s{sOFF}, 7")
        E(f"s_mul_i32 s{sOFF}, s{sOFF}, 3072")
    if q < 2:
        VM(f"buffer_load_dwordx4 {vr(b)}, v{oVA}, {sr(sV)}, s{sOFF} offen offset:{q*1536}{VNT}", f"V{k}")
    else:
        VM(f"buffer_load_dwordx4 {vr(b)}, v{oVB}, {sr(sV)}, s{sOFF} offen{VNT}", f"V{k}")
for n in range(NV1): vload(n)
stamp()
WAIT("GQ")
E("s_mov_b64 exec, 0x3ffff")
L("K1_GQ_CHECK:")
E(f"s_mov_b64 s[{sBAD}:{sBAD+1}], 0")
for p in range(8):
    E(f"v_cmp_ne_u64 vcc, s[{sTAG}:{sTAG+1}], v[{vGa+4*p+2}:{vGa+4*p+3}]")
    E(f"s_or_b64 s[{sBAD}:{sBAD+1}], s[{sBAD}:{sBAD+1}], vcc")
E(f"s_cmp_eq_u64 s[{sBAD}:{sBAD+1}], 0")
E("s_cbranch_scc1 K1_GQ_OK")
E("s_sub_u32 s3, s3, 1")
E("s_cbranch_scc1 K1_GQ_OK")
E("s_sleep 2")
sv = list(vmq)
gather_q()
vmq[:] = sv
E("s_waitcnt vmcnt(0)")
E("s_branch K1_GQ_CHECK")
L("K1_GQ_OK:")
for p in range(1, 8):
    E(f"v_add_f32 v{vGa}, v{vGa}, v{vGa+4*p}")
    E(f"v_add_f32 v{vGa+1}, v{vGa+1}, v{vGa+4*p+1}")
E(f"s_mul_i32 s{sT}, s{sW}, 18")
E(f"v_add_u32 v{vA}, s{sT}, v{vL}")
E(f"v_cvt_pk_bf16_f32 v{vA+1}, v{vGa}, v{vGa+1}")
E(f"v_lshlrev_b32 v{vA+2}, 2, v{vA}")
E(f"v_lshlrev_b32 v{vA+3}, 3, v{vA}")
E(f"v_cmp_gt_u32 vcc, 96, v{vA}")
E(f"s_and_saveexec_b64 s[{sE}:{sE+1}], vcc")
E(f"ds_write_b32 v{vA+2}, v{vA+1} offset:{QBF_OFF}")
E(f"s_andn2_b64 exec, s[{sE}:{sE+1}], vcc")
E(f"ds_write_b64 v{vA+3}, v[{vGa}:{vGa+1}] offset:{GU_OFF - 96*8}")
E("s_mov_b64 exec, -1")
E("s_waitcnt lgkmcnt(0)")
E("s_barrier")
stamp()
E(f"v_lshrrev_b32 v{vA+1}, 3, v{vJ}")
E(f"v_lshlrev_b32 v{vA+1}, 6, v{vA+1}")
E(f"v_lshl_add_u32 v{vA}, v{vG}, 4, v{vA+1}")
for s in range(3):
    E(f"ds_read_b128 {vr(vQ+4*s)}, v{vA} offset:{QBF_OFF + 128*s}")
E(f"v_xor_b32 v{vA+2}, 40, v{vL}")
E(f"v_lshlrev_b32 v{vA+2}, 2, v{vA+2}")
E("s_waitcnt lgkmcnt(0)")
vS = 16
vD = 16
vF = vQ + 12
for Q in range(2):
    for gi in range(4):
        WAIT(f"K{Q}{gi}")
        for s in range(3):
            b = vKB + ((Q * 4 + gi) * 3 + s) * 4
            mfma(vD + 4*gi, b, vQ + 4*s, None if s == 0 else vD + 4*gi)
    E("s_nop 7")
    for r in range(4):
        a, b_, c_, d = vD + r, vD + 4 + r, vD + 8 + r, vD + 12 + r
        u1, u2 = vA + 4, vA + 5
        E(f"v_cndmask_b32 v{u1}, v{b_}, v{a}, s[{sV2}:{sV2+1}]")
        E(f"v_cndmask_b32 v{u2}, v{d}, v{c_}, s[{sV2}:{sV2+1}]")
        E(f"v_cndmask_b32 v{vF+4*Q+r}, v{u1}, v{u2}, s[{sHF}:{sHF+1}]")
        E(f"v_cndmask_b32 v{a}, v{u2}, v{u1}, s[{sHF}:{sHF+1}]")
    for r in range(4):
        E(f"ds_bpermute_b32 v{vD+4+r}, v{vA+2}, v{vD+r}")
    E("s_waitcnt lgkmcnt(0)")
    for r in range(4):
        E(f"v_add_f32 v{vF+4*Q+r}, v{vF+4*Q+r}, v{vD+4+r}")
for r in range(8):
    E(f"v_mov_b32 v{vS+r}, v{vF+r}")
stamp()
for n in range(NV1, 24): vload(n)
oWO = vA
E(f"v_mul_u32_u24 v{oWO}, 1280, v{vG}")
E(f"v_lshl_add_u32 v{oWO}, v{vJ}, 4, v{oWO}")
E(f"v_mov_b32 v{vA+1}, 0x40000000")
E(f"v_cmp_gt_u32 vcc, 10, v{vJ}")
E("s_nop 1")
E(f"v_cndmask_b32 v{oWO}, v{vA+1}, v{oWO}, vcc")
E(f"s_mul_i32 s{sOFF}, s{sW}, 10240")
for k in range(3):
    E(f"s_add_u32 s{sT}, s{sOFF}, {k*81920}")
    VM(f"buffer_load_dwordx4 {vr(vKB+8*k)}, v{oWO}, {sr(sWO)}, s{sT} offen{ANT}", "WO")
    E(f"s_add_u32 s{sT}, s{sOFF}, {k*81920 + 5120}")
    VM(f"buffer_load_dwordx4 {vr(vKB+8*k+4)}, v{oWO}, {sr(sWO)}, s{sT} offen{ANT}", "WO")
E(f"s_cmp_lt_u32 s{sW}, 6")
E(f"s_cselect_b32 s{sT}, 0, 0x40000000")
E(f"v_add_u32 v{vA+1}, s{sT}, v{oWO}")
E(f"v_or_b32 v{vA+1}, v{vA+1}, v{oWO}")
VM(f"buffer_load_dwordx4 {vr(vKB+24)}, v{vA+1}, {sr(sWD)}, s{sOFF} offen{ANT}", "WO")
E(f"s_add_u32 s{sT}, s{sOFF}, 5120")
VM(f"buffer_load_dwordx4 {vr(vKB+28)}, v{vA+1}, {sr(sWD)}, s{sT} offen{ANT}", "WO")
t = vA + 1
E(f"v_max3_f32 v{t}, v{vS}, v{vS+1}, v{vS+2}")
E(f"v_max3_f32 v{t}, v{t}, v{vS+3}, v{vS+4}")
E(f"v_max3_f32 v{t}, v{t}, v{vS+5}, v{vS+6}")
E(f"v_max_f32 v{t}, v{t}, v{vS+7}")
E("s_nop 1")
E(f"v_max_f32_dpp v{t}, v{t}, v{t} row_ror:8 row_mask:0xf bank_mask:0xf")
E("s_nop 1")
for q in range(4):
    E(f"v_readlane_b32 s{sR0+q}, v{t}, {16*q}")
E("s_nop 1")
E(f"v_mov_b32 v{t}, s{sR0}")
E(f"v_max_f32 v{t}, s{sR0+1}, v{t}")
E(f"v_max_f32 v{t}, s{sR0+2}, v{t}")
E(f"v_max_f32 v{t}, s{sR0+3}, v{t}")
E(f"s_lshl_b32 s{sT}, s{sW}, 2")
E(f"v_mov_b32 v{t+1}, s{sT}")
E(f"ds_write_b32 v{t+1}, v{t} offset:{ST_OFF}")
E(f"v_mul_f32 v{t}, s{sSC}, v{t}")
for r in range(8):
    E(f"v_fma_f32 v{vS+r}, v{vS+r}, s{sSC}, -v{t}")
for r in range(8):
    E(f"v_exp_f32 v{vS+r}, v{vS+r}")
E("s_nop 0")
t2 = vA + 3
E(f"v_add_f32 v{t2}, v{vS}, v{vS+1}")
for r in range(2, 8):
    E(f"v_add_f32 v{t2}, v{t2}, v{vS+r}")
E("s_nop 1")
E(f"v_add_f32_dpp v{t2}, v{t2}, v{t2} row_ror:8 row_mask:0xf bank_mask:0xf")
E("s_nop 1")
for q in range(4):
    E(f"v_readlane_b32 s{sR0+q}, v{t2}, {16*q}")
E("s_nop 1")
E(f"v_mov_b32 v{t2}, s{sR0}")
E(f"v_add_f32 v{t2}, s{sR0+1}, v{t2}")
E(f"v_add_f32 v{t2}, s{sR0+2}, v{t2}")
E(f"v_add_f32 v{t2}, s{sR0+3}, v{t2}")
E(f"ds_write_b32 v{t+1}, v{t2} offset:{ST_OFF+32}")
for r in range(8):
    E(f"v_cvt_pk_bf16_f32 v{vS+r}, v{vS+r}, v{vS+r}")
E("s_waitcnt lgkmcnt(0)")
stamp()
vPA = vS + 8
vBP = vA
for k in range(8):
    expand(vS + k, vBP)
    WAIT(f"V{k}")
    E("s_nop 0")
    b = vVB + 12 * k
    for q in range(3):
        mfma(vPA + 4*q, b + 4*q, vBP, None if k == 0 else vPA + 4*q)
stamp()
a1, a2, tt = vS, vS+1, vS+2
E(f"v_lshrrev_b32 v{tt}, 3, v{vJ}")
E(f"s_lshl_b32 s{sT}, s{sW}, 1")
E(f"v_add_u32 v{tt}, s{sT}, v{tt}")
E(f"v_mul_u32_u24 v{a1}, {P2_STR}, v{tt}")
E(f"v_and_b32 v{tt}, 7, v{vJ}")
E(f"v_lshl_add_u32 v{a1}, v{tt}, 2, v{a1}")
E(f"v_and_b32 v{tt}, 1, v{vG}")
E(f"v_lshl_add_u32 v{a2}, v{tt}, 7, v{a1}")
E(f"v_lshl_add_u32 v{a1}, v{vG}, 7, v{a1}")
E("s_nop 7")
for r in range(4):
    E(f"v_cndmask_b32 v{vPA+r}, v{vPA+r}, v{vPA+4+r}, s[{sHF}:{sHF+1}]")
for r in range(4):
    E(f"ds_write_b32 v{a1}, v{vPA+r} offset:{P2_OFF + r*32}")
E(f"s_mov_b64 exec, s[{sV2}:{sV2+1}]")
for r in range(4):
    E(f"ds_write_b32 v{a2}, v{vPA+8+r} offset:{P2_OFF + 512 + r*32}")
E("s_mov_b64 exec, -1")
E("s_waitcnt lgkmcnt(0)")
E("s_barrier")
stamp()
vT = vVB
E(f"v_mov_b32 v{vT+1}, 0")
for w in range(5):
    E(f"ds_read_b32 v{vT+60+w}, v{vT+1} offset:{Z_OFF + 4*w}")
E(f"s_cmp_ge_u32 s{sW}, 3")
E("s_cbranch_scc1 K1_T_WAIT")
E(f"s_cmp_eq_u32 s{sW}, 2")
E("s_cbranch_scc1 K1_T_H")
E(f"v_lshlrev_b32 v{vT}, 3, v0")
E(f"ds_read_b128 {vr(vT+4)}, v{vT+1} offset:{ST_OFF}")
E(f"ds_read_b128 {vr(vT+8)}, v{vT+1} offset:{ST_OFF+16}")
E(f"ds_read_b128 {vr(vT+12)}, v{vT+1} offset:{ST_OFF+32}")
E(f"ds_read_b128 {vr(vT+16)}, v{vT+1} offset:{ST_OFF+48}")
for s in range(16):
    E(f"ds_read_b64 v[{vT+20+2*s}:{vT+21+2*s}], v{vT} offset:{P2_OFF + s*P2_STR}")
E("s_waitcnt lgkmcnt(0)")
mm, ll = vT + 2, vT + 3
E(f"v_max3_f32 v{mm}, v{vT+4}, v{vT+5}, v{vT+6}")
E(f"v_max3_f32 v{mm}, v{mm}, v{vT+7}, v{vT+8}")
E(f"v_max3_f32 v{mm}, v{mm}, v{vT+9}, v{vT+10}")
E(f"v_max_f32 v{mm}, v{mm}, v{vT+11}")
for w in range(8):
    E(f"v_sub_f32 v{vT+4+w}, v{vT+4+w}, v{mm}")
for w in range(8):
    E(f"v_mul_f32 v{vT+4+w}, s{sSC}, v{vT+4+w}")
for w in range(8):
    E(f"v_exp_f32 v{vT+4+w}, v{vT+4+w}")
E("s_nop 0")
E(f"v_mul_f32 v{ll}, v{vT+4}, v{vT+12}")
for w in range(1, 8):
    E(f"v_fmac_f32 v{ll}, v{vT+4+w}, v{vT+12+w}")
for w in range(8):
    for q in range(2):
        E(f"v_add_f32 v{vT+20+4*w+q}, v{vT+20+4*w+q}, v{vT+22+4*w+q}")
vO = vT + 52
for q in range(2):
    E(f"v_mul_f32 v{vO+q}, v{vT+4}, v{vT+20+q}")
    for w in range(1, 8):
        E(f"v_fmac_f32 v{vO+q}, v{vT+4+w}, v{vT+20+4*w+q}")
E("v_cmp_eq_u32 vcc, 96, v0")
E(f"v_lshlrev_b32 v{vT+56}, 4, v0")
E(f"v_add_u32 v{vT+56}, 16, v{vT+56}")
E(f"v_cndmask_b32 v{vO}, v{vO}, v{mm}, vcc")
E(f"v_cndmask_b32 v{vO+1}, v{vO+1}, v{ll}, vcc")
E(f"v_cndmask_b32 v{vT+57}, v{vT+56}, 0, vcc")
E(f"v_mov_b32 v{vO+2}, s{sTAG}")
E(f"v_mov_b32 v{vO+3}, s{sTAG+1}")
E(f"s_lshl_b32 s{sT}, s{sROW}, 11")
E(f"s_add_u32 s{sT}, s{sT}, {WS_G2}")
E("v_cmp_gt_u32 vcc, 97, v0")
E(f"s_and_saveexec_b64 s[{sE}:{sE+1}], vcc")
E(f"s_add_u32 s{sOFF}, s{sT}, {WS_G2A - WS_G2}")
E(f"buffer_store_dwordx4 {vr(vO)}, v{vT+57}, {sr(sWS)}, s{sOFF} offen")
E(f"buffer_store_dwordx4 {vr(vO)}, v{vT+57}, {sr(sWS)}, s{sT} offen sc1")
E(f"s_mov_b64 exec, s[{sE}:{sE+1}]")
stamp()
def calc_g(dst, z):
    for w in range(1, 5):
        E(f"v_add_f32 v{z}, v{z}, v{z+w}")
    E(f"v_mul_f32 v{dst}, 0xbfb8aa3b, v{z}")
    E(f"v_exp_f32 v{dst}, v{dst}")
    E("s_nop 0")
    E(f"v_add_f32 v{dst}, 1.0, v{dst}")
    E(f"v_rcp_f32 v{dst}, v{dst}")
    E("s_nop 0")
vGg = vT + 58
calc_g(vGg, vT + 60)
E(f"s_lshl_b32 s{sR0}, s{sH}, 14")
E(f"s_add_u32 s{sR0}, s{sR0}, {WS_G2}")
vGo = vKB + 32
sm = vGo + 32
E(f"v_min_u32 v{vT+56}, {96*16}, v{vT+56}")
E(f"v_and_b32 v{vT+59}, 7, v{vL}")
E(f"v_lshlrev_b32 v{vT+59}, 11, v{vT+59}")
L("K1_GO_LOOP:")
E("s_and_b32 s92, s3, 3")
E("s_cmp_eq_u32 s92, 0")
E(f"s_cselect_b32 s92, 0, {WS_G2A - WS_G2}")
E(f"s_add_u32 s92, s92, s{sR0}")
E(f"buffer_load_dwordx4 {vr(sm)}, v{vT+59}, {sr(sWS)}, s92 offen sc1")
for p in range(8):
    E(f"buffer_load_dwordx4 {vr(vGo+4*p)}, v{vT+56}, {sr(sWS)}, s92 offen offset:{(p*2048) % 4096} sc1" if p < 2 else
      f"buffer_load_dwordx4 {vr(vGo+4*p)}, v{vT+56}, {sr(sWS)}, s91 offen offset:{(p*2048) % 4096} sc1")
    if p % 2 == 1 and p < 7:
        E(f"s_add_u32 s91, s92, {(p+1)*2048}")
E("s_waitcnt vmcnt(0)")
E(f"s_mov_b64 s[{sBAD}:{sBAD+1}], 0")
for p in range(9):
    E(f"v_cmp_ne_u64 vcc, s[{sTAG}:{sTAG+1}], v[{vGo+4*p+2}:{vGo+4*p+3}]")
    E(f"s_or_b64 s[{sBAD}:{sBAD+1}], s[{sBAD}:{sBAD+1}], vcc")
E(f"s_cmp_eq_u64 s[{sBAD}:{sBAD+1}], 0")
E("s_cbranch_scc1 K1_GO_OK")
E("s_sub_u32 s3, s3, 1")
E("s_cbranch_scc1 K1_GO_OK")
E("s_branch K1_GO_LOOP")
L("K1_GO_OK:")
stamp()
E(f"v_max_f32_dpp v{mm}, v{sm}, v{sm} quad_perm:[1,0,3,2] row_mask:0xf bank_mask:0xf")
E("s_nop 1")
E(f"v_max_f32_dpp v{mm}, v{mm}, v{mm} quad_perm:[2,3,0,1] row_mask:0xf bank_mask:0xf")
E("s_nop 1")
E(f"v_max_f32_dpp v{mm}, v{mm}, v{mm} row_half_mirror row_mask:0xf bank_mask:0xf")
E("s_nop 0")
E(f"v_sub_f32 v{sm}, v{sm}, v{mm}")
E(f"v_mul_f32 v{sm}, s{sSC}, v{sm}")
E(f"v_exp_f32 v{sm}, v{sm}")
E("s_nop 0")
E(f"v_mul_f32 v{ll}, v{sm}, v{sm+1}")
E("s_nop 1")
E(f"v_add_f32_dpp v{ll}, v{ll}, v{ll} quad_perm:[1,0,3,2] row_mask:0xf bank_mask:0xf")
E("s_nop 1")
E(f"v_add_f32_dpp v{ll}, v{ll}, v{ll} quad_perm:[2,3,0,1] row_mask:0xf bank_mask:0xf")
E("s_nop 1")
E(f"v_add_f32_dpp v{ll}, v{ll}, v{ll} row_half_mirror row_mask:0xf bank_mask:0xf")
for p in range(8):
    E(f"v_readlane_b32 s{40+p}, v{sm}, {p}")
E(f"v_rcp_f32 v{ll}, v{ll}")
for q in range(2):
    E(f"v_mul_f32 v{vO+q}, s40, v{vGo+q}")
    for p in range(1, 8):
        E(f"v_fmac_f32 v{vO+q}, s{40+p}, v{vGo+4*p+q}")
E(f"v_mul_f32 v{ll}, v{ll}, v{vGg}")
E(f"v_mul_f32 v{vO}, v{vO}, v{ll}")
E(f"v_mul_f32 v{vO+1}, v{vO+1}, v{ll}")
E("v_cmp_gt_u32 vcc, 96, v0")
E(f"s_and_saveexec_b64 s[{sE}:{sE+1}], vcc")
E(f"v_cvt_pk_bf16_f32 v{vO}, v{vO}, v{vO+1}")
E(f"v_lshlrev_b32 v{vT}, 2, v0")
E(f"ds_write_b32 v{vT}, v{vO} offset:{OBF_OFF}")
E(f"s_mov_b64 exec, s[{sE}:{sE+1}]")
E("s_branch K1_T_WAIT")
L("K1_T_H:")
E(f"v_lshlrev_b32 v{vT}, 3, v{vL}")
E(f"ds_read_b64 v[{vT+4}:{vT+5}], v{vT} offset:{GU_OFF}")
E(f"ds_read_b64 v[{vT+6}:{vT+7}], v{vT} offset:{GU_OFF + 192}")
E("s_waitcnt lgkmcnt(0)")
calc_g(vGg, vT + 60)
E(f"v_sub_f32 v{vGg}, 1.0, v{vGg}")
E(f"v_cvt_pk_bf16_f32 v{vT+4}, v{vT+4}, v{vT+5}")
E(f"v_cvt_pk_bf16_f32 v{vT+6}, v{vT+6}, v{vT+7}")
E(f"v_lshlrev_b32 v{vT+8}, 16, v{vT+4}")
E(f"v_and_b32 v{vT+9}, 0xffff0000, v{vT+4}")
E(f"v_lshlrev_b32 v{vT+10}, 16, v{vT+6}")
E(f"v_and_b32 v{vT+11}, 0xffff0000, v{vT+6}")
E(f"v_max_f32 v{vT+8}, 0, v{vT+8}")
E(f"v_max_f32 v{vT+9}, 0, v{vT+9}")
E(f"v_mul_f32 v{vT+8}, v{vT+8}, v{vT+10}")
E(f"v_mul_f32 v{vT+9}, v{vT+9}, v{vT+11}")
E(f"v_cvt_pk_bf16_f32 v{vT+8}, v{vT+8}, v{vT+9}")
E(f"v_lshlrev_b32 v{vT+10}, 16, v{vT+8}")
E(f"v_and_b32 v{vT+11}, 0xffff0000, v{vT+8}")
E(f"v_mul_f32 v{vT+10}, v{vT+10}, v{vGg}")
E(f"v_mul_f32 v{vT+11}, v{vT+11}, v{vGg}")
E(f"v_cvt_pk_bf16_f32 v{vT+8}, v{vT+10}, v{vT+11}")
E(f"v_cmp_gt_u32 vcc, 24, v{vL}")
E("s_nop 1")
E(f"v_cndmask_b32 v{vT+8}, 0, v{vT+8}, vcc")
E(f"v_lshlrev_b32 v{vT}, 2, v{vL}")
E("s_mov_b64 exec, 0xffffffff")
E(f"ds_write_b32 v{vT}, v{vT+8} offset:{OBF_OFF + 384}")
E("s_mov_b64 exec, -1")
L("K1_T_WAIT:")
E("s_waitcnt lgkmcnt(0)")
E("s_barrier")
stamp()
vB = vT + 4
E(f"v_lshrrev_b32 v{vT}, 3, v{vJ}")
E(f"v_lshl_add_u32 v{vT}, v{vT}, 2, v{vG}")
E(f"v_lshlrev_b32 v{vT}, 1, v{vT}")
E(f"s_lshl_b32 s{sT}, s{sW}, 4")
E(f"v_add_u32 v{vT}, s{sT}, v{vT}")
for k in range(4):
    E(f"ds_read_u16 v{vT+20+k}, v{vT} offset:{OBF_OFF + 128*k}")
E("s_waitcnt lgkmcnt(0)")
for k in range(4):
    E(f"v_lshl_or_b32 v{vT+20+k}, v{vT+20+k}, 16, v{vT+20+k}")
for k in range(4):
    expand(vT + 20 + k, vB + 4*k)
E("s_waitcnt vmcnt(0)")
vY = vT + 24
for k in range(4):
    mfma(vY, vKB + 8*k, vB + 4*k, None if k == 0 else vY)
    mfma(vY + 4, vKB + 8*k + 4, vB + 4*k, None if k == 0 else vY + 4)
E(f"v_lshrrev_b32 v{vT+1}, 3, v{vJ}")
E(f"s_lshl_b32 s{sT}, s{sW}, 1")
E(f"v_add_u32 v{vT+1}, s{sT}, v{vT+1}")
E(f"v_mul_u32_u24 v{vT}, {Y_STR}, v{vT+1}")
E(f"v_and_b32 v{vT+1}, 7, v{vJ}")
E(f"v_lshl_add_u32 v{vT}, v{vT+1}, 2, v{vT}")
E(f"v_lshl_add_u32 v{vT}, v{vG}, 7, v{vT}")
E("s_nop 7")
for r in range(4):
    E(f"v_cndmask_b32 v{vY+r}, v{vY+r}, v{vY+4+r}, s[{sHF}:{sHF+1}]")
for r in range(4):
    E(f"ds_write_b32 v{vT}, v{vY+r} offset:{Y_OFF + r*32}")
E("s_waitcnt lgkmcnt(0)")
E("s_barrier")
E(f"s_cmp_lg_u32 s{sW}, 0")
E("s_cbranch_scc1 K1_PUB3_DONE")
E("s_mov_b32 exec_lo, -1")
E("s_mov_b32 exec_hi, 0xff")
E(f"v_lshlrev_b32 v{vT}, 3, v0")
for s in range(16):
    E(f"ds_read_b64 v[{vT+4+2*s}:{vT+5+2*s}], v{vT} offset:{Y_OFF + s*Y_STR}")
E("s_waitcnt lgkmcnt(0)")
for st in (8, 4, 2, 1):
    for s in range(st):
        for q in range(2):
            E(f"v_add_f32 v{vT+4+2*s+q}, v{vT+4+2*s+q}, v{vT+4+2*(s+st)+q}")
E(f"v_mov_b32 v{vT+6}, s{sTAG}")
E(f"v_mov_b32 v{vT+7}, s{sTAG+1}")
E(f"v_lshlrev_b32 v{vT}, 4, v0")
E(f"s_lshl_b32 s{sT}, s{sC}, 5")
E(f"s_add_u32 s{sT}, s{sT}, s{sH}")
E(f"s_mul_i32 s{sT}, s{sT}, 640")
E(f"s_add_u32 s{sT}, s{sT}, {WS_G3}")
E(f"buffer_store_dwordx4 {vr(vT+4)}, v{vT}, {sr(sWS)}, s{sT} offen sc1")
E("s_mov_b64 exec, -1")
L("K1_PUB3_DONE:")
stamp()
E(f"s_lshl_b32 s{sT}, s{sC}, 2")
E(f"s_cmp_lg_u32 s{sT}, s{sH}")
E("s_cbranch_scc1 K1_STAMPS")
E(f"s_lshl_b32 s{sR0}, s{sC}, 5")
E(f"s_lshl_b32 s{sT}, s{sW}, 2")
E(f"s_add_u32 s{sR0}, s{sR0}, s{sT}")
E(f"s_mul_i32 s{sR0}, s{sR0}, 640")
E(f"s_add_u32 s{sR0}, s{sR0}, {WS_G3}")
E(f"v_lshlrev_b32 v{vT}, 4, v{vL}")
E("s_mov_b32 exec_lo, -1")
E("s_mov_b32 exec_hi, 0xff")
L("K1_GF_LOOP:")
for p in range(4):
    E(f"buffer_load_dwordx4 {vr(vT+4+4*p)}, v{vT}, {sr(sWS)}, s{sR0} offen offset:{640*p} sc1")
E("s_waitcnt vmcnt(0)")
E(f"s_mov_b64 s[{sBAD}:{sBAD+1}], 0")
for p in range(4):
    E(f"v_cmp_ne_u64 vcc, s[{sTAG}:{sTAG+1}], v[{vT+4+4*p+2}:{vT+4+4*p+3}]")
    E(f"s_or_b64 s[{sBAD}:{sBAD+1}], s[{sBAD}:{sBAD+1}], vcc")
E(f"s_cmp_eq_u64 s[{sBAD}:{sBAD+1}], 0")
E("s_cbranch_scc1 K1_GF_OK")
E("s_sub_u32 s3, s3, 1")
E("s_cbranch_scc1 K1_GF_OK")
E("s_sleep 1")
E("s_branch K1_GF_LOOP")
L("K1_GF_OK:")
for p in range(1, 4):
    E(f"v_add_f32 v{vT+4}, v{vT+4}, v{vT+4+4*p}")
    E(f"v_add_f32 v{vT+5}, v{vT+5}, v{vT+5+4*p}")
E(f"v_lshlrev_b32 v{vT}, 3, v{vL}")
E(f"s_mul_i32 s{sT}, s{sW}, 320")
E(f"v_add_u32 v{vT}, s{sT}, v{vT}")
E(f"ds_write_b64 v{vT}, v[{vT+4}:{vT+5}] offset:{FR_OFF}")
E("s_mov_b64 exec, -1")
E("s_waitcnt lgkmcnt(0)")
E("s_barrier")
E(f"s_cmp_lg_u32 s{sW}, 0")
E("s_cbranch_scc1 K1_STAMPS")
E("s_mov_b32 exec_lo, -1")
E("s_mov_b32 exec_hi, 0xff")
E(f"v_lshlrev_b32 v{vT}, 3, v{vL}")
for w in range(8):
    E(f"ds_read_b64 v[{vT+4+2*w}:{vT+5+2*w}], v{vT} offset:{FR_OFF + 320*w}")
E(f"s_mov_b32 s{sWG}, s28")
E(f"s_and_b32 s{sWG+1}, s29, 0xffff")
E(f"s_mov_b32 s{sWG+2}, 1280")
E(f"s_mov_b32 s{sWG+3}, 0x00020000")
E("s_waitcnt lgkmcnt(0)")
for st in (4, 2, 1):
    for s in range(st):
        for q in range(2):
            E(f"v_add_f32 v{vT+4+2*s+q}, v{vT+4+2*s+q}, v{vT+4+2*(s+st)+q}")
E(f"v_cvt_pk_bf16_f32 v{vT+4}, v{vT+4}, v{vT+5}")
E(f"v_lshlrev_b32 v{vT}, 2, v{vL}")
E(f"s_mul_i32 s{sT}, s{sC}, 160")
E(f"buffer_store_dword v{vT+4}, v{vT}, {sr(sWG)}, s{sT} offen")
E(f"s_cmp_lg_u32 s{sC}, 0")
E("s_cbranch_scc1 K1_NOEP")
E("s_mov_b64 exec, 1")
E(f"v_mov_b32 v{vT+6}, s{sTAG}")
E(f"v_mov_b32 v{vT+7}, s{sTAG+1}")
E(f"v_mov_b32 v{vT}, 0")
E(f"buffer_store_dwordx2 v[{vT+6}:{vT+7}], v{vT}, {sr(sWS)}, 0 offen")
L("K1_NOEP:")
E("s_mov_b64 exec, -1")
L("K1_STAMPS:")
if DBG:
    E("s_mov_b64 exec, -1")
    E("s_waitcnt vmcnt(0) lgkmcnt(0)")
    E(f"s_cmp_lg_u32 s{sW}, 0")
    E("s_cbranch_scc1 K1_END")
    E("s_cmp_lg_u32 s93, 0")
    E("s_cbranch_scc1 K1_END")
    E("s_memrealtime s[2:3]")
    E("s_memtime s[6:7]")
    E("s_waitcnt lgkmcnt(0)")
    E("s_sub_u32 s6, s6, s95")
    E("s_sub_u32 s2, s2, s94")
    E("v_mov_b32 v10, 0")
    E("v_writelane_b32 v10, s6, 0")
    E("v_writelane_b32 v10, s2, 1")
    for i in range(1, stamp_n[0]):
        r = stamp_regs[i]
        E(f"s_sub_u32 s6, s{r}, s94")
        E(f"v_writelane_b32 v10, s6, {i+1}")
    E("v_lshlrev_b32 v11, 2, v1")
    E("v_cmp_gt_u32 vcc, 16, v1")
    E("s_and_saveexec_b64 s[86:87], vcc")
    E("global_store_dword v11, v10, s[30:31]")
elif ST:
    E("s_mov_b64 exec, -1")
    E("s_waitcnt vmcnt(0) lgkmcnt(0)")
    E(f"s_cmp_lg_u32 s{sW}, {STW}")
    E("s_cbranch_scc1 K1_END")
    E("s_memrealtime s[2:3]")
    E("s_waitcnt lgkmcnt(0)")
    regs = stamp_regs[:stamp_n[0]]
    for i, r in enumerate(regs):
        E(f"v_writelane_b32 v10, s{r}, {2*i}")
        E(f"v_writelane_b32 v10, s{r+1}, {2*i+1}")
    n = len(regs)
    E(f"v_writelane_b32 v10, s2, {2*n}")
    E(f"v_writelane_b32 v10, s3, {2*n+1}")
    E("v_lshlrev_b32 v11, 2, v1")
    E(f"s_lshl_b32 s39, s93, 7")
    E("s_add_u32 s39, s39, 0x300000")
    E(f"v_cmp_gt_u32 vcc, {2*n+2}, v1")
    E("s_and_saveexec_b64 s[86:87], vcc")
    E(f"buffer_store_dword v10, v11, {sr(sWS)}, s39 offen")
L("K1_END:")
E("s_endpgm")

L('.section .rodata,"a"')
L(".p2align 6")
L(f".amdhsa_kernel {K1}")
L(f"  .amdhsa_next_free_vgpr 256")
L(f"  .amdhsa_next_free_sgpr 102")
L(f"  .amdhsa_accum_offset 256")
L("  .amdhsa_group_segment_fixed_size 0")
L("  .amdhsa_kernarg_size 104")
L("  .amdhsa_user_sgpr_count 2")
L("  .amdhsa_user_sgpr_kernarg_segment_ptr 1")
L("  .amdhsa_system_sgpr_workgroup_id_x 1")
L(".end_amdhsa_kernel")
open(sys.argv[1], 'w').write('\n'.join(out) + '\n')
```

```python
import sys, struct

NAME = "gated_mix__sliding_block_cached__glu_gated_reglu__decode"
out = []
def E(s): out.append("    " + s)
def L(s): out.append(s)

HEADER = open('cdna_kernels/' + NAME + '.s.ref').read().split('\n')
hdr = []
for ln in HEADER:
    if ln.startswith('; @launch') or ln.startswith('.amdgcn_target'):
        break
    hdr.append(ln)

opts = (sys.argv[2] if len(sys.argv) > 2 else "").split(',')
def opt(name, default=None):
    for o in opts:
        if o == name: return True
        if o.startswith(name + '='): return o.split('=')[1]
    return default
NT = " nt" if not opt('nont') else ""
if opt('pol'): NT = " " + opt('pol').replace('+', ' ')
KNT = "" if opt('kplain') else NT
VNT = "" if opt('vplain') else NT
WNT = " nt" if (opt('wnt') or opt('allnt')) else ""
ANT = " nt" if opt('allnt') else ""
ST = opt('st') or opt('dbg')
DBG = opt('dbg')
STW = int(opt('stw', 0))
NK0 = int(opt('nk0', 8))
NV1 = int(opt('nv1', 15))

P0_OFF = 0;      P0_STR = 1312
P2_OFF = 16 * P0_STR;  P2_STR = 800
Y_OFF  = P2_OFF + 16 * P2_STR; Y_STR = 544
QBF_OFF = Y_OFF + 16 * Y_STR
GU_OFF  = QBF_OFF + 384
OBF_OFF = GU_OFF + 384
ST_OFF  = OBF_OFF + 512
Z_OFF   = ST_OFF + 64
FR_OFF  = Z_OFF + 64
LDS_SZ  = FR_OFF + 8 * 320
assert LDS_SZ <= 65536

WS_G0 = 0x1000
WS_G2 = 0x100000
WS_G2A = 0x180000
WS_G3 = 0x200000

SCALE_LOG2E = (192.0 ** -0.5) * 1.4426950408889634
def f32bits(x): return struct.unpack('<I', struct.pack('<f', x))[0]

K1 = NAME + "_kernel"
L('\n'.join(hdr))
L(f"; @launch grid=(256,1,1) block=(512,1,1) lds=65536")
L('.amdgcn_target "amdgcn-amd-amdhsa--gfx950"')
L(".text")
L(f".globl {K1}")
L(".p2align 8")
L(f".type {K1},@function")
L(f"{K1}:")

vL, vG, vJ = 1, 2, 3
vM = [4, 5, 6, 7]
vA = 8
vKB = 40
vVB = 136
vQ = 232

sW, sXCD, sIDX, sH, sC, sT = 34, 35, 36, 37, 38, 39
sK, sV, sWQ, sWO, sWG, sWU, sWD, sX, sWS = 40, 44, 48, 52, 56, 60, 64, 68, 72
sHF = 78
sV2 = 80
sOFF = 82
sSC = 83
sROW = 85
sE = 86
sR0 = 88
sTAG = 4
sBAD = 6
sGW = 76
stamp_regs = [94, 96, 98, 100] + [10, 12, 14, 16, 18, 20, 22, 24, 32, 8]
stamp_n = [0]
def stamp():
    if not ST: return
    r = stamp_regs[stamp_n[0]]; stamp_n[0] += 1
    E(f"s_memrealtime s[{r}:{r+1}]")
def vr(a, n=4): return f"v[{a}:{a+n-1}]"
def sr(a, n=4): return f"s[{a}:{a+n-1}]"

vmq = []
def VM(s, tag):
    E(s); vmq.append(tag)
def WAIT(tag):
    idx = max(i for i, t in enumerate(vmq) if t == tag)
    n = len(vmq) - 1 - idx
    assert n <= 63, n
    E(f"s_waitcnt vmcnt({n})")

def srd(dst, plo, off_s, nrec):
    E(f"s_add_u32 s{dst}, s{plo}, s{off_s}")
    E(f"s_addc_u32 s{dst+1}, s{plo+1}, 0")
    E(f"s_and_b32 s{dst+1}, s{dst+1}, 0xffff")
    E(f"s_mov_b32 s{dst+2}, {nrec}")
    E(f"s_mov_b32 s{dst+3}, 0x00020000")

def dpp_reduce(regs):
    for ctl in ["row_shr:1", "row_shr:2", "row_shr:4", "row_shr:8"]:
        for r in regs:
            E(f"v_add_f32_dpp v{r}, v{r}, v{r} {ctl} row_mask:0xf bank_mask:0xf bound_ctrl:0")
        if len(regs) < 3: E("s_nop 1")
    for r in regs:
        E(f"v_add_f32_dpp v{r}, v{r}, v{r} row_bcast:15 row_mask:0xa bank_mask:0xf")
    if len(regs) < 3: E("s_nop 1")
    for r in regs:
        E(f"v_add_f32_dpp v{r}, v{r}, v{r} row_bcast:31 row_mask:0xc bank_mask:0xf")

def expand(dup, dst):
    for w in range(4):
        E(f"v_and_b32 v{dst+w}, v{dup}, v{vM[w]}")

def mfma(d, a, b, c):
    E(f"v_mfma_f32_16x16x32_bf16 {vr(d)}, {vr(a)}, {vr(b)}, {'0' if c is None else vr(c)}")

E("s_cmp_ge_u32 s2, 256")
E("s_cbranch_scc1 K1_END")
if opt('perm'):
    E("s_lshr_b32 s3, s2, 3")
    E("s_and_b32 s2, s2, 7")
    E("s_lshl_b32 s2, s2, 5")
    E("s_or_b32 s2, s2, s3")
if ST: E("s_mov_b32 s93, s2")
stamp()
if DBG: E("s_memtime s[6:7]")
E("s_load_dwordx16 s[8:23], s[0:1], 0")
E("s_load_dwordx8 s[24:31], s[0:1], 64")
E("s_load_dwordx2 s[32:33], s[0:1], 96")
E(f"v_and_b32 v{vL}, 63, v0")
E(f"v_bfe_u32 v{vG}, v0, 4, 2")
E(f"v_and_b32 v{vJ}, 15, v0")
E(f"v_lshrrev_b32 v{vA}, 6, v0")
E("s_nop 0")
E(f"v_readfirstlane_b32 s{sW}, v{vA}")
E(f"s_and_b32 s{sXCD}, s2, 7")
E(f"s_lshr_b32 s{sIDX}, s2, 3")
E(f"s_and_b32 s{sH}, s{sIDX}, 3")
E(f"s_lshl_b32 s{sT}, s{sXCD}, 2")
E(f"s_add_u32 s{sH}, s{sH}, s{sT}")
E(f"s_lshr_b32 s{sC}, s{sIDX}, 2")
E(f"s_lshl_b32 s{sROW}, s{sH}, 3")
E(f"s_add_u32 s{sROW}, s{sROW}, s{sC}")
sROT = 84
if opt('norot'):
    E(f"s_mov_b32 s{sROT}, 0")
else:
    E(f"s_mul_i32 s{sROT}, s{sH}, 5")
    E(f"s_mul_i32 s{sT}, s{sC}, 3")
    E(f"s_add_u32 s{sROT}, s{sROT}, s{sT}")
    if opt('rotw'): E(f"s_add_u32 s{sROT}, s{sROT}, s{sW}")
    E(f"s_and_b32 s{sROT}, s{sROT}, 7")
E("s_mov_b32 s3, 0x40003")
E(f"s_mov_b32 s{sHF}, 0xFF00FF00")
E(f"s_mov_b32 s{sHF+1}, 0xFF00FF00")
E(f"s_mov_b32 s{sV2}, 0x00FF00FF")
E(f"s_mov_b32 s{sV2+1}, 0xFF00FF00")
E(f"s_mov_b32 s{sSC}, 0x{f32bits(SCALE_LOG2E):08x}")
t0, t1, t2, t3 = vA, vA+1, vA+2, vA+3
E(f"v_and_b32 v{t0}, 1, v{vJ}")
E(f"v_lshlrev_b32 v{t0}, 4, v{t0}")
E(f"v_mov_b32 v{t1}, 0xffff")
E(f"v_lshlrev_b32 v{t1}, v{t0}, v{t1}")
E(f"v_bfe_u32 v{t2}, v{vJ}, 1, 2")
for w in range(4):
    E(f"v_cmp_eq_u32 vcc, {w}, v{t2}")
    E("s_nop 1")
    E(f"v_cndmask_b32 v{vM[w]}, 0, v{t1}, vcc")
vHF, vGH, vJ7 = vA, vA+1, vA+2
E(f"v_lshrrev_b32 v{vHF}, 3, v{vJ}")
E(f"v_lshl_add_u32 v{vGH}, v{vHF}, 2, v{vG}")
E(f"v_and_b32 v{vJ7}, 7, v{vJ}")
oWA, oWA2, oWB, oG, oX, oKa, oKb, oGX = 32, 33, 34, 35, 36, 38, 39, 37
E(f"v_mul_u32_u24 v{oWA}, 12288, v{vG}")
E(f"v_lshl_add_u32 v{oWA}, v{vJ}, 4, v{oWA}")
E(f"v_add_u32 v{oWA2}, 49152, v{oWA}")
E(f"v_mul_u32_u24 v{oWB}, 12288, v{vGH}")
E(f"v_lshl_add_u32 v{oWB}, v{vJ7}, 4, v{oWB}")
E(f"v_add_u32 v{oWB}, 256, v{oWB}")
E(f"v_mul_u32_u24 v{oG}, 3072, v{vGH}")
E(f"v_lshl_add_u32 v{oG}, v{vJ7}, 4, v{oG}")
E(f"v_mov_b32 v{t3}, 0x40000000")
E(f"v_cmp_gt_u32 vcc, 6, v{vJ7}")
E("s_nop 1")
E(f"v_cndmask_b32 v{oG}, v{t3}, v{oG}, vcc")
E(f"v_lshlrev_b32 v{oX}, 1, v{vGH}")
E(f"v_lshlrev_b32 v{oGX}, 2, v0")
oK = [[252, 253], [254, 255]]
for Q in range(2):
    a_, b_ = oK[Q]
    E(f"v_and_b32 v{a_}, 3, v{vJ}")
    E(f"v_add_u32 v{a_}, s{sROT}, v{a_}")
    if Q: E(f"v_add_u32 v{a_}, 4, v{a_}")
    E(f"v_and_b32 v{a_}, 7, v{a_}")
    E(f"v_lshlrev_b32 v{a_}, 3, v{a_}")
    E(f"v_bfe_u32 v{t3}, v{vJ}, 2, 1")
    E(f"v_add_u32 v{a_}, v{a_}, v{t3}")
    E(f"v_mul_u32_u24 v{a_}, 384, v{a_}")
    E(f"v_lshl_add_u32 v{a_}, v{vG}, 4, v{a_}")
    E(f"v_lshlrev_b32 v{t3}, 6, v{vHF}")
    E(f"v_sub_u32 v{b_}, v{a_}, v{t3}")
    E(f"v_add_u32 v{b_}, 64, v{b_}")
    E(f"v_add_u32 v{a_}, v{a_}, v{t3}")
E("s_waitcnt lgkmcnt(0)")
if DBG: E("s_mov_b32 s95, s6")
stamp()
E(f"s_load_dwordx2 s[{sTAG}:{sTAG+1}], s[32:33], 0")
E(f"s_mul_i32 s{sT}, s{sH}, 12582912")
E(f"s_mul_i32 s{sOFF}, s{sC}, 196608")
E(f"s_add_u32 s{sT}, s{sT}, s{sOFF}")
E(f"s_mul_i32 s{sOFF}, s{sW}, 24576")
E(f"s_add_u32 s{sT}, s{sT}, s{sOFF}")
E(f"s_add_u32 s{sT}, s{sT}, 11010048")
srd(sK, 10, sT, 24576)
srd(sV, 12, sT, 24576)
E(f"s_mul_i32 s{sR0}, s{sC}, 80")
E(f"s_lshl_b32 s{sOFF}, s{sW}, 3")
E(f"s_add_u32 s{sR0}, s{sR0}, s{sOFF}")
E(f"s_mul_i32 s{sT}, s{sR0}, 12288")
E(f"s_mul_i32 s{sOFF}, s{sH}, 384")
E(f"s_add_u32 s{sT}, s{sT}, s{sOFF}")
srd(sWQ, 14, sT, 72 * 12288)
E(f"s_mul_i32 s{sT}, s{sR0}, 3072")
E(f"s_mul_i32 s{sOFF}, s{sH}, 96")
E(f"s_add_u32 s{sT}, s{sT}, s{sOFF}")
srd(sWG, 20, sT, 72 * 3072)
srd(sWU, 22, sT, 72 * 3072)
E(f"s_lshl_b32 s{sR0+1}, s{sR0}, 1")
E(f"s_mov_b32 s{sT}, 0")
srd(sX, 8, sT, 1280)
srd(sWS, 32, sT, 0x400000)
E(f"s_cmp_lt_u32 s{sW}, 2")
E(f"s_cselect_b32 s{sR0+2}, 786432, 0x40000000")
E(f"s_cselect_b32 s{sR0+3}, 196608, 0x40000000")
GOFF = [0, 2, 6, 4]
def kload(n):
    Q, gi, s = n // 12, (n // 3) % 4, n % 3
    b = vKB + n * 4
    va = oK[Q][0] if gi in (0, 2) else oK[Q][1]
    VM(f"buffer_load_dwordx4 {vr(b)}, v{va}, {sr(sK)}, 0 offen offset:{GOFF[gi]*384+s*128}{KNT}", f"K{Q}{gi}")
stamp()
vX0, vX1, vGX, vGW = vA+4, vA+5, vA+6, vA+7
VM(f"buffer_load_ushort v{vX0}, v{oX}, {sr(sX)}, s{sR0+1} offen", "X")
VM(f"buffer_load_ushort v{vX1}, v{oX}, {sr(sX)}, s{sR0+1} offen offset:128", "X")
def p0reg(k, q): return vVB + 20 * k + 4 * q
VM(f"buffer_load_dwordx4 {vr(p0reg(0,0))}, v{oWA}, {sr(sWQ)}, 0 offen{WNT}", "P0")
VM(f"buffer_load_dwordx4 {vr(p0reg(0,1))}, v{oWA2}, {sr(sWQ)}, 0 offen{WNT}", "P0")
VM(f"buffer_load_dwordx4 {vr(p0reg(0,2))}, v{oWB}, {sr(sWQ)}, 0 offen{WNT}", "P0")
VM(f"buffer_load_dwordx4 {vr(p0reg(0,3))}, v{oG}, {sr(sWG)}, 0 offen{ANT}", "P0")
VM(f"buffer_load_dwordx4 {vr(p0reg(0,4))}, v{oG}, {sr(sWU)}, 0 offen{ANT}", "P0")
for o_, s_ in ((oWA, sR0+2), (oWA2, sR0+2), (oWB, sR0+2), (oG, sR0+3)):
    E(f"v_add_u32 v{o_}, s{s_}, v{o_}")
VM(f"buffer_load_dwordx4 {vr(p0reg(1,0))}, v{oWA}, {sr(sWQ)}, 0 offen{WNT}", "P1")
VM(f"buffer_load_dwordx4 {vr(p0reg(1,1))}, v{oWA2}, {sr(sWQ)}, 0 offen{WNT}", "P1")
VM(f"buffer_load_dwordx4 {vr(p0reg(1,2))}, v{oWB}, {sr(sWQ)}, 0 offen{WNT}", "P1")
VM(f"buffer_load_dwordx4 {vr(p0reg(1,3))}, v{oG}, {sr(sWG)}, 0 offen{ANT}", "P1")
VM(f"buffer_load_dwordx4 {vr(p0reg(1,4))}, v{oG}, {sr(sWU)}, 0 offen{ANT}", "P1")
E(f"s_mov_b32 s{sWO}, s26")
E(f"s_and_b32 s{sWO+1}, s27, 0xffff")
E(f"s_mov_b32 s{sWO+2}, 1280")
E(f"s_mov_b32 s{sWO+3}, 0x00020000")
VM(f"buffer_load_dword v{vGX}, v{oGX}, {sr(sX)}, 0 offen", "G")
VM(f"buffer_load_dword v{vGW}, v{oGX}, {sr(sWO)}, 0 offen", "G")
E(f"s_mul_i32 s{sT}, s{sH}, 245760")
E(f"s_mul_i32 s{sOFF}, s{sC}, 160")
E(f"s_add_u32 s{sT}, s{sT}, s{sOFF}")
srd(sWO, 16, sT, 245760 - 1120)
E(f"s_mul_i32 s{sT}, s{sH}, 61440")
E(f"s_add_u32 s{sT}, s{sT}, s{sOFF}")
srd(sWD, 24, sT, 61440 - 1120)
E(f"s_mov_b32 s{sOFF}, 12288")
for n in range(NK0): kload(n)
stamp()
vAC = 16
vBX = vQ
WAIT("X")
E(f"v_lshl_or_b32 v{vX0}, v{vX0}, 16, v{vX0}")
E(f"v_lshl_or_b32 v{vX1}, v{vX1}, 16, v{vX1}")
expand(vX0, vBX)
expand(vX1, vBX + 4)
WAIT("P0")
for q in range(5):
    mfma(vAC + 4*q, p0reg(0, q), vBX, None)
WAIT("P1")
for q in range(5):
    mfma(vAC + 4*q, p0reg(1, q), vBX + 4, vAC + 4*q)
WAIT("G")
E(f"v_lshlrev_b32 v{vX0}, 16, v{vGX}")
E(f"v_and_b32 v{vGX}, 0xffff0000, v{vGX}")
E(f"v_lshlrev_b32 v{vX1}, 16, v{vGW}")
E(f"v_and_b32 v{vGW}, 0xffff0000, v{vGW}")
E(f"v_mul_f32 v{vX0}, v{vX0}, v{vX1}")
E(f"v_fmac_f32 v{vX0}, v{vGX}, v{vGW}")
E("s_nop 1")
dpp_reduce([vX0])
a1, a2, tt = vA, vA+1, vA+2
E(f"v_lshrrev_b32 v{tt}, 3, v{vJ}")
E(f"s_lshl_b32 s{sT}, s{sW}, 1")
E(f"v_add_u32 v{tt}, s{sT}, v{tt}")
E(f"v_mul_u32_u24 v{a1}, {P0_STR}, v{tt}")
E(f"v_and_b32 v{tt}, 7, v{vJ}")
E(f"v_lshl_add_u32 v{a1}, v{tt}, 2, v{a1}")
E(f"v_and_b32 v{tt}, 1, v{vG}")
E(f"v_lshl_add_u32 v{a2}, v{tt}, 7, v{a1}")
E(f"v_lshl_add_u32 v{a1}, v{vG}, 7, v{a1}")
E(f"s_lshl_b32 s{sT}, s{sW}, 2")
E(f"v_mov_b32 v{tt}, s{sT}")
E("s_mov_b32 exec_lo, 0")
E("s_mov_b32 exec_hi, 0x80000000")
E(f"ds_write_b32 v{tt}, v{vX0} offset:{Z_OFF}")
E("s_mov_b64 exec, -1")
E("s_nop 3")
for r in range(4):
    E(f"v_cndmask_b32 v{vAC+r}, v{vAC+r}, v{vAC+4+r}, s[{sHF}:{sHF+1}]")
for r in range(4):
    E(f"ds_write_b32 v{a1}, v{vAC+r} offset:{P0_OFF + r*32}")
E(f"s_mov_b64 exec, s[{sV2}:{sV2+1}]")
for q in range(3):
    for r in range(4):
        E(f"ds_write_b32 v{a2}, v{vAC+8+4*q+r} offset:{P0_OFF + 512 + 256*q + r*32}")
E("s_mov_b64 exec, -1")
E("s_waitcnt lgkmcnt(0)")
E("s_barrier")
stamp()
E(f"s_add_u32 s{sTAG}, s{sTAG}, 1")
E(f"s_addc_u32 s{sTAG+1}, s{sTAG+1}, 0")
E(f"s_cmp_ge_u32 s{sW}, 3")
E("s_cbranch_scc1 K1_PUB0_DONE")
E("v_cmp_gt_u32 vcc, 144, v0")
E(f"s_and_saveexec_b64 s[{sE}:{sE+1}], vcc")
E(f"v_lshlrev_b32 v{vA}, 3, v0")
E(f"v_add_u32 v{vA+1}, 64, v{vA}")
E("v_cmp_gt_u32 vcc, 120, v0")
E("s_nop 1")
E(f"v_cndmask_b32 v{vA}, v{vA+1}, v{vA}, vcc")
vR = vQ - 36
for s in range(16):
    E(f"ds_read_b64 v[{vR+2*s}:{vR+2*s+1}], v{vA} offset:{P0_OFF + s*P0_STR}")
E("s_waitcnt lgkmcnt(0)")
for st in (8, 4, 2, 1):
    for s in range(st):
        for q in range(2):
            E(f"v_add_f32 v{vR+2*s+q}, v{vR+2*s+q}, v{vR+2*(s+st)+q}")
E(f"v_mov_b32 v{vR+2}, s{sTAG}")
E(f"v_mov_b32 v{vR+3}, s{sTAG+1}")
E(f"v_lshlrev_b32 v{vA}, 4, v0")
E(f"s_mul_i32 s{sT}, s{sROW}, 2304")
E(f"s_add_u32 s{sT}, s{sT}, {WS_G0}")
E(f"buffer_store_dwordx4 {vr(vR)}, v{vA}, {sr(sWS)}, s{sT} offen sc1")
E(f"s_mov_b64 exec, s[{sE}:{sE+1}]")
E("s_nop 1")
L("K1_PUB0_DONE:")
for n in range(NK0, 24): kload(n)
vGa = vR
E(f"s_mul_i32 s{sT}, s{sW}, 288")
E(f"v_lshlrev_b32 v{vA}, 4, v{vL}")
E(f"v_add_u32 v{vA}, s{sT}, v{vA}")
E(f"s_mul_i32 s{sR0}, s{sH}, {8*2304}")
E(f"s_add_u32 s{sR0}, s{sR0}, {WS_G0}")
E("s_mov_b64 exec, 0x3ffff")
def gather_q():
    for p in range(8):
        E(f"s_add_u32 s{sT}, s{sR0}, {p*2304}")
        VM(f"buffer_load_dwordx4 {vr(vGa+4*p)}, v{vA}, {sr(sWS)}, s{sT} offen sc1", "GQ")
gather_q()
E("s_mov_b64 exec, -1")
oVA, oVB = 38, 39
E(f"v_mul_u32_u24 v{oVA}, 384, v{vG}")
E(f"v_lshl_add_u32 v{oVA}, v{vJ}, 4, v{oVA}")
E(f"v_lshrrev_b32 v{vA+1}, 3, v{vJ}")
E(f"v_lshl_add_u32 v{vA+1}, v{vA+1}, 2, v{vG}")
E(f"v_mul_u32_u24 v{oVB}, 384, v{vA+1}")
E(f"v_and_b32 v{vA+1}, 7, v{vJ}")
E(f"v_lshl_add_u32 v{oVB}, v{vA+1}, 4, v{oVB}")
E(f"v_add_u32 v{oVB}, 256, v{oVB}")
def vload(n):
    k, q = n // 3, n % 3
    b = vVB + 12 * k + 4 * q
    if q == 0 or n == NV1:
        E(f"s_add_u32 s{sOFF}, s{sROT}, {k}")
        E(f"s_and_b32 s{sOFF}, s{sOFF}, 7")
        E(f"s_mul_i32 s{sOFF}, s{sOFF}, 3072")
    if q < 2:
        VM(f"buffer_load_dwordx4 {vr(b)}, v{oVA}, {sr(sV)}, s{sOFF} offen offset:{q*1536}{VNT}", f"V{k}")
    else:
        VM(f"buffer_load_dwordx4 {vr(b)}, v{oVB}, {sr(sV)}, s{sOFF} offen{VNT}", f"V{k}")
for n in range(NV1): vload(n)
stamp()
WAIT("GQ")
E("s_mov_b64 exec, 0x3ffff")
L("K1_GQ_CHECK:")
E(f"s_mov_b64 s[{sBAD}:{sBAD+1}], 0")
for p in range(8):
    E(f"v_cmp_ne_u64 vcc, s[{sTAG}:{sTAG+1}], v[{vGa+4*p+2}:{vGa+4*p+3}]")
    E(f"s_or_b64 s[{sBAD}:{sBAD+1}], s[{sBAD}:{sBAD+1}], vcc")
E(f"s_cmp_eq_u64 s[{sBAD}:{sBAD+1}], 0")
E("s_cbranch_scc1 K1_GQ_OK")
E("s_sub_u32 s3, s3, 1")
E("s_cbranch_scc1 K1_GQ_OK")
E("s_sleep 2")
sv = list(vmq)
gather_q()
vmq[:] = sv
E("s_waitcnt vmcnt(0)")
E("s_branch K1_GQ_CHECK")
L("K1_GQ_OK:")
for p in range(1, 8):
    E(f"v_add_f32 v{vGa}, v{vGa}, v{vGa+4*p}")
    E(f"v_add_f32 v{vGa+1}, v{vGa+1}, v{vGa+4*p+1}")
E(f"s_mul_i32 s{sT}, s{sW}, 18")
E(f"v_add_u32 v{vA}, s{sT}, v{vL}")
E(f"v_cvt_pk_bf16_f32 v{vA+1}, v{vGa}, v{vGa+1}")
E(f"v_lshlrev_b32 v{vA+2}, 2, v{vA}")
E(f"v_lshlrev_b32 v{vA+3}, 3, v{vA}")
E(f"v_cmp_gt_u32 vcc, 96, v{vA}")
E(f"s_and_saveexec_b64 s[{sE}:{sE+1}], vcc")
E(f"ds_write_b32 v{vA+2}, v{vA+1} offset:{QBF_OFF}")
E(f"s_andn2_b64 exec, s[{sE}:{sE+1}], vcc")
E(f"ds_write_b64 v{vA+3}, v[{vGa}:{vGa+1}] offset:{GU_OFF - 96*8}")
E("s_mov_b64 exec, -1")
E("s_waitcnt lgkmcnt(0)")
E("s_barrier")
stamp()
E(f"v_lshrrev_b32 v{vA+1}, 3, v{vJ}")
E(f"v_lshlrev_b32 v{vA+1}, 6, v{vA+1}")
E(f"v_lshl_add_u32 v{vA}, v{vG}, 4, v{vA+1}")
for s in range(3):
    E(f"ds_read_b128 {vr(vQ+4*s)}, v{vA} offset:{QBF_OFF + 128*s}")
E(f"v_xor_b32 v{vA+2}, 40, v{vL}")
E(f"v_lshlrev_b32 v{vA+2}, 2, v{vA+2}")
E("s_waitcnt lgkmcnt(0)")
vS = 16
vD = 16
vF = vQ + 12
for Q in range(2):
    for gi in range(4):
        WAIT(f"K{Q}{gi}")
        for s in range(3):
            b = vKB + ((Q * 4 + gi) * 3 + s) * 4
            mfma(vD + 4*gi, b, vQ + 4*s, None if s == 0 else vD + 4*gi)
    E("s_nop 7")
    for r in range(4):
        a, b_, c_, d = vD + r, vD + 4 + r, vD + 8 + r, vD + 12 + r
        u1, u2 = vA + 4, vA + 5
        E(f"v_cndmask_b32 v{u1}, v{b_}, v{a}, s[{sV2}:{sV2+1}]")
        E(f"v_cndmask_b32 v{u2}, v{d}, v{c_}, s[{sV2}:{sV2+1}]")
        E(f"v_cndmask_b32 v{vF+4*Q+r}, v{u1}, v{u2}, s[{sHF}:{sHF+1}]")
        E(f"v_cndmask_b32 v{a}, v{u2}, v{u1}, s[{sHF}:{sHF+1}]")
    for r in range(4):
        E(f"ds_bpermute_b32 v{vD+4+r}, v{vA+2}, v{vD+r}")
    E("s_waitcnt lgkmcnt(0)")
    for r in range(4):
        E(f"v_add_f32 v{vF+4*Q+r}, v{vF+4*Q+r}, v{vD+4+r}")
for r in range(8):
    E(f"v_mov_b32 v{vS+r}, v{vF+r}")
for n in range(NV1, 24): vload(n)
oWO = vA
E(f"v_mul_u32_u24 v{oWO}, 1280, v{vG}")
E(f"v_lshl_add_u32 v{oWO}, v{vJ}, 4, v{oWO}")
E(f"v_mov_b32 v{vA+1}, 0x40000000")
E(f"v_cmp_gt_u32 vcc, 10, v{vJ}")
E("s_nop 1")
E(f"v_cndmask_b32 v{oWO}, v{vA+1}, v{oWO}, vcc")
E(f"s_mul_i32 s{sOFF}, s{sW}, 10240")
for k in range(3):
    E(f"s_add_u32 s{sT}, s{sOFF}, {k*81920}")
    VM(f"buffer_load_dwordx4 {vr(vKB+8*k)}, v{oWO}, {sr(sWO)}, s{sT} offen{ANT}", "WO")
    E(f"s_add_u32 s{sT}, s{sOFF}, {k*81920 + 5120}")
    VM(f"buffer_load_dwordx4 {vr(vKB+8*k+4)}, v{oWO}, {sr(sWO)}, s{sT} offen{ANT}", "WO")
E(f"s_cmp_lt_u32 s{sW}, 6")
E(f"s_cselect_b32 s{sT}, 0, 0x40000000")
E(f"v_add_u32 v{vA+1}, s{sT}, v{oWO}")
E(f"v_or_b32 v{vA+1}, v{vA+1}, v{oWO}")
VM(f"buffer_load_dwordx4 {vr(vKB+24)}, v{vA+1}, {sr(sWD)}, s{sOFF} offen{ANT}", "WO")
E(f"s_add_u32 s{sT}, s{sOFF}, 5120")
VM(f"buffer_load_dwordx4 {vr(vKB+28)}, v{vA+1}, {sr(sWD)}, s{sT} offen{ANT}", "WO")
t = vA + 1
E(f"v_max3_f32 v{t}, v{vS}, v{vS+1}, v{vS+2}")
E(f"v_max3_f32 v{t}, v{t}, v{vS+3}, v{vS+4}")
E(f"v_max3_f32 v{t}, v{t}, v{vS+5}, v{vS+6}")
E(f"v_max_f32 v{t}, v{t}, v{vS+7}")
E("s_nop 1")
E(f"v_max_f32_dpp v{t}, v{t}, v{t} row_ror:8 row_mask:0xf bank_mask:0xf")
E("s_nop 1")
for q in range(4):
    E(f"v_readlane_b32 s{sR0+q}, v{t}, {16*q}")
E("s_nop 1")
E(f"v_mov_b32 v{t}, s{sR0}")
E(f"v_max_f32 v{t}, s{sR0+1}, v{t}")
E(f"v_max_f32 v{t}, s{sR0+2}, v{t}")
E(f"v_max_f32 v{t}, s{sR0+3}, v{t}")
E(f"s_lshl_b32 s{sT}, s{sW}, 2")
E(f"v_mov_b32 v{t+1}, s{sT}")
E(f"ds_write_b32 v{t+1}, v{t} offset:{ST_OFF}")
E(f"v_mul_f32 v{t}, s{sSC}, v{t}")
for r in range(8):
    E(f"v_fma_f32 v{vS+r}, v{vS+r}, s{sSC}, -v{t}")
for r in range(8):
    E(f"v_exp_f32 v{vS+r}, v{vS+r}")
E("s_nop 0")
t2 = vA + 3
E(f"v_add_f32 v{t2}, v{vS}, v{vS+1}")
for r in range(2, 8):
    E(f"v_add_f32 v{t2}, v{t2}, v{vS+r}")
E("s_nop 1")
E(f"v_add_f32_dpp v{t2}, v{t2}, v{t2} row_ror:8 row_mask:0xf bank_mask:0xf")
E("s_nop 1")
for q in range(4):
    E(f"v_readlane_b32 s{sR0+q}, v{t2}, {16*q}")
E("s_nop 1")
E(f"v_mov_b32 v{t2}, s{sR0}")
E(f"v_add_f32 v{t2}, s{sR0+1}, v{t2}")
E(f"v_add_f32 v{t2}, s{sR0+2}, v{t2}")
E(f"v_add_f32 v{t2}, s{sR0+3}, v{t2}")
E(f"ds_write_b32 v{t+1}, v{t2} offset:{ST_OFF+32}")
for r in range(8):
    E(f"v_cvt_pk_bf16_f32 v{vS+r}, v{vS+r}, v{vS+r}")
E("s_waitcnt lgkmcnt(0)")
stamp()
vPA = vS + 8
vBP = vA
for k in range(8):
    expand(vS + k, vBP)
    WAIT(f"V{k}")
    E("s_nop 0")
    b = vVB + 12 * k
    for q in range(3):
        mfma(vPA + 4*q, b + 4*q, vBP, None if k == 0 else vPA + 4*q)
stamp()
a1, a2, tt = vS, vS+1, vS+2
E(f"v_lshrrev_b32 v{tt}, 3, v{vJ}")
E(f"s_lshl_b32 s{sT}, s{sW}, 1")
E(f"v_add_u32 v{tt}, s{sT}, v{tt}")
E(f"v_mul_u32_u24 v{a1}, {P2_STR}, v{tt}")
E(f"v_and_b32 v{tt}, 7, v{vJ}")
E(f"v_lshl_add_u32 v{a1}, v{tt}, 2, v{a1}")
E(f"v_and_b32 v{tt}, 1, v{vG}")
E(f"v_lshl_add_u32 v{a2}, v{tt}, 7, v{a1}")
E(f"v_lshl_add_u32 v{a1}, v{vG}, 7, v{a1}")
E("s_nop 7")
for r in range(4):
    E(f"v_cndmask_b32 v{vPA+r}, v{vPA+r}, v{vPA+4+r}, s[{sHF}:{sHF+1}]")
for r in range(4):
    E(f"ds_write_b32 v{a1}, v{vPA+r} offset:{P2_OFF + r*32}")
E(f"s_mov_b64 exec, s[{sV2}:{sV2+1}]")
for r in range(4):
    E(f"ds_write_b32 v{a2}, v{vPA+8+r} offset:{P2_OFF + 512 + r*32}")
E("s_mov_b64 exec, -1")
E("s_waitcnt lgkmcnt(0)")
E("s_barrier")
stamp()
vT = vVB
E(f"v_mov_b32 v{vT+1}, 0")
for w in range(5):
    E(f"ds_read_b32 v{vT+60+w}, v{vT+1} offset:{Z_OFF + 4*w}")
E(f"s_cmp_ge_u32 s{sW}, 3")
E("s_cbranch_scc1 K1_T_WAIT")
E(f"s_cmp_eq_u32 s{sW}, 2")
E("s_cbranch_scc1 K1_T_H")
E(f"v_lshlrev_b32 v{vT}, 3, v0")
E(f"ds_read_b128 {vr(vT+4)}, v{vT+1} offset:{ST_OFF}")
E(f"ds_read_b128 {vr(vT+8)}, v{vT+1} offset:{ST_OFF+16}")
E(f"ds_read_b128 {vr(vT+12)}, v{vT+1} offset:{ST_OFF+32}")
E(f"ds_read_b128 {vr(vT+16)}, v{vT+1} offset:{ST_OFF+48}")
for s in range(16):
    E(f"ds_read_b64 v[{vT+20+2*s}:{vT+21+2*s}], v{vT} offset:{P2_OFF + s*P2_STR}")
E("s_waitcnt lgkmcnt(0)")
mm, ll = vT + 2, vT + 3
E(f"v_max3_f32 v{mm}, v{vT+4}, v{vT+5}, v{vT+6}")
E(f"v_max3_f32 v{mm}, v{mm}, v{vT+7}, v{vT+8}")
E(f"v_max3_f32 v{mm}, v{mm}, v{vT+9}, v{vT+10}")
E(f"v_max_f32 v{mm}, v{mm}, v{vT+11}")
for w in range(8):
    E(f"v_sub_f32 v{vT+4+w}, v{vT+4+w}, v{mm}")
for w in range(8):
    E(f"v_mul_f32 v{vT+4+w}, s{sSC}, v{vT+4+w}")
for w in range(8):
    E(f"v_exp_f32 v{vT+4+w}, v{vT+4+w}")
E("s_nop 0")
E(f"v_mul_f32 v{ll}, v{vT+4}, v{vT+12}")
for w in range(1, 8):
    E(f"v_fmac_f32 v{ll}, v{vT+4+w}, v{vT+12+w}")
for w in range(8):
    for q in range(2):
        E(f"v_add_f32 v{vT+20+4*w+q}, v{vT+20+4*w+q}, v{vT+22+4*w+q}")
vO = vT + 52
for q in range(2):
    E(f"v_mul_f32 v{vO+q}, v{vT+4}, v{vT+20+q}")
    for w in range(1, 8):
        E(f"v_fmac_f32 v{vO+q}, v{vT+4+w}, v{vT+20+4*w+q}")
E("v_cmp_eq_u32 vcc, 96, v0")
E(f"v_lshlrev_b32 v{vT+56}, 4, v0")
E(f"v_add_u32 v{vT+56}, 16, v{vT+56}")
E(f"v_cndmask_b32 v{vO}, v{vO}, v{mm}, vcc")
E(f"v_cndmask_b32 v{vO+1}, v{vO+1}, v{ll}, vcc")
E(f"v_cndmask_b32 v{vT+57}, v{vT+56}, 0, vcc")
E(f"v_mov_b32 v{vO+2}, s{sTAG}")
E(f"v_mov_b32 v{vO+3}, s{sTAG+1}")
E(f"s_lshl_b32 s{sT}, s{sROW}, 11")
E(f"s_add_u32 s{sT}, s{sT}, {WS_G2}")
E("v_cmp_gt_u32 vcc, 97, v0")
E(f"s_and_saveexec_b64 s[{sE}:{sE+1}], vcc")
E(f"s_add_u32 s{sOFF}, s{sT}, {WS_G2A - WS_G2}")
E(f"buffer_store_dwordx4 {vr(vO)}, v{vT+57}, {sr(sWS)}, s{sOFF} offen")
E(f"buffer_store_dwordx4 {vr(vO)}, v{vT+57}, {sr(sWS)}, s{sT} offen sc1")
E(f"s_mov_b64 exec, s[{sE}:{sE+1}]")
stamp()
def calc_g(dst, z):
    for w in range(1, 5):
        E(f"v_add_f32 v{z}, v{z}, v{z+w}")
    E(f"v_mul_f32 v{dst}, 0xbfb8aa3b, v{z}")
    E(f"v_exp_f32 v{dst}, v{dst}")
    E("s_nop 0")
    E(f"v_add_f32 v{dst}, 1.0, v{dst}")
    E(f"v_rcp_f32 v{dst}, v{dst}")
    E("s_nop 0")
vGg = vT + 58
calc_g(vGg, vT + 60)
E(f"s_lshl_b32 s{sR0}, s{sH}, 14")
E(f"s_add_u32 s{sR0}, s{sR0}, {WS_G2}")
vGo = vKB + 32
sm = vGo + 32
E(f"v_min_u32 v{vT+56}, {96*16}, v{vT+56}")
E(f"v_and_b32 v{vT+59}, 7, v{vL}")
E(f"v_lshlrev_b32 v{vT+59}, 11, v{vT+59}")
L("K1_GO_LOOP:")
E("s_and_b32 s92, s3, 3")
E("s_cmp_eq_u32 s92, 0")
E(f"s_cselect_b32 s92, 0, {WS_G2A - WS_G2}")
E(f"s_add_u32 s92, s92, s{sR0}")
E(f"buffer_load_dwordx4 {vr(sm)}, v{vT+59}, {sr(sWS)}, s92 offen sc1")
for p in range(8):
    E(f"buffer_load_dwordx4 {vr(vGo+4*p)}, v{vT+56}, {sr(sWS)}, s92 offen offset:{(p*2048) % 4096} sc1" if p < 2 else
      f"buffer_load_dwordx4 {vr(vGo+4*p)}, v{vT+56}, {sr(sWS)}, s91 offen offset:{(p*2048) % 4096} sc1")
    if p % 2 == 1 and p < 7:
        E(f"s_add_u32 s91, s92, {(p+1)*2048}")
E("s_waitcnt vmcnt(0)")
E(f"s_mov_b64 s[{sBAD}:{sBAD+1}], 0")
for p in range(9):
    E(f"v_cmp_ne_u64 vcc, s[{sTAG}:{sTAG+1}], v[{vGo+4*p+2}:{vGo+4*p+3}]")
    E(f"s_or_b64 s[{sBAD}:{sBAD+1}], s[{sBAD}:{sBAD+1}], vcc")
E(f"s_cmp_eq_u64 s[{sBAD}:{sBAD+1}], 0")
E("s_cbranch_scc1 K1_GO_OK")
E("s_sub_u32 s3, s3, 1")
E("s_cbranch_scc1 K1_GO_OK")
E("s_branch K1_GO_LOOP")
L("K1_GO_OK:")
stamp()
E(f"v_max_f32_dpp v{mm}, v{sm}, v{sm} quad_perm:[1,0,3,2] row_mask:0xf bank_mask:0xf")
E("s_nop 1")
E(f"v_max_f32_dpp v{mm}, v{mm}, v{mm} quad_perm:[2,3,0,1] row_mask:0xf bank_mask:0xf")
E("s_nop 1")
E(f"v_max_f32_dpp v{mm}, v{mm}, v{mm} row_half_mirror row_mask:0xf bank_mask:0xf")
E("s_nop 0")
E(f"v_sub_f32 v{sm}, v{sm}, v{mm}")
E(f"v_mul_f32 v{sm}, s{sSC}, v{sm}")
E(f"v_exp_f32 v{sm}, v{sm}")
E("s_nop 0")
E(f"v_mul_f32 v{ll}, v{sm}, v{sm+1}")
E("s_nop 1")
E(f"v_add_f32_dpp v{ll}, v{ll}, v{ll} quad_perm:[1,0,3,2] row_mask:0xf bank_mask:0xf")
E("s_nop 1")
E(f"v_add_f32_dpp v{ll}, v{ll}, v{ll} quad_perm:[2,3,0,1] row_mask:0xf bank_mask:0xf")
E("s_nop 1")
E(f"v_add_f32_dpp v{ll}, v{ll}, v{ll} row_half_mirror row_mask:0xf bank_mask:0xf")
for p in range(8):
    E(f"v_readlane_b32 s{40+p}, v{sm}, {p}")
E(f"v_rcp_f32 v{ll}, v{ll}")
for q in range(2):
    E(f"v_mul_f32 v{vO+q}, s40, v{vGo+q}")
    for p in range(1, 8):
        E(f"v_fmac_f32 v{vO+q}, s{40+p}, v{vGo+4*p+q}")
E(f"v_mul_f32 v{ll}, v{ll}, v{vGg}")
E(f"v_mul_f32 v{vO}, v{vO}, v{ll}")
E(f"v_mul_f32 v{vO+1}, v{vO+1}, v{ll}")
E("v_cmp_gt_u32 vcc, 96, v0")
E(f"s_and_saveexec_b64 s[{sE}:{sE+1}], vcc")
E(f"v_cvt_pk_bf16_f32 v{vO}, v{vO}, v{vO+1}")
E(f"v_lshlrev_b32 v{vT}, 2, v0")
E(f"ds_write_b32 v{vT}, v{vO} offset:{OBF_OFF}")
E(f"s_mov_b64 exec, s[{sE}:{sE+1}]")
E("s_branch K1_T_WAIT")
L("K1_T_H:")
E(f"v_lshlrev_b32 v{vT}, 3, v{vL}")
E(f"ds_read_b64 v[{vT+4}:{vT+5}], v{vT} offset:{GU_OFF}")
E(f"ds_read_b64 v[{vT+6}:{vT+7}], v{vT} offset:{GU_OFF + 192}")
E("s_waitcnt lgkmcnt(0)")
calc_g(vGg, vT + 60)
E(f"v_sub_f32 v{vGg}, 1.0, v{vGg}")
E(f"v_cvt_pk_bf16_f32 v{vT+4}, v{vT+4}, v{vT+5}")
E(f"v_cvt_pk_bf16_f32 v{vT+6}, v{vT+6}, v{vT+7}")
E(f"v_lshlrev_b32 v{vT+8}, 16, v{vT+4}")
E(f"v_and_b32 v{vT+9}, 0xffff0000, v{vT+4}")
E(f"v_lshlrev_b32 v{vT+10}, 16, v{vT+6}")
E(f"v_and_b32 v{vT+11}, 0xffff0000, v{vT+6}")
E(f"v_max_f32 v{vT+8}, 0, v{vT+8}")
E(f"v_max_f32 v{vT+9}, 0, v{vT+9}")
E(f"v_mul_f32 v{vT+8}, v{vT+8}, v{vT+10}")
E(f"v_mul_f32 v{vT+9}, v{vT+9}, v{vT+11}")
E(f"v_cvt_pk_bf16_f32 v{vT+8}, v{vT+8}, v{vT+9}")
E(f"v_lshlrev_b32 v{vT+10}, 16, v{vT+8}")
E(f"v_and_b32 v{vT+11}, 0xffff0000, v{vT+8}")
E(f"v_mul_f32 v{vT+10}, v{vT+10}, v{vGg}")
E(f"v_mul_f32 v{vT+11}, v{vT+11}, v{vGg}")
E(f"v_cvt_pk_bf16_f32 v{vT+8}, v{vT+10}, v{vT+11}")
E(f"v_cmp_gt_u32 vcc, 24, v{vL}")
E("s_nop 1")
E(f"v_cndmask_b32 v{vT+8}, 0, v{vT+8}, vcc")
E(f"v_lshlrev_b32 v{vT}, 2, v{vL}")
E("s_mov_b64 exec, 0xffffffff")
E(f"ds_write_b32 v{vT}, v{vT+8} offset:{OBF_OFF + 384}")
E("s_mov_b64 exec, -1")
L("K1_T_WAIT:")
E("s_waitcnt lgkmcnt(0)")
E("s_barrier")
vB = vT + 4
E(f"v_lshrrev_b32 v{vT}, 3, v{vJ}")
E(f"v_lshl_add_u32 v{vT}, v{vT}, 2, v{vG}")
E(f"v_lshlrev_b32 v{vT}, 1, v{vT}")
E(f"s_lshl_b32 s{sT}, s{sW}, 4")
E(f"v_add_u32 v{vT}, s{sT}, v{vT}")
for k in range(4):
    E(f"ds_read_u16 v{vT+20+k}, v{vT} offset:{OBF_OFF + 128*k}")
E("s_waitcnt lgkmcnt(0)")
for k in range(4):
    E(f"v_lshl_or_b32 v{vT+20+k}, v{vT+20+k}, 16, v{vT+20+k}")
for k in range(4):
    expand(vT + 20 + k, vB + 4*k)
E("s_waitcnt vmcnt(0)")
vY = vT + 24
for k in range(4):
    mfma(vY, vKB + 8*k, vB + 4*k, None if k == 0 else vY)
    mfma(vY + 4, vKB + 8*k + 4, vB + 4*k, None if k == 0 else vY + 4)
E(f"v_lshrrev_b32 v{vT+1}, 3, v{vJ}")
E(f"s_lshl_b32 s{sT}, s{sW}, 1")
E(f"v_add_u32 v{vT+1}, s{sT}, v{vT+1}")
E(f"v_mul_u32_u24 v{vT}, {Y_STR}, v{vT+1}")
E(f"v_and_b32 v{vT+1}, 7, v{vJ}")
E(f"v_lshl_add_u32 v{vT}, v{vT+1}, 2, v{vT}")
E(f"v_lshl_add_u32 v{vT}, v{vG}, 7, v{vT}")
E("s_nop 7")
for r in range(4):
    E(f"v_cndmask_b32 v{vY+r}, v{vY+r}, v{vY+4+r}, s[{sHF}:{sHF+1}]")
for r in range(4):
    E(f"ds_write_b32 v{vT}, v{vY+r} offset:{Y_OFF + r*32}")
E("s_waitcnt lgkmcnt(0)")
E("s_barrier")
E(f"s_cmp_lg_u32 s{sW}, 0")
E("s_cbranch_scc1 K1_PUB3_DONE")
E("s_mov_b32 exec_lo, -1")
E("s_mov_b32 exec_hi, 0xff")
E(f"v_lshlrev_b32 v{vT}, 3, v0")
for s in range(16):
    E(f"ds_read_b64 v[{vT+4+2*s}:{vT+5+2*s}], v{vT} offset:{Y_OFF + s*Y_STR}")
E("s_waitcnt lgkmcnt(0)")
for st in (8, 4, 2, 1):
    for s in range(st):
        for q in range(2):
            E(f"v_add_f32 v{vT+4+2*s+q}, v{vT+4+2*s+q}, v{vT+4+2*(s+st)+q}")
E(f"v_mov_b32 v{vT+6}, s{sTAG}")
E(f"v_mov_b32 v{vT+7}, s{sTAG+1}")
E(f"v_lshlrev_b32 v{vT}, 4, v0")
E(f"s_lshl_b32 s{sT}, s{sC}, 5")
E(f"s_add_u32 s{sT}, s{sT}, s{sH}")
E(f"s_mul_i32 s{sT}, s{sT}, 640")
E(f"s_add_u32 s{sT}, s{sT}, {WS_G3}")
E(f"buffer_store_dwordx4 {vr(vT+4)}, v{vT}, {sr(sWS)}, s{sT} offen sc1")
E("s_mov_b64 exec, -1")
L("K1_PUB3_DONE:")
stamp()
E(f"s_lshl_b32 s{sT}, s{sC}, 2")
E(f"s_cmp_lg_u32 s{sT}, s{sH}")
E("s_cbranch_scc1 K1_STAMPS")
E(f"s_lshl_b32 s{sR0}, s{sC}, 5")
E(f"s_lshl_b32 s{sT}, s{sW}, 2")
E(f"s_add_u32 s{sR0}, s{sR0}, s{sT}")
E(f"s_mul_i32 s{sR0}, s{sR0}, 640")
E(f"s_add_u32 s{sR0}, s{sR0}, {WS_G3}")
E(f"v_lshlrev_b32 v{vT}, 4, v{vL}")
E("s_mov_b32 exec_lo, -1")
E("s_mov_b32 exec_hi, 0xff")
L("K1_GF_LOOP:")
for p in range(4):
    E(f"buffer_load_dwordx4 {vr(vT+4+4*p)}, v{vT}, {sr(sWS)}, s{sR0} offen offset:{640*p} sc1")
E("s_waitcnt vmcnt(0)")
E(f"s_mov_b64 s[{sBAD}:{sBAD+1}], 0")
for p in range(4):
    E(f"v_cmp_ne_u64 vcc, s[{sTAG}:{sTAG+1}], v[{vT+4+4*p+2}:{vT+4+4*p+3}]")
    E(f"s_or_b64 s[{sBAD}:{sBAD+1}], s[{sBAD}:{sBAD+1}], vcc")
E(f"s_cmp_eq_u64 s[{sBAD}:{sBAD+1}], 0")
E("s_cbranch_scc1 K1_GF_OK")
E("s_sub_u32 s3, s3, 1")
E("s_cbranch_scc1 K1_GF_OK")
E("s_sleep 1")
E("s_branch K1_GF_LOOP")
L("K1_GF_OK:")
for p in range(1, 4):
    E(f"v_add_f32 v{vT+4}, v{vT+4}, v{vT+4+4*p}")
    E(f"v_add_f32 v{vT+5}, v{vT+5}, v{vT+5+4*p}")
E(f"v_lshlrev_b32 v{vT}, 3, v{vL}")
E(f"s_mul_i32 s{sT}, s{sW}, 320")
E(f"v_add_u32 v{vT}, s{sT}, v{vT}")
E(f"ds_write_b64 v{vT}, v[{vT+4}:{vT+5}] offset:{FR_OFF}")
E("s_mov_b64 exec, -1")
E("s_waitcnt lgkmcnt(0)")
E("s_barrier")
E(f"s_cmp_lg_u32 s{sW}, 0")
E("s_cbranch_scc1 K1_STAMPS")
E("s_mov_b32 exec_lo, -1")
E("s_mov_b32 exec_hi, 0xff")
E(f"v_lshlrev_b32 v{vT}, 3, v{vL}")
for w in range(8):
    E(f"ds_read_b64 v[{vT+4+2*w}:{vT+5+2*w}], v{vT} offset:{FR_OFF + 320*w}")
E(f"s_mov_b32 s{sWG}, s28")
E(f"s_and_b32 s{sWG+1}, s29, 0xffff")
E(f"s_mov_b32 s{sWG+2}, 1280")
E(f"s_mov_b32 s{sWG+3}, 0x00020000")
E("s_waitcnt lgkmcnt(0)")
for st in (4, 2, 1):
    for s in range(st):
        for q in range(2):
            E(f"v_add_f32 v{vT+4+2*s+q}, v{vT+4+2*s+q}, v{vT+4+2*(s+st)+q}")
E(f"v_cvt_pk_bf16_f32 v{vT+4}, v{vT+4}, v{vT+5}")
E(f"v_lshlrev_b32 v{vT}, 2, v{vL}")
E(f"s_mul_i32 s{sT}, s{sC}, 160")
E(f"buffer_store_dword v{vT+4}, v{vT}, {sr(sWG)}, s{sT} offen")
E(f"s_cmp_lg_u32 s{sC}, 0")
E("s_cbranch_scc1 K1_NOEP")
E("s_mov_b64 exec, 1")
E(f"v_mov_b32 v{vT+6}, s{sTAG}")
E(f"v_mov_b32 v{vT+7}, s{sTAG+1}")
E(f"v_mov_b32 v{vT}, 0")
E(f"buffer_store_dwordx2 v[{vT+6}:{vT+7}], v{vT}, {sr(sWS)}, 0 offen")
L("K1_NOEP:")
E("s_mov_b64 exec, -1")
L("K1_STAMPS:")
if DBG:
    E("s_mov_b64 exec, -1")
    E("s_waitcnt vmcnt(0) lgkmcnt(0)")
    E(f"s_cmp_lg_u32 s{sW}, 0")
    E("s_cbranch_scc1 K1_END")
    E("s_cmp_lg_u32 s93, 0")
    E("s_cbranch_scc1 K1_END")
    E("s_memrealtime s[2:3]")
    E("s_memtime s[6:7]")
    E("s_waitcnt lgkmcnt(0)")
    E("s_sub_u32 s6, s6, s95")
    E("s_sub_u32 s2, s2, s94")
    E("v_mov_b32 v10, 0")
    E("v_writelane_b32 v10, s6, 0")
    E("v_writelane_b32 v10, s2, 1")
    for i in range(1, stamp_n[0]):
        r = stamp_regs[i]
        E(f"s_sub_u32 s6, s{r}, s94")
        E(f"v_writelane_b32 v10, s6, {i+1}")
    E("v_lshlrev_b32 v11, 2, v1")
    E("v_cmp_gt_u32 vcc, 16, v1")
    E("s_and_saveexec_b64 s[86:87], vcc")
    E("global_store_dword v11, v10, s[30:31]")
elif ST:
    E("s_mov_b64 exec, -1")
    E("s_waitcnt vmcnt(0) lgkmcnt(0)")
    E(f"s_cmp_lg_u32 s{sW}, {STW}")
    E("s_cbranch_scc1 K1_END")
    E("s_memrealtime s[2:3]")
    E("s_waitcnt lgkmcnt(0)")
    regs = stamp_regs[:stamp_n[0]]
    for i, r in enumerate(regs):
        E(f"v_writelane_b32 v10, s{r}, {2*i}")
        E(f"v_writelane_b32 v10, s{r+1}, {2*i+1}")
    n = len(regs)
    E(f"v_writelane_b32 v10, s2, {2*n}")
    E(f"v_writelane_b32 v10, s3, {2*n+1}")
    E("v_lshlrev_b32 v11, 2, v1")
    E(f"s_lshl_b32 s39, s93, 7")
    E("s_add_u32 s39, s39, 0x300000")
    E(f"v_cmp_gt_u32 vcc, {2*n+2}, v1")
    E("s_and_saveexec_b64 s[86:87], vcc")
    E(f"buffer_store_dword v10, v11, {sr(sWS)}, s39 offen")
L("K1_END:")
E("s_endpgm")

L('.section .rodata,"a"')
L(".p2align 6")
L(f".amdhsa_kernel {K1}")
L(f"  .amdhsa_next_free_vgpr 256")
L(f"  .amdhsa_next_free_sgpr 102")
L(f"  .amdhsa_accum_offset 256")
L("  .amdhsa_group_segment_fixed_size 0")
L("  .amdhsa_kernarg_size 104")
L("  .amdhsa_user_sgpr_count 2")
L("  .amdhsa_user_sgpr_kernarg_segment_ptr 1")
L("  .amdhsa_system_sgpr_workgroup_id_x 1")
L(".end_amdhsa_kernel")
open(sys.argv[1], 'w').write('\n'.join(out) + '\n')
```

```python
import sys, struct

NAME = "gated_mix__sliding_block_cached__glu_gated_reglu__decode"
out = []
def E(s): out.append("    " + s)
def L(s): out.append(s)

HEADER = open('cdna_kernels/' + NAME + '.s.ref').read().split('\n')
hdr = []
for ln in HEADER:
    if ln.startswith('; @launch') or ln.startswith('.amdgcn_target'):
        break
    hdr.append(ln)

opts = (sys.argv[2] if len(sys.argv) > 2 else "").split(',')
def opt(name, default=None):
    for o in opts:
        if o == name: return True
        if o.startswith(name + '='): return o.split('=')[1]
    return default
NT = " nt" if not opt('nont') else ""
if opt('pol'): NT = " " + opt('pol').replace('+', ' ')
KNT = "" if opt('kplain') else NT
VNT = "" if opt('vplain') else NT
WNT = " nt" if (opt('wnt') or opt('allnt')) else ""
ANT = " nt" if opt('allnt') else ""
ST = opt('st') or opt('dbg')
DBG = opt('dbg')
STW = int(opt('stw', 0))
NK0 = int(opt('nk0', 8))
NV1 = int(opt('nv1', 15))

P0_OFF = 0;      P0_STR = 1312
P2_OFF = 16 * P0_STR;  P2_STR = 800
Y_OFF  = P2_OFF + 16 * P2_STR; Y_STR = 544
QBF_OFF = Y_OFF + 16 * Y_STR
GU_OFF  = QBF_OFF + 384
OBF_OFF = GU_OFF + 384
ST_OFF  = OBF_OFF + 512
Z_OFF   = ST_OFF + 64
FR_OFF  = Z_OFF + 64
LDS_SZ  = FR_OFF + 8 * 320
assert LDS_SZ <= 65536

WS_G0 = 0x1000
WS_G2 = 0x100000
WS_G2A = 0x180000
WS_G3 = 0x200000

SCALE_LOG2E = (192.0 ** -0.5) * 1.4426950408889634
def f32bits(x): return struct.unpack('<I', struct.pack('<f', x))[0]

K1 = NAME + "_kernel"
L('\n'.join(hdr))
L(f"; @launch grid=(256,1,1) block=(512,1,1) lds=65536")
L('.amdgcn_target "amdgcn-amd-amdhsa--gfx950"')
L(".text")
L(f".globl {K1}")
L(".p2align 8")
L(f".type {K1},@function")
L(f"{K1}:")

vL, vG, vJ = 1, 2, 3
vM = [4, 5, 6, 7]
vA = 8
vKB = 40
vVB = 136
vQ = 232

sW, sXCD, sIDX, sH, sC, sT = 34, 35, 36, 37, 38, 39
sK, sV, sWQ, sWO, sWG, sWU, sWD, sX, sWS = 40, 44, 48, 52, 56, 60, 64, 68, 72
sHF = 78
sV2 = 80
sOFF = 82
sSC = 83
sROW = 85
sE = 86
sR0 = 88
sTAG = 4
sBAD = 6
sGW = 76
stamp_regs = [94] + [10, 12, 14, 16, 18, 20, 22, 24, 96, 98, 100, 32, 8]
stamp_n = [0]
def stamp():
    if not ST: return
    r = stamp_regs[stamp_n[0]]; stamp_n[0] += 1
    E(f"s_memrealtime s[{r}:{r+1}]")
def vr(a, n=4): return f"v[{a}:{a+n-1}]"
def sr(a, n=4): return f"s[{a}:{a+n-1}]"

vmq = []
def VM(s, tag):
    E(s); vmq.append(tag)
def WAIT(tag):
    idx = max(i for i, t in enumerate(vmq) if t == tag)
    n = len(vmq) - 1 - idx
    assert n <= 63, n
    E(f"s_waitcnt vmcnt({n})")

def srd(dst, plo, off_s, nrec):
    E(f"s_add_u32 s{dst}, s{plo}, s{off_s}")
    E(f"s_addc_u32 s{dst+1}, s{plo+1}, 0")
    E(f"s_and_b32 s{dst+1}, s{dst+1}, 0xffff")
    E(f"s_mov_b32 s{dst+2}, {nrec}")
    E(f"s_mov_b32 s{dst+3}, 0x00020000")

def dpp_reduce(regs):
    for ctl in ["row_shr:1", "row_shr:2", "row_shr:4", "row_shr:8"]:
        for r in regs:
            E(f"v_add_f32_dpp v{r}, v{r}, v{r} {ctl} row_mask:0xf bank_mask:0xf bound_ctrl:0")
        if len(regs) < 3: E("s_nop 1")
    for r in regs:
        E(f"v_add_f32_dpp v{r}, v{r}, v{r} row_bcast:15 row_mask:0xa bank_mask:0xf")
    if len(regs) < 3: E("s_nop 1")
    for r in regs:
        E(f"v_add_f32_dpp v{r}, v{r}, v{r} row_bcast:31 row_mask:0xc bank_mask:0xf")

def expand(dup, dst):
    for w in range(4):
        E(f"v_and_b32 v{dst+w}, v{dup}, v{vM[w]}")

def mfma(d, a, b, c):
    E(f"v_mfma_f32_16x16x32_bf16 {vr(d)}, {vr(a)}, {vr(b)}, {'0' if c is None else vr(c)}")

E("s_cmp_ge_u32 s2, 256")
E("s_cbranch_scc1 K1_END")
if opt('perm'):
    E("s_lshr_b32 s3, s2, 3")
    E("s_and_b32 s2, s2, 7")
    E("s_lshl_b32 s2, s2, 5")
    E("s_or_b32 s2, s2, s3")
if ST: E("s_mov_b32 s93, s2")
stamp()
if DBG: E("s_memtime s[6:7]")
E("s_load_dwordx16 s[8:23], s[0:1], 0")
E("s_load_dwordx8 s[24:31], s[0:1], 64")
E("s_load_dwordx2 s[32:33], s[0:1], 96")
E(f"v_and_b32 v{vL}, 63, v0")
E(f"v_bfe_u32 v{vG}, v0, 4, 2")
E(f"v_and_b32 v{vJ}, 15, v0")
E(f"v_lshrrev_b32 v{vA}, 6, v0")
E("s_nop 0")
E(f"v_readfirstlane_b32 s{sW}, v{vA}")
E(f"s_and_b32 s{sXCD}, s2, 7")
E(f"s_lshr_b32 s{sIDX}, s2, 3")
E(f"s_and_b32 s{sH}, s{sIDX}, 3")
E(f"s_lshl_b32 s{sT}, s{sXCD}, 2")
E(f"s_add_u32 s{sH}, s{sH}, s{sT}")
E(f"s_lshr_b32 s{sC}, s{sIDX}, 2")
E(f"s_lshl_b32 s{sROW}, s{sH}, 3")
E(f"s_add_u32 s{sROW}, s{sROW}, s{sC}")
sROT = 84
if opt('norot'):
    E(f"s_mov_b32 s{sROT}, 0")
else:
    E(f"s_mul_i32 s{sROT}, s{sH}, 5")
    E(f"s_mul_i32 s{sT}, s{sC}, 3")
    E(f"s_add_u32 s{sROT}, s{sROT}, s{sT}")
    if opt('rotw'): E(f"s_add_u32 s{sROT}, s{sROT}, s{sW}")
    E(f"s_and_b32 s{sROT}, s{sROT}, 7")
E("s_mov_b32 s3, 0x40003")
E(f"s_mov_b32 s{sHF}, 0xFF00FF00")
E(f"s_mov_b32 s{sHF+1}, 0xFF00FF00")
E(f"s_mov_b32 s{sV2}, 0x00FF00FF")
E(f"s_mov_b32 s{sV2+1}, 0xFF00FF00")
E(f"s_mov_b32 s{sSC}, 0x{f32bits(SCALE_LOG2E):08x}")
t0, t1, t2, t3 = vA, vA+1, vA+2, vA+3
E(f"v_and_b32 v{t0}, 1, v{vJ}")
E(f"v_lshlrev_b32 v{t0}, 4, v{t0}")
E(f"v_mov_b32 v{t1}, 0xffff")
E(f"v_lshlrev_b32 v{t1}, v{t0}, v{t1}")
E(f"v_bfe_u32 v{t2}, v{vJ}, 1, 2")
for w in range(4):
    E(f"v_cmp_eq_u32 vcc, {w}, v{t2}")
    E("s_nop 1")
    E(f"v_cndmask_b32 v{vM[w]}, 0, v{t1}, vcc")
vHF, vGH, vJ7 = vA, vA+1, vA+2
E(f"v_lshrrev_b32 v{vHF}, 3, v{vJ}")
E(f"v_lshl_add_u32 v{vGH}, v{vHF}, 2, v{vG}")
E(f"v_and_b32 v{vJ7}, 7, v{vJ}")
oWA, oWA2, oWB, oG, oX, oKa, oKb, oGX = 32, 33, 34, 35, 36, 38, 39, 37
E(f"v_mul_u32_u24 v{oWA}, 12288, v{vG}")
E(f"v_lshl_add_u32 v{oWA}, v{vJ}, 4, v{oWA}")
E(f"v_add_u32 v{oWA2}, 49152, v{oWA}")
E(f"v_mul_u32_u24 v{oWB}, 12288, v{vGH}")
E(f"v_lshl_add_u32 v{oWB}, v{vJ7}, 4, v{oWB}")
E(f"v_add_u32 v{oWB}, 256, v{oWB}")
E(f"v_mul_u32_u24 v{oG}, 3072, v{vGH}")
E(f"v_lshl_add_u32 v{oG}, v{vJ7}, 4, v{oG}")
E(f"v_mov_b32 v{t3}, 0x40000000")
E(f"v_cmp_gt_u32 vcc, 6, v{vJ7}")
E("s_nop 1")
E(f"v_cndmask_b32 v{oG}, v{t3}, v{oG}, vcc")
E(f"v_lshlrev_b32 v{oX}, 1, v{vGH}")
E(f"v_lshlrev_b32 v{oGX}, 2, v0")
oK = [[252, 253], [254, 255]]
for Q in range(2):
    a_, b_ = oK[Q]
    E(f"v_and_b32 v{a_}, 3, v{vJ}")
    E(f"v_add_u32 v{a_}, s{sROT}, v{a_}")
    if Q: E(f"v_add_u32 v{a_}, 4, v{a_}")
    E(f"v_and_b32 v{a_}, 7, v{a_}")
    E(f"v_lshlrev_b32 v{a_}, 3, v{a_}")
    E(f"v_bfe_u32 v{t3}, v{vJ}, 2, 1")
    E(f"v_add_u32 v{a_}, v{a_}, v{t3}")
    E(f"v_mul_u32_u24 v{a_}, 384, v{a_}")
    E(f"v_lshl_add_u32 v{a_}, v{vG}, 4, v{a_}")
    E(f"v_lshlrev_b32 v{t3}, 6, v{vHF}")
    E(f"v_sub_u32 v{b_}, v{a_}, v{t3}")
    E(f"v_add_u32 v{b_}, 64, v{b_}")
    E(f"v_add_u32 v{a_}, v{a_}, v{t3}")
E("s_waitcnt lgkmcnt(0)")
if DBG: E("s_mov_b32 s95, s6")
E(f"s_load_dwordx2 s[{sTAG}:{sTAG+1}], s[32:33], 0")
E(f"s_mul_i32 s{sT}, s{sH}, 12582912")
E(f"s_mul_i32 s{sOFF}, s{sC}, 24576")
E(f"s_add_u32 s{sT}, s{sT}, s{sOFF}")
E(f"s_mul_i32 s{sOFF}, s{sW}, 196608")
E(f"s_add_u32 s{sT}, s{sT}, s{sOFF}")
E(f"s_add_u32 s{sT}, s{sT}, 11010048")
srd(sK, 10, sT, 24576)
srd(sV, 12, sT, 24576)
E(f"s_mul_i32 s{sR0}, s{sC}, 80")
E(f"s_lshl_b32 s{sOFF}, s{sW}, 3")
E(f"s_add_u32 s{sR0}, s{sR0}, s{sOFF}")
E(f"s_mul_i32 s{sT}, s{sR0}, 12288")
E(f"s_mul_i32 s{sOFF}, s{sH}, 384")
E(f"s_add_u32 s{sT}, s{sT}, s{sOFF}")
srd(sWQ, 14, sT, 72 * 12288)
E(f"s_mul_i32 s{sT}, s{sR0}, 3072")
E(f"s_mul_i32 s{sOFF}, s{sH}, 96")
E(f"s_add_u32 s{sT}, s{sT}, s{sOFF}")
srd(sWG, 20, sT, 72 * 3072)
srd(sWU, 22, sT, 72 * 3072)
E(f"s_lshl_b32 s{sR0+1}, s{sR0}, 1")
E(f"s_mov_b32 s{sT}, 0")
srd(sX, 8, sT, 1280)
srd(sWS, 32, sT, 0x400000)
E(f"s_cmp_lt_u32 s{sW}, 2")
E(f"s_cselect_b32 s{sR0+2}, 786432, 0x40000000")
E(f"s_cselect_b32 s{sR0+3}, 196608, 0x40000000")
GOFF = [0, 2, 6, 4]
def kload(n):
    Q, gi, s = n // 12, (n // 3) % 4, n % 3
    b = vKB + n * 4
    va = oK[Q][0] if gi in (0, 2) else oK[Q][1]
    VM(f"buffer_load_dwordx4 {vr(b)}, v{va}, {sr(sK)}, 0 offen offset:{GOFF[gi]*384+s*128}{KNT}", f"K{Q}{gi}")
vX0, vX1, vGX, vGW = vA+4, vA+5, vA+6, vA+7
VM(f"buffer_load_ushort v{vX0}, v{oX}, {sr(sX)}, s{sR0+1} offen", "X")
VM(f"buffer_load_ushort v{vX1}, v{oX}, {sr(sX)}, s{sR0+1} offen offset:128", "X")
def p0reg(k, q): return vVB + 20 * k + 4 * q
VM(f"buffer_load_dwordx4 {vr(p0reg(0,0))}, v{oWA}, {sr(sWQ)}, 0 offen{WNT}", "P0")
VM(f"buffer_load_dwordx4 {vr(p0reg(0,1))}, v{oWA2}, {sr(sWQ)}, 0 offen{WNT}", "P0")
VM(f"buffer_load_dwordx4 {vr(p0reg(0,2))}, v{oWB}, {sr(sWQ)}, 0 offen{WNT}", "P0")
VM(f"buffer_load_dwordx4 {vr(p0reg(0,3))}, v{oG}, {sr(sWG)}, 0 offen{ANT}", "P0")
VM(f"buffer_load_dwordx4 {vr(p0reg(0,4))}, v{oG}, {sr(sWU)}, 0 offen{ANT}", "P0")
for o_, s_ in ((oWA, sR0+2), (oWA2, sR0+2), (oWB, sR0+2), (oG, sR0+3)):
    E(f"v_add_u32 v{o_}, s{s_}, v{o_}")
VM(f"buffer_load_dwordx4 {vr(p0reg(1,0))}, v{oWA}, {sr(sWQ)}, 0 offen{WNT}", "P1")
VM(f"buffer_load_dwordx4 {vr(p0reg(1,1))}, v{oWA2}, {sr(sWQ)}, 0 offen{WNT}", "P1")
VM(f"buffer_load_dwordx4 {vr(p0reg(1,2))}, v{oWB}, {sr(sWQ)}, 0 offen{WNT}", "P1")
VM(f"buffer_load_dwordx4 {vr(p0reg(1,3))}, v{oG}, {sr(sWG)}, 0 offen{ANT}", "P1")
VM(f"buffer_load_dwordx4 {vr(p0reg(1,4))}, v{oG}, {sr(sWU)}, 0 offen{ANT}", "P1")
E(f"s_mov_b32 s{sWO}, s26")
E(f"s_and_b32 s{sWO+1}, s27, 0xffff")
E(f"s_mov_b32 s{sWO+2}, 1280")
E(f"s_mov_b32 s{sWO+3}, 0x00020000")
VM(f"buffer_load_dword v{vGX}, v{oGX}, {sr(sX)}, 0 offen", "G")
VM(f"buffer_load_dword v{vGW}, v{oGX}, {sr(sWO)}, 0 offen", "G")
E(f"s_mul_i32 s{sT}, s{sH}, 245760")
E(f"s_mul_i32 s{sOFF}, s{sC}, 160")
E(f"s_add_u32 s{sT}, s{sT}, s{sOFF}")
srd(sWO, 16, sT, 245760 - 1120)
E(f"s_mul_i32 s{sT}, s{sH}, 61440")
E(f"s_add_u32 s{sT}, s{sT}, s{sOFF}")
srd(sWD, 24, sT, 61440 - 1120)
E(f"s_mov_b32 s{sOFF}, 12288")
for n in range(NK0): kload(n)
stamp()
vAC = 16
vBX = vQ
WAIT("X")
E(f"v_lshl_or_b32 v{vX0}, v{vX0}, 16, v{vX0}")
E(f"v_lshl_or_b32 v{vX1}, v{vX1}, 16, v{vX1}")
expand(vX0, vBX)
expand(vX1, vBX + 4)
WAIT("P0")
for q in range(5):
    mfma(vAC + 4*q, p0reg(0, q), vBX, None)
WAIT("P1")
for q in range(5):
    mfma(vAC + 4*q, p0reg(1, q), vBX + 4, vAC + 4*q)
WAIT("G")
E(f"v_lshlrev_b32 v{vX0}, 16, v{vGX}")
E(f"v_and_b32 v{vGX}, 0xffff0000, v{vGX}")
E(f"v_lshlrev_b32 v{vX1}, 16, v{vGW}")
E(f"v_and_b32 v{vGW}, 0xffff0000, v{vGW}")
E(f"v_mul_f32 v{vX0}, v{vX0}, v{vX1}")
E(f"v_fmac_f32 v{vX0}, v{vGX}, v{vGW}")
E("s_nop 1")
dpp_reduce([vX0])
a1, a2, tt = vA, vA+1, vA+2
E(f"v_lshrrev_b32 v{tt}, 3, v{vJ}")
E(f"s_lshl_b32 s{sT}, s{sW}, 1")
E(f"v_add_u32 v{tt}, s{sT}, v{tt}")
E(f"v_mul_u32_u24 v{a1}, {P0_STR}, v{tt}")
E(f"v_and_b32 v{tt}, 7, v{vJ}")
E(f"v_lshl_add_u32 v{a1}, v{tt}, 2, v{a1}")
E(f"v_and_b32 v{tt}, 1, v{vG}")
E(f"v_lshl_add_u32 v{a2}, v{tt}, 7, v{a1}")
E(f"v_lshl_add_u32 v{a1}, v{vG}, 7, v{a1}")
E(f"s_lshl_b32 s{sT}, s{sW}, 2")
E(f"v_mov_b32 v{tt}, s{sT}")
E("s_mov_b32 exec_lo, 0")
E("s_mov_b32 exec_hi, 0x80000000")
E(f"ds_write_b32 v{tt}, v{vX0} offset:{Z_OFF}")
E("s_mov_b64 exec, -1")
E("s_nop 3")
for r in range(4):
    E(f"v_cndmask_b32 v{vAC+r}, v{vAC+r}, v{vAC+4+r}, s[{sHF}:{sHF+1}]")
for r in range(4):
    E(f"ds_write_b32 v{a1}, v{vAC+r} offset:{P0_OFF + r*32}")
E(f"s_mov_b64 exec, s[{sV2}:{sV2+1}]")
for q in range(3):
    for r in range(4):
        E(f"ds_write_b32 v{a2}, v{vAC+8+4*q+r} offset:{P0_OFF + 512 + 256*q + r*32}")
E("s_mov_b64 exec, -1")
E("s_waitcnt lgkmcnt(0)")
E("s_barrier")
stamp()
E(f"s_add_u32 s{sTAG}, s{sTAG}, 1")
E(f"s_addc_u32 s{sTAG+1}, s{sTAG+1}, 0")
E(f"s_cmp_ge_u32 s{sW}, 3")
E("s_cbranch_scc1 K1_PUB0_DONE")
E("v_cmp_gt_u32 vcc, 144, v0")
E(f"s_and_saveexec_b64 s[{sE}:{sE+1}], vcc")
E(f"v_lshlrev_b32 v{vA}, 3, v0")
E(f"v_add_u32 v{vA+1}, 64, v{vA}")
E("v_cmp_gt_u32 vcc, 120, v0")
E("s_nop 1")
E(f"v_cndmask_b32 v{vA}, v{vA+1}, v{vA}, vcc")
vR = vQ - 36
for s in range(16):
    E(f"ds_read_b64 v[{vR+2*s}:{vR+2*s+1}], v{vA} offset:{P0_OFF + s*P0_STR}")
E("s_waitcnt lgkmcnt(0)")
for st in (8, 4, 2, 1):
    for s in range(st):
        for q in range(2):
            E(f"v_add_f32 v{vR+2*s+q}, v{vR+2*s+q}, v{vR+2*(s+st)+q}")
E(f"v_mov_b32 v{vR+2}, s{sTAG}")
E(f"v_mov_b32 v{vR+3}, s{sTAG+1}")
E(f"v_lshlrev_b32 v{vA}, 4, v0")
E(f"s_mul_i32 s{sT}, s{sROW}, 2304")
E(f"s_add_u32 s{sT}, s{sT}, {WS_G0}")
E(f"buffer_store_dwordx4 {vr(vR)}, v{vA}, {sr(sWS)}, s{sT} offen sc1")
E(f"s_mov_b64 exec, s[{sE}:{sE+1}]")
E("s_nop 1")
L("K1_PUB0_DONE:")
for n in range(NK0, 24): kload(n)
vGa = vR
E(f"s_mul_i32 s{sT}, s{sW}, 288")
E(f"v_lshlrev_b32 v{vA}, 4, v{vL}")
E(f"v_add_u32 v{vA}, s{sT}, v{vA}")
E(f"s_mul_i32 s{sR0}, s{sH}, {8*2304}")
E(f"s_add_u32 s{sR0}, s{sR0}, {WS_G0}")
E("s_mov_b64 exec, 0x3ffff")
def gather_q():
    for p in range(8):
        E(f"s_add_u32 s{sT}, s{sR0}, {p*2304}")
        VM(f"buffer_load_dwordx4 {vr(vGa+4*p)}, v{vA}, {sr(sWS)}, s{sT} offen sc1", "GQ")
gather_q()
E("s_mov_b64 exec, -1")
oVA, oVB = 38, 39
E(f"v_mul_u32_u24 v{oVA}, 384, v{vG}")
E(f"v_lshl_add_u32 v{oVA}, v{vJ}, 4, v{oVA}")
E(f"v_lshrrev_b32 v{vA+1}, 3, v{vJ}")
E(f"v_lshl_add_u32 v{vA+1}, v{vA+1}, 2, v{vG}")
E(f"v_mul_u32_u24 v{oVB}, 384, v{vA+1}")
E(f"v_and_b32 v{vA+1}, 7, v{vJ}")
E(f"v_lshl_add_u32 v{oVB}, v{vA+1}, 4, v{oVB}")
E(f"v_add_u32 v{oVB}, 256, v{oVB}")
def vload(n):
    k, q = n // 3, n % 3
    b = vVB + 12 * k + 4 * q
    if q == 0 or n == NV1:
        E(f"s_add_u32 s{sOFF}, s{sROT}, {k}")
        E(f"s_and_b32 s{sOFF}, s{sOFF}, 7")
        E(f"s_mul_i32 s{sOFF}, s{sOFF}, 3072")
    if q < 2:
        VM(f"buffer_load_dwordx4 {vr(b)}, v{oVA}, {sr(sV)}, s{sOFF} offen offset:{q*1536}{VNT}", f"V{k}")
    else:
        VM(f"buffer_load_dwordx4 {vr(b)}, v{oVB}, {sr(sV)}, s{sOFF} offen{VNT}", f"V{k}")
for n in range(NV1): vload(n)
stamp()
WAIT("GQ")
E("s_mov_b64 exec, 0x3ffff")
L("K1_GQ_CHECK:")
E(f"s_mov_b64 s[{sBAD}:{sBAD+1}], 0")
for p in range(8):
    E(f"v_cmp_ne_u64 vcc, s[{sTAG}:{sTAG+1}], v[{vGa+4*p+2}:{vGa+4*p+3}]")
    E(f"s_or_b64 s[{sBAD}:{sBAD+1}], s[{sBAD}:{sBAD+1}], vcc")
E(f"s_cmp_eq_u64 s[{sBAD}:{sBAD+1}], 0")
E("s_cbranch_scc1 K1_GQ_OK")
E("s_sub_u32 s3, s3, 1")
E("s_cbranch_scc1 K1_GQ_OK")
E("s_sleep 2")
sv = list(vmq)
gather_q()
vmq[:] = sv
E("s_waitcnt vmcnt(0)")
E("s_branch K1_GQ_CHECK")
L("K1_GQ_OK:")
for p in range(1, 8):
    E(f"v_add_f32 v{vGa}, v{vGa}, v{vGa+4*p}")
    E(f"v_add_f32 v{vGa+1}, v{vGa+1}, v{vGa+4*p+1}")
E(f"s_mul_i32 s{sT}, s{sW}, 18")
E(f"v_add_u32 v{vA}, s{sT}, v{vL}")
E(f"v_cvt_pk_bf16_f32 v{vA+1}, v{vGa}, v{vGa+1}")
E(f"v_lshlrev_b32 v{vA+2}, 2, v{vA}")
E(f"v_lshlrev_b32 v{vA+3}, 3, v{vA}")
E(f"v_cmp_gt_u32 vcc, 96, v{vA}")
E(f"s_and_saveexec_b64 s[{sE}:{sE+1}], vcc")
E(f"ds_write_b32 v{vA+2}, v{vA+1} offset:{QBF_OFF}")
E(f"s_andn2_b64 exec, s[{sE}:{sE+1}], vcc")
E(f"ds_write_b64 v{vA+3}, v[{vGa}:{vGa+1}] offset:{GU_OFF - 96*8}")
E("s_mov_b64 exec, -1")
E("s_waitcnt lgkmcnt(0)")
E("s_barrier")
stamp()
E(f"v_lshrrev_b32 v{vA+1}, 3, v{vJ}")
E(f"v_lshlrev_b32 v{vA+1}, 6, v{vA+1}")
E(f"v_lshl_add_u32 v{vA}, v{vG}, 4, v{vA+1}")
for s in range(3):
    E(f"ds_read_b128 {vr(vQ+4*s)}, v{vA} offset:{QBF_OFF + 128*s}")
E(f"v_xor_b32 v{vA+2}, 40, v{vL}")
E(f"v_lshlrev_b32 v{vA+2}, 2, v{vA+2}")
E("s_waitcnt lgkmcnt(0)")
vS = 16
vD = 16
vF = vQ + 12
for Q in range(2):
    for gi in range(4):
        WAIT(f"K{Q}{gi}")
        for s in range(3):
            b = vKB + ((Q * 4 + gi) * 3 + s) * 4
            mfma(vD + 4*gi, b, vQ + 4*s, None if s == 0 else vD + 4*gi)
    E("s_nop 7")
    for r in range(4):
        a, b_, c_, d = vD + r, vD + 4 + r, vD + 8 + r, vD + 12 + r
        u1, u2 = vA + 4, vA + 5
        E(f"v_cndmask_b32 v{u1}, v{b_}, v{a}, s[{sV2}:{sV2+1}]")
        E(f"v_cndmask_b32 v{u2}, v{d}, v{c_}, s[{sV2}:{sV2+1}]")
        E(f"v_cndmask_b32 v{vF+4*Q+r}, v{u1}, v{u2}, s[{sHF}:{sHF+1}]")
        E(f"v_cndmask_b32 v{a}, v{u2}, v{u1}, s[{sHF}:{sHF+1}]")
    for r in range(4):
        E(f"ds_bpermute_b32 v{vD+4+r}, v{vA+2}, v{vD+r}")
    E("s_waitcnt lgkmcnt(0)")
    for r in range(4):
        E(f"v_add_f32 v{vF+4*Q+r}, v{vF+4*Q+r}, v{vD+4+r}")
for r in range(8):
    E(f"v_mov_b32 v{vS+r}, v{vF+r}")
stamp()
for n in range(NV1, 24): vload(n)
oWO = vA
E(f"v_mul_u32_u24 v{oWO}, 1280, v{vG}")
E(f"v_lshl_add_u32 v{oWO}, v{vJ}, 4, v{oWO}")
E(f"v_mov_b32 v{vA+1}, 0x40000000")
E(f"v_cmp_gt_u32 vcc, 10, v{vJ}")
E("s_nop 1")
E(f"v_cndmask_b32 v{oWO}, v{vA+1}, v{oWO}, vcc")
E(f"s_mul_i32 s{sOFF}, s{sW}, 10240")
for k in range(3):
    E(f"s_add_u32 s{sT}, s{sOFF}, {k*81920}")
    VM(f"buffer_load_dwordx4 {vr(vKB+8*k)}, v{oWO}, {sr(sWO)}, s{sT} offen{ANT}", "WO")
    E(f"s_add_u32 s{sT}, s{sOFF}, {k*81920 + 5120}")
    VM(f"buffer_load_dwordx4 {vr(vKB+8*k+4)}, v{oWO}, {sr(sWO)}, s{sT} offen{ANT}", "WO")
E(f"s_cmp_lt_u32 s{sW}, 6")
E(f"s_cselect_b32 s{sT}, 0, 0x40000000")
E(f"v_add_u32 v{vA+1}, s{sT}, v{oWO}")
E(f"v_or_b32 v{vA+1}, v{vA+1}, v{oWO}")
VM(f"buffer_load_dwordx4 {vr(vKB+24)}, v{vA+1}, {sr(sWD)}, s{sOFF} offen{ANT}", "WO")
E(f"s_add_u32 s{sT}, s{sOFF}, 5120")
VM(f"buffer_load_dwordx4 {vr(vKB+28)}, v{vA+1}, {sr(sWD)}, s{sT} offen{ANT}", "WO")
t = vA + 1
E(f"v_max3_f32 v{t}, v{vS}, v{vS+1}, v{vS+2}")
E(f"v_max3_f32 v{t}, v{t}, v{vS+3}, v{vS+4}")
E(f"v_max3_f32 v{t}, v{t}, v{vS+5}, v{vS+6}")
E(f"v_max_f32 v{t}, v{t}, v{vS+7}")
E("s_nop 1")
E(f"v_max_f32_dpp v{t}, v{t}, v{t} row_ror:8 row_mask:0xf bank_mask:0xf")
E("s_nop 1")
for q in range(4):
    E(f"v_readlane_b32 s{sR0+q}, v{t}, {16*q}")
E("s_nop 1")
E(f"v_mov_b32 v{t}, s{sR0}")
E(f"v_max_f32 v{t}, s{sR0+1}, v{t}")
E(f"v_max_f32 v{t}, s{sR0+2}, v{t}")
E(f"v_max_f32 v{t}, s{sR0+3}, v{t}")
E(f"s_lshl_b32 s{sT}, s{sW}, 2")
E(f"v_mov_b32 v{t+1}, s{sT}")
E(f"ds_write_b32 v{t+1}, v{t} offset:{ST_OFF}")
E(f"v_mul_f32 v{t}, s{sSC}, v{t}")
for r in range(8):
    E(f"v_fma_f32 v{vS+r}, v{vS+r}, s{sSC}, -v{t}")
for r in range(8):
    E(f"v_exp_f32 v{vS+r}, v{vS+r}")
E("s_nop 0")
t2 = vA + 3
E(f"v_add_f32 v{t2}, v{vS}, v{vS+1}")
for r in range(2, 8):
    E(f"v_add_f32 v{t2}, v{t2}, v{vS+r}")
E("s_nop 1")
E(f"v_add_f32_dpp v{t2}, v{t2}, v{t2} row_ror:8 row_mask:0xf bank_mask:0xf")
E("s_nop 1")
for q in range(4):
    E(f"v_readlane_b32 s{sR0+q}, v{t2}, {16*q}")
E("s_nop 1")
E(f"v_mov_b32 v{t2}, s{sR0}")
E(f"v_add_f32 v{t2}, s{sR0+1}, v{t2}")
E(f"v_add_f32 v{t2}, s{sR0+2}, v{t2}")
E(f"v_add_f32 v{t2}, s{sR0+3}, v{t2}")
E(f"ds_write_b32 v{t+1}, v{t2} offset:{ST_OFF+32}")
for r in range(8):
    E(f"v_cvt_pk_bf16_f32 v{vS+r}, v{vS+r}, v{vS+r}")
E("s_waitcnt lgkmcnt(0)")
stamp()
vPA = vS + 8
vBP = vA
for k in range(8):
    expand(vS + k, vBP)
    WAIT(f"V{k}")
    E("s_nop 0")
    b = vVB + 12 * k
    for q in range(3):
        mfma(vPA + 4*q, b + 4*q, vBP, None if k == 0 else vPA + 4*q)
stamp()
a1, a2, tt = vS, vS+1, vS+2
E(f"v_lshrrev_b32 v{tt}, 3, v{vJ}")
E(f"s_lshl_b32 s{sT}, s{sW}, 1")
E(f"v_add_u32 v{tt}, s{sT}, v{tt}")
E(f"v_mul_u32_u24 v{a1}, {P2_STR}, v{tt}")
E(f"v_and_b32 v{tt}, 7, v{vJ}")
E(f"v_lshl_add_u32 v{a1}, v{tt}, 2, v{a1}")
E(f"v_and_b32 v{tt}, 1, v{vG}")
E(f"v_lshl_add_u32 v{a2}, v{tt}, 7, v{a1}")
E(f"v_lshl_add_u32 v{a1}, v{vG}, 7, v{a1}")
E("s_nop 7")
for r in range(4):
    E(f"v_cndmask_b32 v{vPA+r}, v{vPA+r}, v{vPA+4+r}, s[{sHF}:{sHF+1}]")
for r in range(4):
    E(f"ds_write_b32 v{a1}, v{vPA+r} offset:{P2_OFF + r*32}")
E(f"s_mov_b64 exec, s[{sV2}:{sV2+1}]")
for r in range(4):
    E(f"ds_write_b32 v{a2}, v{vPA+8+r} offset:{P2_OFF + 512 + r*32}")
E("s_mov_b64 exec, -1")
E("s_waitcnt lgkmcnt(0)")
E("s_barrier")
stamp()
vT = vVB
E(f"v_mov_b32 v{vT+1}, 0")
for w in range(5):
    E(f"ds_read_b32 v{vT+60+w}, v{vT+1} offset:{Z_OFF + 4*w}")
E(f"s_cmp_ge_u32 s{sW}, 3")
E("s_cbranch_scc1 K1_T_WAIT")
E(f"s_cmp_eq_u32 s{sW}, 2")
E("s_cbranch_scc1 K1_T_H")
E(f"v_lshlrev_b32 v{vT}, 3, v0")
E(f"ds_read_b128 {vr(vT+4)}, v{vT+1} offset:{ST_OFF}")
E(f"ds_read_b128 {vr(vT+8)}, v{vT+1} offset:{ST_OFF+16}")
E(f"ds_read_b128 {vr(vT+12)}, v{vT+1} offset:{ST_OFF+32}")
E(f"ds_read_b128 {vr(vT+16)}, v{vT+1} offset:{ST_OFF+48}")
for s in range(16):
    E(f"ds_read_b64 v[{vT+20+2*s}:{vT+21+2*s}], v{vT} offset:{P2_OFF + s*P2_STR}")
E("s_waitcnt lgkmcnt(0)")
mm, ll = vT + 2, vT + 3
E(f"v_max3_f32 v{mm}, v{vT+4}, v{vT+5}, v{vT+6}")
E(f"v_max3_f32 v{mm}, v{mm}, v{vT+7}, v{vT+8}")
E(f"v_max3_f32 v{mm}, v{mm}, v{vT+9}, v{vT+10}")
E(f"v_max_f32 v{mm}, v{mm}, v{vT+11}")
for w in range(8):
    E(f"v_sub_f32 v{vT+4+w}, v{vT+4+w}, v{mm}")
for w in range(8):
    E(f"v_mul_f32 v{vT+4+w}, s{sSC}, v{vT+4+w}")
for w in range(8):
    E(f"v_exp_f32 v{vT+4+w}, v{vT+4+w}")
E("s_nop 0")
E(f"v_mul_f32 v{ll}, v{vT+4}, v{vT+12}")
for w in range(1, 8):
    E(f"v_fmac_f32 v{ll}, v{vT+4+w}, v{vT+12+w}")
for w in range(8):
    for q in range(2):
        E(f"v_add_f32 v{vT+20+4*w+q}, v{vT+20+4*w+q}, v{vT+22+4*w+q}")
vO = vT + 52
for q in range(2):
    E(f"v_mul_f32 v{vO+q}, v{vT+4}, v{vT+20+q}")
    for w in range(1, 8):
        E(f"v_fmac_f32 v{vO+q}, v{vT+4+w}, v{vT+20+4*w+q}")
E("v_cmp_eq_u32 vcc, 96, v0")
E(f"v_lshlrev_b32 v{vT+56}, 4, v0")
E(f"v_add_u32 v{vT+56}, 16, v{vT+56}")
E(f"v_cndmask_b32 v{vO}, v{vO}, v{mm}, vcc")
E(f"v_cndmask_b32 v{vO+1}, v{vO+1}, v{ll}, vcc")
E(f"v_cndmask_b32 v{vT+57}, v{vT+56}, 0, vcc")
E(f"v_mov_b32 v{vO+2}, s{sTAG}")
E(f"v_mov_b32 v{vO+3}, s{sTAG+1}")
E(f"s_lshl_b32 s{sT}, s{sROW}, 11")
E(f"s_add_u32 s{sT}, s{sT}, {WS_G2}")
E("v_cmp_gt_u32 vcc, 97, v0")
E(f"s_and_saveexec_b64 s[{sE}:{sE+1}], vcc")
E(f"s_add_u32 s{sOFF}, s{sT}, {WS_G2A - WS_G2}")
E(f"buffer_store_dwordx4 {vr(vO)}, v{vT+57}, {sr(sWS)}, s{sOFF} offen")
E(f"buffer_store_dwordx4 {vr(vO)}, v{vT+57}, {sr(sWS)}, s{sT} offen sc1")
E(f"s_mov_b64 exec, s[{sE}:{sE+1}]")
stamp()
def calc_g(dst, z):
    for w in range(1, 5):
        E(f"v_add_f32 v{z}, v{z}, v{z+w}")
    E(f"v_mul_f32 v{dst}, 0xbfb8aa3b, v{z}")
    E(f"v_exp_f32 v{dst}, v{dst}")
    E("s_nop 0")
    E(f"v_add_f32 v{dst}, 1.0, v{dst}")
    E(f"v_rcp_f32 v{dst}, v{dst}")
    E("s_nop 0")
vGg = vT + 58
calc_g(vGg, vT + 60)
E(f"s_lshl_b32 s{sR0}, s{sH}, 14")
E(f"s_add_u32 s{sR0}, s{sR0}, {WS_G2}")
vGo = vKB + 32
sm = vGo + 32
E(f"v_min_u32 v{vT+56}, {96*16}, v{vT+56}")
E(f"v_and_b32 v{vT+59}, 7, v{vL}")
E(f"v_lshlrev_b32 v{vT+59}, 11, v{vT+59}")
L("K1_GO_LOOP:")
E("s_and_b32 s92, s3, 3")
E("s_cmp_eq_u32 s92, 0")
E(f"s_cselect_b32 s92, 0, {WS_G2A - WS_G2}")
E(f"s_add_u32 s92, s92, s{sR0}")
E(f"buffer_load_dwordx4 {vr(sm)}, v{vT+59}, {sr(sWS)}, s92 offen sc1")
for p in range(8):
    E(f"buffer_load_dwordx4 {vr(vGo+4*p)}, v{vT+56}, {sr(sWS)}, s92 offen offset:{(p*2048) % 4096} sc1" if p < 2 else
      f"buffer_load_dwordx4 {vr(vGo+4*p)}, v{vT+56}, {sr(sWS)}, s91 offen offset:{(p*2048) % 4096} sc1")
    if p % 2 == 1 and p < 7:
        E(f"s_add_u32 s91, s92, {(p+1)*2048}")
E("s_waitcnt vmcnt(0)")
E(f"s_mov_b64 s[{sBAD}:{sBAD+1}], 0")
for p in range(9):
    E(f"v_cmp_ne_u64 vcc, s[{sTAG}:{sTAG+1}], v[{vGo+4*p+2}:{vGo+4*p+3}]")
    E(f"s_or_b64 s[{sBAD}:{sBAD+1}], s[{sBAD}:{sBAD+1}], vcc")
E(f"s_cmp_eq_u64 s[{sBAD}:{sBAD+1}], 0")
E("s_cbranch_scc1 K1_GO_OK")
E("s_sub_u32 s3, s3, 1")
E("s_cbranch_scc1 K1_GO_OK")
E("s_branch K1_GO_LOOP")
L("K1_GO_OK:")
stamp()
E(f"v_max_f32_dpp v{mm}, v{sm}, v{sm} quad_perm:[1,0,3,2] row_mask:0xf bank_mask:0xf")
E("s_nop 1")
E(f"v_max_f32_dpp v{mm}, v{mm}, v{mm} quad_perm:[2,3,0,1] row_mask:0xf bank_mask:0xf")
E("s_nop 1")
E(f"v_max_f32_dpp v{mm}, v{mm}, v{mm} row_half_mirror row_mask:0xf bank_mask:0xf")
E("s_nop 0")
E(f"v_sub_f32 v{sm}, v{sm}, v{mm}")
E(f"v_mul_f32 v{sm}, s{sSC}, v{sm}")
E(f"v_exp_f32 v{sm}, v{sm}")
E("s_nop 0")
E(f"v_mul_f32 v{ll}, v{sm}, v{sm+1}")
E("s_nop 1")
E(f"v_add_f32_dpp v{ll}, v{ll}, v{ll} quad_perm:[1,0,3,2] row_mask:0xf bank_mask:0xf")
E("s_nop 1")
E(f"v_add_f32_dpp v{ll}, v{ll}, v{ll} quad_perm:[2,3,0,1] row_mask:0xf bank_mask:0xf")
E("s_nop 1")
E(f"v_add_f32_dpp v{ll}, v{ll}, v{ll} row_half_mirror row_mask:0xf bank_mask:0xf")
for p in range(8):
    E(f"v_readlane_b32 s{40+p}, v{sm}, {p}")
E(f"v_rcp_f32 v{ll}, v{ll}")
for q in range(2):
    E(f"v_mul_f32 v{vO+q}, s40, v{vGo+q}")
    for p in range(1, 8):
        E(f"v_fmac_f32 v{vO+q}, s{40+p}, v{vGo+4*p+q}")
E(f"v_mul_f32 v{ll}, v{ll}, v{vGg}")
E(f"v_mul_f32 v{vO}, v{vO}, v{ll}")
E(f"v_mul_f32 v{vO+1}, v{vO+1}, v{ll}")
E("v_cmp_gt_u32 vcc, 96, v0")
E(f"s_and_saveexec_b64 s[{sE}:{sE+1}], vcc")
E(f"v_cvt_pk_bf16_f32 v{vO}, v{vO}, v{vO+1}")
E(f"v_lshlrev_b32 v{vT}, 2, v0")
E(f"ds_write_b32 v{vT}, v{vO} offset:{OBF_OFF}")
E(f"s_mov_b64 exec, s[{sE}:{sE+1}]")
E("s_branch K1_T_WAIT")
L("K1_T_H:")
E(f"v_lshlrev_b32 v{vT}, 3, v{vL}")
E(f"ds_read_b64 v[{vT+4}:{vT+5}], v{vT} offset:{GU_OFF}")
E(f"ds_read_b64 v[{vT+6}:{vT+7}], v{vT} offset:{GU_OFF + 192}")
E("s_waitcnt lgkmcnt(0)")
calc_g(vGg, vT + 60)
E(f"v_sub_f32 v{vGg}, 1.0, v{vGg}")
E(f"v_cvt_pk_bf16_f32 v{vT+4}, v{vT+4}, v{vT+5}")
E(f"v_cvt_pk_bf16_f32 v{vT+6}, v{vT+6}, v{vT+7}")
E(f"v_lshlrev_b32 v{vT+8}, 16, v{vT+4}")
E(f"v_and_b32 v{vT+9}, 0xffff0000, v{vT+4}")
E(f"v_lshlrev_b32 v{vT+10}, 16, v{vT+6}")
E(f"v_and_b32 v{vT+11}, 0xffff0000, v{vT+6}")
E(f"v_max_f32 v{vT+8}, 0, v{vT+8}")
E(f"v_max_f32 v{vT+9}, 0, v{vT+9}")
E(f"v_mul_f32 v{vT+8}, v{vT+8}, v{vT+10}")
E(f"v_mul_f32 v{vT+9}, v{vT+9}, v{vT+11}")
E(f"v_cvt_pk_bf16_f32 v{vT+8}, v{vT+8}, v{vT+9}")
E(f"v_lshlrev_b32 v{vT+10}, 16, v{vT+8}")
E(f"v_and_b32 v{vT+11}, 0xffff0000, v{vT+8}")
E(f"v_mul_f32 v{vT+10}, v{vT+10}, v{vGg}")
E(f"v_mul_f32 v{vT+11}, v{vT+11}, v{vGg}")
E(f"v_cvt_pk_bf16_f32 v{vT+8}, v{vT+10}, v{vT+11}")
E(f"v_cmp_gt_u32 vcc, 24, v{vL}")
E("s_nop 1")
E(f"v_cndmask_b32 v{vT+8}, 0, v{vT+8}, vcc")
E(f"v_lshlrev_b32 v{vT}, 2, v{vL}")
E("s_mov_b64 exec, 0xffffffff")
E(f"ds_write_b32 v{vT}, v{vT+8} offset:{OBF_OFF + 384}")
E("s_mov_b64 exec, -1")
L("K1_T_WAIT:")
E("s_waitcnt lgkmcnt(0)")
E("s_barrier")
stamp()
vB = vT + 4
E(f"v_lshrrev_b32 v{vT}, 3, v{vJ}")
E(f"v_lshl_add_u32 v{vT}, v{vT}, 2, v{vG}")
E(f"v_lshlrev_b32 v{vT}, 1, v{vT}")
E(f"s_lshl_b32 s{sT}, s{sW}, 4")
E(f"v_add_u32 v{vT}, s{sT}, v{vT}")
for k in range(4):
    E(f"ds_read_u16 v{vT+20+k}, v{vT} offset:{OBF_OFF + 128*k}")
E("s_waitcnt lgkmcnt(0)")
for k in range(4):
    E(f"v_lshl_or_b32 v{vT+20+k}, v{vT+20+k}, 16, v{vT+20+k}")
for k in range(4):
    expand(vT + 20 + k, vB + 4*k)
E("s_waitcnt vmcnt(0)")
vY = vT + 24
for k in range(4):
    mfma(vY, vKB + 8*k, vB + 4*k, None if k == 0 else vY)
    mfma(vY + 4, vKB + 8*k + 4, vB + 4*k, None if k == 0 else vY + 4)
E(f"v_lshrrev_b32 v{vT+1}, 3, v{vJ}")
E(f"s_lshl_b32 s{sT}, s{sW}, 1")
E(f"v_add_u32 v{vT+1}, s{sT}, v{vT+1}")
E(f"v_mul_u32_u24 v{vT}, {Y_STR}, v{vT+1}")
E(f"v_and_b32 v{vT+1}, 7, v{vJ}")
E(f"v_lshl_add_u32 v{vT}, v{vT+1}, 2, v{vT}")
E(f"v_lshl_add_u32 v{vT}, v{vG}, 7, v{vT}")
E("s_nop 7")
for r in range(4):
    E(f"v_cndmask_b32 v{vY+r}, v{vY+r}, v{vY+4+r}, s[{sHF}:{sHF+1}]")
for r in range(4):
    E(f"ds_write_b32 v{vT}, v{vY+r} offset:{Y_OFF + r*32}")
E("s_waitcnt lgkmcnt(0)")
E("s_barrier")
E(f"s_cmp_lg_u32 s{sW}, 0")
E("s_cbranch_scc1 K1_PUB3_DONE")
E("s_mov_b32 exec_lo, -1")
E("s_mov_b32 exec_hi, 0xff")
E(f"v_lshlrev_b32 v{vT}, 3, v0")
for s in range(16):
    E(f"ds_read_b64 v[{vT+4+2*s}:{vT+5+2*s}], v{vT} offset:{Y_OFF + s*Y_STR}")
E("s_waitcnt lgkmcnt(0)")
for st in (8, 4, 2, 1):
    for s in range(st):
        for q in range(2):
            E(f"v_add_f32 v{vT+4+2*s+q}, v{vT+4+2*s+q}, v{vT+4+2*(s+st)+q}")
E(f"v_mov_b32 v{vT+6}, s{sTAG}")
E(f"v_mov_b32 v{vT+7}, s{sTAG+1}")
E(f"v_lshlrev_b32 v{vT}, 4, v0")
E(f"s_lshl_b32 s{sT}, s{sC}, 5")
E(f"s_add_u32 s{sT}, s{sT}, s{sH}")
E(f"s_mul_i32 s{sT}, s{sT}, 640")
E(f"s_add_u32 s{sT}, s{sT}, {WS_G3}")
E(f"buffer_store_dwordx4 {vr(vT+4)}, v{vT}, {sr(sWS)}, s{sT} offen sc1")
E("s_mov_b64 exec, -1")
L("K1_PUB3_DONE:")
stamp()
E(f"s_lshl_b32 s{sT}, s{sC}, 2")
E(f"s_cmp_lg_u32 s{sT}, s{sH}")
E("s_cbranch_scc1 K1_STAMPS")
E(f"s_lshl_b32 s{sR0}, s{sC}, 5")
E(f"s_lshl_b32 s{sT}, s{sW}, 2")
E(f"s_add_u32 s{sR0}, s{sR0}, s{sT}")
E(f"s_mul_i32 s{sR0}, s{sR0}, 640")
E(f"s_add_u32 s{sR0}, s{sR0}, {WS_G3}")
E(f"v_lshlrev_b32 v{vT}, 4, v{vL}")
E("s_mov_b32 exec_lo, -1")
E("s_mov_b32 exec_hi, 0xff")
L("K1_GF_LOOP:")
for p in range(4):
    E(f"buffer_load_dwordx4 {vr(vT+4+4*p)}, v{vT}, {sr(sWS)}, s{sR0} offen offset:{640*p} sc1")
E("s_waitcnt vmcnt(0)")
E(f"s_mov_b64 s[{sBAD}:{sBAD+1}], 0")
for p in range(4):
    E(f"v_cmp_ne_u64 vcc, s[{sTAG}:{sTAG+1}], v[{vT+4+4*p+2}:{vT+4+4*p+3}]")
    E(f"s_or_b64 s[{sBAD}:{sBAD+1}], s[{sBAD}:{sBAD+1}], vcc")
E(f"s_cmp_eq_u64 s[{sBAD}:{sBAD+1}], 0")
E("s_cbranch_scc1 K1_GF_OK")
E("s_sub_u32 s3, s3, 1")
E("s_cbranch_scc1 K1_GF_OK")
E("s_sleep 1")
E("s_branch K1_GF_LOOP")
L("K1_GF_OK:")
for p in range(1, 4):
    E(f"v_add_f32 v{vT+4}, v{vT+4}, v{vT+4+4*p}")
    E(f"v_add_f32 v{vT+5}, v{vT+5}, v{vT+5+4*p}")
E(f"v_lshlrev_b32 v{vT}, 3, v{vL}")
E(f"s_mul_i32 s{sT}, s{sW}, 320")
E(f"v_add_u32 v{vT}, s{sT}, v{vT}")
E(f"ds_write_b64 v{vT}, v[{vT+4}:{vT+5}] offset:{FR_OFF}")
E("s_mov_b64 exec, -1")
E("s_waitcnt lgkmcnt(0)")
E("s_barrier")
E(f"s_cmp_lg_u32 s{sW}, 0")
E("s_cbranch_scc1 K1_STAMPS")
E("s_mov_b32 exec_lo, -1")
E("s_mov_b32 exec_hi, 0xff")
E(f"v_lshlrev_b32 v{vT}, 3, v{vL}")
for w in range(8):
    E(f"ds_read_b64 v[{vT+4+2*w}:{vT+5+2*w}], v{vT} offset:{FR_OFF + 320*w}")
E(f"s_mov_b32 s{sWG}, s28")
E(f"s_and_b32 s{sWG+1}, s29, 0xffff")
E(f"s_mov_b32 s{sWG+2}, 1280")
E(f"s_mov_b32 s{sWG+3}, 0x00020000")
E("s_waitcnt lgkmcnt(0)")
for st in (4, 2, 1):
    for s in range(st):
        for q in range(2):
            E(f"v_add_f32 v{vT+4+2*s+q}, v{vT+4+2*s+q}, v{vT+4+2*(s+st)+q}")
E(f"v_cvt_pk_bf16_f32 v{vT+4}, v{vT+4}, v{vT+5}")
E(f"v_lshlrev_b32 v{vT}, 2, v{vL}")
E(f"s_mul_i32 s{sT}, s{sC}, 160")
E(f"buffer_store_dword v{vT+4}, v{vT}, {sr(sWG)}, s{sT} offen")
E(f"s_cmp_lg_u32 s{sC}, 0")
E("s_cbranch_scc1 K1_NOEP")
E("s_mov_b64 exec, 1")
E(f"v_mov_b32 v{vT+6}, s{sTAG}")
E(f"v_mov_b32 v{vT+7}, s{sTAG+1}")
E(f"v_mov_b32 v{vT}, 0")
E(f"buffer_store_dwordx2 v[{vT+6}:{vT+7}], v{vT}, {sr(sWS)}, 0 offen")
L("K1_NOEP:")
E("s_mov_b64 exec, -1")
L("K1_STAMPS:")
if DBG:
    E("s_mov_b64 exec, -1")
    E("s_waitcnt vmcnt(0) lgkmcnt(0)")
    E(f"s_cmp_lg_u32 s{sW}, 0")
    E("s_cbranch_scc1 K1_END")
    E("s_cmp_lg_u32 s93, 0")
    E("s_cbranch_scc1 K1_END")
    E("s_memrealtime s[2:3]")
    E("s_memtime s[6:7]")
    E("s_waitcnt lgkmcnt(0)")
    E("s_sub_u32 s6, s6, s95")
    E("s_sub_u32 s2, s2, s94")
    E("v_mov_b32 v10, 0")
    E("v_writelane_b32 v10, s6, 0")
    E("v_writelane_b32 v10, s2, 1")
    for i in range(1, stamp_n[0]):
        r = stamp_regs[i]
        E(f"s_sub_u32 s6, s{r}, s94")
        E(f"v_writelane_b32 v10, s6, {i+1}")
    E("v_lshlrev_b32 v11, 2, v1")
    E("v_cmp_gt_u32 vcc, 16, v1")
    E("s_and_saveexec_b64 s[86:87], vcc")
    E("global_store_dword v11, v10, s[30:31]")
elif ST:
    E("s_mov_b64 exec, -1")
    E("s_waitcnt vmcnt(0) lgkmcnt(0)")
    E(f"s_cmp_lg_u32 s{sW}, {STW}")
    E("s_cbranch_scc1 K1_END")
    E("s_memrealtime s[2:3]")
    E("s_waitcnt lgkmcnt(0)")
    regs = stamp_regs[:stamp_n[0]]
    for i, r in enumerate(regs):
        E(f"v_writelane_b32 v10, s{r}, {2*i}")
        E(f"v_writelane_b32 v10, s{r+1}, {2*i+1}")
    n = len(regs)
    E(f"v_writelane_b32 v10, s2, {2*n}")
    E(f"v_writelane_b32 v10, s3, {2*n+1}")
    E("v_lshlrev_b32 v11, 2, v1")
    E(f"s_lshl_b32 s39, s93, 7")
    E("s_add_u32 s39, s39, 0x300000")
    E(f"v_cmp_gt_u32 vcc, {2*n+2}, v1")
    E("s_and_saveexec_b64 s[86:87], vcc")
    E(f"buffer_store_dword v10, v11, {sr(sWS)}, s39 offen")
L("K1_END:")
E("s_endpgm")

L('.section .rodata,"a"')
L(".p2align 6")
L(f".amdhsa_kernel {K1}")
L(f"  .amdhsa_next_free_vgpr 256")
L(f"  .amdhsa_next_free_sgpr 102")
L(f"  .amdhsa_accum_offset 256")
L("  .amdhsa_group_segment_fixed_size 0")
L("  .amdhsa_kernarg_size 104")
L("  .amdhsa_user_sgpr_count 2")
L("  .amdhsa_user_sgpr_kernarg_segment_ptr 1")
L("  .amdhsa_system_sgpr_workgroup_id_x 1")
L(".end_amdhsa_kernel")
open(sys.argv[1], 'w').write('\n'.join(out) + '\n')
```

```python
import sys, struct

NAME = "gated_mix__sliding_block_cached__glu_gated_reglu__decode"
out = []
def E(s): out.append("    " + s)
def L(s): out.append(s)

HEADER = open('cdna_kernels/' + NAME + '.s.ref').read().split('\n')
hdr = []
for ln in HEADER:
    if ln.startswith('; @launch') or ln.startswith('.amdgcn_target'):
        break
    hdr.append(ln)

opts = (sys.argv[2] if len(sys.argv) > 2 else "").split(',')
def opt(name, default=None):
    for o in opts:
        if o == name: return True
        if o.startswith(name + '='): return o.split('=')[1]
    return default
NT = " nt" if not opt('nont') else ""
if opt('pol'): NT = " " + opt('pol').replace('+', ' ')
KNT = "" if opt('kplain') else NT
VNT = "" if opt('vplain') else NT
WNT = " nt" if (opt('wnt') or opt('allnt')) else ""
ANT = " nt" if opt('allnt') else ""
ST = opt('st') or opt('dbg')
DBG = opt('dbg')
STW = int(opt('stw', 0))
NK0 = int(opt('nk0', 8))
NV1 = int(opt('nv1', 15))

P0_OFF = 0;      P0_STR = 1312
P2_OFF = 16 * P0_STR;  P2_STR = 800
Y_OFF  = P2_OFF + 16 * P2_STR; Y_STR = 544
QBF_OFF = Y_OFF + 16 * Y_STR
GU_OFF  = QBF_OFF + 384
OBF_OFF = GU_OFF + 384
ST_OFF  = OBF_OFF + 512
Z_OFF   = ST_OFF + 64
FR_OFF  = Z_OFF + 64
LDS_SZ  = FR_OFF + 8 * 320
assert LDS_SZ <= 65536

WS_G0 = 0x1000
WS_G2 = 0x100000
WS_G2A = 0x180000
WS_G3 = 0x200000

SCALE_LOG2E = (192.0 ** -0.5) * 1.4426950408889634
def f32bits(x): return struct.unpack('<I', struct.pack('<f', x))[0]

K1 = NAME + "_kernel"
L('\n'.join(hdr))
L(f"; @launch grid=(256,1,1) block=(512,1,1) lds=65536")
L('.amdgcn_target "amdgcn-amd-amdhsa--gfx950"')
L(".text")
L(f".globl {K1}")
L(".p2align 8")
L(f".type {K1},@function")
L(f"{K1}:")

vL, vG, vJ = 1, 2, 3
vM = [4, 5, 6, 7]
vA = 8
vKB = 40
vVB = 136
vQ = 232

sW, sXCD, sIDX, sH, sC, sT = 34, 35, 36, 37, 38, 39
sK, sV, sWQ, sWO, sWG, sWU, sWD, sX, sWS = 40, 44, 48, 52, 56, 60, 64, 68, 72
sHF = 78
sV2 = 80
sOFF = 82
sSC = 83
sROW = 85
sE = 86
sR0 = 88
sTAG = 4
sBAD = 6
sGW = 76
stamp_regs = [94] + [10, 12, 14, 16, 18, 20, 22, 24, 96, 98, 100, 32, 8]
stamp_n = [0]
def stamp():
    if not ST: return
    r = stamp_regs[stamp_n[0]]; stamp_n[0] += 1
    E(f"s_memrealtime s[{r}:{r+1}]")
def vr(a, n=4): return f"v[{a}:{a+n-1}]"
def sr(a, n=4): return f"s[{a}:{a+n-1}]"

vmq = []
def VM(s, tag):
    E(s); vmq.append(tag)
def WAIT(tag):
    idx = max(i for i, t in enumerate(vmq) if t == tag)
    n = len(vmq) - 1 - idx
    assert n <= 63, n
    E(f"s_waitcnt vmcnt({n})")

def srd(dst, plo, off_s, nrec):
    E(f"s_add_u32 s{dst}, s{plo}, s{off_s}")
    E(f"s_addc_u32 s{dst+1}, s{plo+1}, 0")
    E(f"s_and_b32 s{dst+1}, s{dst+1}, 0xffff")
    E(f"s_mov_b32 s{dst+2}, {nrec}")
    E(f"s_mov_b32 s{dst+3}, 0x00020000")

def dpp_reduce(regs):
    for ctl in ["row_shr:1", "row_shr:2", "row_shr:4", "row_shr:8"]:
        for r in regs:
            E(f"v_add_f32_dpp v{r}, v{r}, v{r} {ctl} row_mask:0xf bank_mask:0xf bound_ctrl:0")
        if len(regs) < 3: E("s_nop 1")
    for r in regs:
        E(f"v_add_f32_dpp v{r}, v{r}, v{r} row_bcast:15 row_mask:0xa bank_mask:0xf")
    if len(regs) < 3: E("s_nop 1")
    for r in regs:
        E(f"v_add_f32_dpp v{r}, v{r}, v{r} row_bcast:31 row_mask:0xc bank_mask:0xf")

def expand(dup, dst):
    for w in range(4):
        E(f"v_and_b32 v{dst+w}, v{dup}, v{vM[w]}")

def mfma(d, a, b, c):
    E(f"v_mfma_f32_16x16x32_bf16 {vr(d)}, {vr(a)}, {vr(b)}, {'0' if c is None else vr(c)}")

E("s_cmp_ge_u32 s2, 256")
E("s_cbranch_scc1 K1_END")
if opt('perm'):
    E("s_lshr_b32 s3, s2, 3")
    E("s_and_b32 s2, s2, 7")
    E("s_lshl_b32 s2, s2, 5")
    E("s_or_b32 s2, s2, s3")
if ST: E("s_mov_b32 s93, s2")
stamp()
if DBG: E("s_memtime s[6:7]")
E("s_load_dwordx16 s[8:23], s[0:1], 0")
E("s_load_dwordx8 s[24:31], s[0:1], 64")
E("s_load_dwordx2 s[32:33], s[0:1], 96")
E(f"v_and_b32 v{vL}, 63, v0")
E(f"v_bfe_u32 v{vG}, v0, 4, 2")
E(f"v_and_b32 v{vJ}, 15, v0")
E(f"v_lshrrev_b32 v{vA}, 6, v0")
E("s_nop 0")
E(f"v_readfirstlane_b32 s{sW}, v{vA}")
E(f"s_and_b32 s{sXCD}, s2, 7")
E(f"s_lshr_b32 s{sIDX}, s2, 3")
E(f"s_and_b32 s{sH}, s{sIDX}, 3")
E(f"s_lshl_b32 s{sT}, s{sXCD}, 2")
E(f"s_add_u32 s{sH}, s{sH}, s{sT}")
E(f"s_lshr_b32 s{sC}, s{sIDX}, 2")
E(f"s_lshl_b32 s{sROW}, s{sH}, 3")
E(f"s_add_u32 s{sROW}, s{sROW}, s{sC}")
sROT = 84
if opt('norot'):
    E(f"s_mov_b32 s{sROT}, 0")
else:
    E(f"s_mul_i32 s{sROT}, s{sH}, 5")
    E(f"s_mul_i32 s{sT}, s{sC}, 3")
    E(f"s_add_u32 s{sROT}, s{sROT}, s{sT}")
    if opt('rotw'): E(f"s_add_u32 s{sROT}, s{sROT}, s{sW}")
    E(f"s_and_b32 s{sROT}, s{sROT}, 7")
E("s_mov_b32 s3, 0x40003")
sXC = 76
sSAME = 77
E(f"s_getreg_b32 s{sXC}, hwreg(HW_REG_XCC_ID)")
E(f"s_and_b32 s{sXC}, s{sXC}, 15")
E(f"s_mov_b32 s{sHF}, 0xFF00FF00")
E(f"s_mov_b32 s{sHF+1}, 0xFF00FF00")
E(f"s_mov_b32 s{sV2}, 0x00FF00FF")
E(f"s_mov_b32 s{sV2+1}, 0xFF00FF00")
E(f"s_mov_b32 s{sSC}, 0x{f32bits(SCALE_LOG2E):08x}")
t0, t1, t2, t3 = vA, vA+1, vA+2, vA+3
E(f"v_and_b32 v{t0}, 1, v{vJ}")
E(f"v_lshlrev_b32 v{t0}, 4, v{t0}")
E(f"v_mov_b32 v{t1}, 0xffff")
E(f"v_lshlrev_b32 v{t1}, v{t0}, v{t1}")
E(f"v_bfe_u32 v{t2}, v{vJ}, 1, 2")
for w in range(4):
    E(f"v_cmp_eq_u32 vcc, {w}, v{t2}")
    E("s_nop 1")
    E(f"v_cndmask_b32 v{vM[w]}, 0, v{t1}, vcc")
vHF, vGH, vJ7 = vA, vA+1, vA+2
E(f"v_lshrrev_b32 v{vHF}, 3, v{vJ}")
E(f"v_lshl_add_u32 v{vGH}, v{vHF}, 2, v{vG}")
E(f"v_and_b32 v{vJ7}, 7, v{vJ}")
oWA, oWA2, oWB, oG, oX, oKa, oKb, oGX = 32, 33, 34, 35, 36, 38, 39, 37
E(f"v_mul_u32_u24 v{oWA}, 12288, v{vG}")
E(f"v_lshl_add_u32 v{oWA}, v{vJ}, 4, v{oWA}")
E(f"v_add_u32 v{oWA2}, 49152, v{oWA}")
E(f"v_mul_u32_u24 v{oWB}, 12288, v{vGH}")
E(f"v_lshl_add_u32 v{oWB}, v{vJ7}, 4, v{oWB}")
E(f"v_add_u32 v{oWB}, 256, v{oWB}")
E(f"v_mul_u32_u24 v{oG}, 3072, v{vGH}")
E(f"v_lshl_add_u32 v{oG}, v{vJ7}, 4, v{oG}")
E(f"v_mov_b32 v{t3}, 0x40000000")
E(f"v_cmp_gt_u32 vcc, 6, v{vJ7}")
E("s_nop 1")
E(f"v_cndmask_b32 v{oG}, v{t3}, v{oG}, vcc")
E(f"v_lshlrev_b32 v{oX}, 1, v{vGH}")
E(f"v_lshlrev_b32 v{oGX}, 2, v0")
oK = [[252, 253], [254, 255]]
for Q in range(2):
    a_, b_ = oK[Q]
    E(f"v_and_b32 v{a_}, 3, v{vJ}")
    E(f"v_add_u32 v{a_}, s{sROT}, v{a_}")
    if Q: E(f"v_add_u32 v{a_}, 4, v{a_}")
    E(f"v_and_b32 v{a_}, 7, v{a_}")
    E(f"v_lshlrev_b32 v{a_}, 3, v{a_}")
    E(f"v_bfe_u32 v{t3}, v{vJ}, 2, 1")
    E(f"v_add_u32 v{a_}, v{a_}, v{t3}")
    E(f"v_mul_u32_u24 v{a_}, 384, v{a_}")
    E(f"v_lshl_add_u32 v{a_}, v{vG}, 4, v{a_}")
    E(f"v_lshlrev_b32 v{t3}, 6, v{vHF}")
    E(f"v_sub_u32 v{b_}, v{a_}, v{t3}")
    E(f"v_add_u32 v{b_}, 64, v{b_}")
    E(f"v_add_u32 v{a_}, v{a_}, v{t3}")
E("s_waitcnt lgkmcnt(0)")
if DBG: E("s_mov_b32 s95, s6")
E(f"s_load_dwordx2 s[{sTAG}:{sTAG+1}], s[32:33], 0")
E(f"s_mul_i32 s{sT}, s{sH}, 12582912")
E(f"s_mul_i32 s{sOFF}, s{sC}, 24576")
E(f"s_add_u32 s{sT}, s{sT}, s{sOFF}")
E(f"s_mul_i32 s{sOFF}, s{sW}, 196608")
E(f"s_add_u32 s{sT}, s{sT}, s{sOFF}")
E(f"s_add_u32 s{sT}, s{sT}, 11010048")
srd(sK, 10, sT, 24576)
srd(sV, 12, sT, 24576)
E(f"s_mul_i32 s{sR0}, s{sC}, 80")
E(f"s_lshl_b32 s{sOFF}, s{sW}, 3")
E(f"s_add_u32 s{sR0}, s{sR0}, s{sOFF}")
E(f"s_mul_i32 s{sT}, s{sR0}, 12288")
E(f"s_mul_i32 s{sOFF}, s{sH}, 384")
E(f"s_add_u32 s{sT}, s{sT}, s{sOFF}")
srd(sWQ, 14, sT, 72 * 12288)
E(f"s_mul_i32 s{sT}, s{sR0}, 3072")
E(f"s_mul_i32 s{sOFF}, s{sH}, 96")
E(f"s_add_u32 s{sT}, s{sT}, s{sOFF}")
srd(sWG, 20, sT, 72 * 3072)
srd(sWU, 22, sT, 72 * 3072)
E(f"s_lshl_b32 s{sR0+1}, s{sR0}, 1")
E(f"s_mov_b32 s{sT}, 0")
srd(sX, 8, sT, 1280)
srd(sWS, 32, sT, 0x400000)
E(f"s_cmp_lt_u32 s{sW}, 2")
E(f"s_cselect_b32 s{sR0+2}, 786432, 0x40000000")
E(f"s_cselect_b32 s{sR0+3}, 196608, 0x40000000")
GOFF = [0, 2, 6, 4]
def kload(n):
    Q, gi, s = n // 12, (n // 3) % 4, n % 3
    b = vKB + n * 4
    va = oK[Q][0] if gi in (0, 2) else oK[Q][1]
    VM(f"buffer_load_dwordx4 {vr(b)}, v{va}, {sr(sK)}, 0 offen offset:{GOFF[gi]*384+s*128}{KNT}", f"K{Q}{gi}")
vX0, vX1, vGX, vGW = vA+4, vA+5, vA+6, vA+7
VM(f"buffer_load_ushort v{vX0}, v{oX}, {sr(sX)}, s{sR0+1} offen", "X")
VM(f"buffer_load_ushort v{vX1}, v{oX}, {sr(sX)}, s{sR0+1} offen offset:128", "X")
def p0reg(k, q): return vVB + 20 * k + 4 * q
VM(f"buffer_load_dwordx4 {vr(p0reg(0,0))}, v{oWA}, {sr(sWQ)}, 0 offen{WNT}", "P0")
VM(f"buffer_load_dwordx4 {vr(p0reg(0,1))}, v{oWA2}, {sr(sWQ)}, 0 offen{WNT}", "P0")
VM(f"buffer_load_dwordx4 {vr(p0reg(0,2))}, v{oWB}, {sr(sWQ)}, 0 offen{WNT}", "P0")
VM(f"buffer_load_dwordx4 {vr(p0reg(0,3))}, v{oG}, {sr(sWG)}, 0 offen{ANT}", "P0")
VM(f"buffer_load_dwordx4 {vr(p0reg(0,4))}, v{oG}, {sr(sWU)}, 0 offen{ANT}", "P0")
for o_, s_ in ((oWA, sR0+2), (oWA2, sR0+2), (oWB, sR0+2), (oG, sR0+3)):
    E(f"v_add_u32 v{o_}, s{s_}, v{o_}")
VM(f"buffer_load_dwordx4 {vr(p0reg(1,0))}, v{oWA}, {sr(sWQ)}, 0 offen{WNT}", "P1")
VM(f"buffer_load_dwordx4 {vr(p0reg(1,1))}, v{oWA2}, {sr(sWQ)}, 0 offen{WNT}", "P1")
VM(f"buffer_load_dwordx4 {vr(p0reg(1,2))}, v{oWB}, {sr(sWQ)}, 0 offen{WNT}", "P1")
VM(f"buffer_load_dwordx4 {vr(p0reg(1,3))}, v{oG}, {sr(sWG)}, 0 offen{ANT}", "P1")
VM(f"buffer_load_dwordx4 {vr(p0reg(1,4))}, v{oG}, {sr(sWU)}, 0 offen{ANT}", "P1")
E(f"s_mov_b32 s{sWO}, s26")
E(f"s_and_b32 s{sWO+1}, s27, 0xffff")
E(f"s_mov_b32 s{sWO+2}, 1280")
E(f"s_mov_b32 s{sWO+3}, 0x00020000")
VM(f"buffer_load_dword v{vGX}, v{oGX}, {sr(sX)}, 0 offen", "G")
VM(f"buffer_load_dword v{vGW}, v{oGX}, {sr(sWO)}, 0 offen", "G")
E(f"s_mul_i32 s{sT}, s{sH}, 245760")
E(f"s_mul_i32 s{sOFF}, s{sC}, 160")
E(f"s_add_u32 s{sT}, s{sT}, s{sOFF}")
srd(sWO, 16, sT, 245760 - 1120)
E(f"s_mul_i32 s{sT}, s{sH}, 61440")
E(f"s_add_u32 s{sT}, s{sT}, s{sOFF}")
srd(sWD, 24, sT, 61440 - 1120)
E(f"s_mov_b32 s{sOFF}, 12288")
for n in range(NK0): kload(n)
stamp()
vAC = 16
vBX = vQ
WAIT("X")
E(f"v_lshl_or_b32 v{vX0}, v{vX0}, 16, v{vX0}")
E(f"v_lshl_or_b32 v{vX1}, v{vX1}, 16, v{vX1}")
expand(vX0, vBX)
expand(vX1, vBX + 4)
WAIT("P0")
for q in range(5):
    mfma(vAC + 4*q, p0reg(0, q), vBX, None)
WAIT("P1")
for q in range(5):
    mfma(vAC + 4*q, p0reg(1, q), vBX + 4, vAC + 4*q)
WAIT("G")
E(f"v_lshlrev_b32 v{vX0}, 16, v{vGX}")
E(f"v_and_b32 v{vGX}, 0xffff0000, v{vGX}")
E(f"v_lshlrev_b32 v{vX1}, 16, v{vGW}")
E(f"v_and_b32 v{vGW}, 0xffff0000, v{vGW}")
E(f"v_mul_f32 v{vX0}, v{vX0}, v{vX1}")
E(f"v_fmac_f32 v{vX0}, v{vGX}, v{vGW}")
E("s_nop 1")
dpp_reduce([vX0])
a1, a2, tt = vA, vA+1, vA+2
E(f"v_lshrrev_b32 v{tt}, 3, v{vJ}")
E(f"s_lshl_b32 s{sT}, s{sW}, 1")
E(f"v_add_u32 v{tt}, s{sT}, v{tt}")
E(f"v_mul_u32_u24 v{a1}, {P0_STR}, v{tt}")
E(f"v_and_b32 v{tt}, 7, v{vJ}")
E(f"v_lshl_add_u32 v{a1}, v{tt}, 2, v{a1}")
E(f"v_and_b32 v{tt}, 1, v{vG}")
E(f"v_lshl_add_u32 v{a2}, v{tt}, 7, v{a1}")
E(f"v_lshl_add_u32 v{a1}, v{vG}, 7, v{a1}")
E(f"s_lshl_b32 s{sT}, s{sW}, 2")
E(f"v_mov_b32 v{tt}, s{sT}")
E("s_mov_b32 exec_lo, 0")
E("s_mov_b32 exec_hi, 0x80000000")
E(f"ds_write_b32 v{tt}, v{vX0} offset:{Z_OFF}")
E("s_mov_b64 exec, -1")
E("s_nop 3")
for r in range(4):
    E(f"v_cndmask_b32 v{vAC+r}, v{vAC+r}, v{vAC+4+r}, s[{sHF}:{sHF+1}]")
for r in range(4):
    E(f"ds_write_b32 v{a1}, v{vAC+r} offset:{P0_OFF + r*32}")
E(f"s_mov_b64 exec, s[{sV2}:{sV2+1}]")
for q in range(3):
    for r in range(4):
        E(f"ds_write_b32 v{a2}, v{vAC+8+4*q+r} offset:{P0_OFF + 512 + 256*q + r*32}")
E("s_mov_b64 exec, -1")
E("s_waitcnt lgkmcnt(0)")
E("s_barrier")
stamp()
E(f"s_add_u32 s{sTAG}, s{sTAG}, 1")
E(f"s_addc_u32 s{sTAG+1}, s{sTAG+1}, 0")
E(f"s_cmp_ge_u32 s{sW}, 3")
E("s_cbranch_scc1 K1_PUB0_DONE")
E("v_cmp_gt_u32 vcc, 145, v0")
E(f"s_and_saveexec_b64 s[{sE}:{sE+1}], vcc")
E(f"v_lshlrev_b32 v{vA}, 3, v0")
E(f"v_add_u32 v{vA+1}, 64, v{vA}")
E("v_cmp_gt_u32 vcc, 120, v0")
E("s_nop 1")
E(f"v_cndmask_b32 v{vA}, v{vA+1}, v{vA}, vcc")
vR = vQ - 36
for s in range(16):
    E(f"ds_read_b64 v[{vR+2*s}:{vR+2*s+1}], v{vA} offset:{P0_OFF + s*P0_STR}")
E("s_waitcnt lgkmcnt(0)")
for st in (8, 4, 2, 1):
    for s in range(st):
        for q in range(2):
            E(f"v_add_f32 v{vR+2*s+q}, v{vR+2*s+q}, v{vR+2*(s+st)+q}")
E(f"v_mov_b32 v{vR+2}, s{sTAG}")
E(f"v_mov_b32 v{vR+3}, s{sTAG+1}")
E(f"v_mov_b32 v{vR+4}, s{sXC}")
E("v_cmp_eq_u32 vcc, 144, v0")
E(f"v_lshlrev_b32 v{vA}, 4, v0")
E("s_nop 0")
E(f"v_cndmask_b32 v{vR}, v{vR}, v{vR+4}, vcc")
E(f"s_mul_i32 s{sT}, s{sROW}, 2560")
E(f"s_add_u32 s{sT}, s{sT}, {WS_G0}")
E(f"buffer_store_dwordx4 {vr(vR)}, v{vA}, {sr(sWS)}, s{sT} offen sc1")
E(f"s_mov_b64 exec, s[{sE}:{sE+1}]")
E("s_nop 1")
L("K1_PUB0_DONE:")
for n in range(NK0, 24): kload(n)
vGa = vR
E(f"s_mul_i32 s{sT}, s{sW}, 288")
E(f"v_lshlrev_b32 v{vA}, 4, v{vL}")
E(f"v_add_u32 v{vA}, s{sT}, v{vA}")
E(f"s_mul_i32 s{sR0}, s{sH}, {8*2560}")
E(f"s_add_u32 s{sR0}, s{sR0}, {WS_G0}")
vXO = vA + 7
E(f"v_and_b32 v{vXO}, 7, v{vL}")
E(f"v_mul_u32_u24 v{vXO}, 2560, v{vXO}")
E(f"v_add_u32 v{vXO}, {144*16}, v{vXO}")
E("s_mov_b64 exec, 0x3ffff")
def gather_q():
    for p in range(8):
        E(f"s_add_u32 s{sT}, s{sR0}, {p*2560}")
        VM(f"buffer_load_dwordx4 {vr(vGa+4*p)}, v{vA}, {sr(sWS)}, s{sT} offen sc1", "GQ")
    VM(f"buffer_load_dwordx4 {vr(vGa+32)}, v{vXO}, {sr(sWS)}, s{sR0} offen sc1", "GQ")
gather_q()
E("s_mov_b64 exec, -1")
oVA, oVB = 38, 39
E(f"v_mul_u32_u24 v{oVA}, 384, v{vG}")
E(f"v_lshl_add_u32 v{oVA}, v{vJ}, 4, v{oVA}")
E(f"v_lshrrev_b32 v{vA+1}, 3, v{vJ}")
E(f"v_lshl_add_u32 v{vA+1}, v{vA+1}, 2, v{vG}")
E(f"v_mul_u32_u24 v{oVB}, 384, v{vA+1}")
E(f"v_and_b32 v{vA+1}, 7, v{vJ}")
E(f"v_lshl_add_u32 v{oVB}, v{vA+1}, 4, v{oVB}")
E(f"v_add_u32 v{oVB}, 256, v{oVB}")
def vload(n):
    k, q = n // 3, n % 3
    b = vVB + 12 * k + 4 * q
    if q == 0 or n == NV1:
        E(f"s_add_u32 s{sOFF}, s{sROT}, {k}")
        E(f"s_and_b32 s{sOFF}, s{sOFF}, 7")
        E(f"s_mul_i32 s{sOFF}, s{sOFF}, 3072")
    if q < 2:
        VM(f"buffer_load_dwordx4 {vr(b)}, v{oVA}, {sr(sV)}, s{sOFF} offen offset:{q*1536}{VNT}", f"V{k}")
    else:
        VM(f"buffer_load_dwordx4 {vr(b)}, v{oVB}, {sr(sV)}, s{sOFF} offen{VNT}", f"V{k}")
for n in range(NV1): vload(n)
stamp()
WAIT("GQ")
E("s_mov_b64 exec, 0x3ffff")
L("K1_GQ_CHECK:")
E(f"s_mov_b64 s[{sBAD}:{sBAD+1}], 0")
for p in range(9):
    E(f"v_cmp_ne_u64 vcc, s[{sTAG}:{sTAG+1}], v[{vGa+4*p+2}:{vGa+4*p+3}]")
    E(f"s_or_b64 s[{sBAD}:{sBAD+1}], s[{sBAD}:{sBAD+1}], vcc")
E(f"s_cmp_eq_u64 s[{sBAD}:{sBAD+1}], 0")
E("s_cbranch_scc1 K1_GQ_OK")
E("s_sub_u32 s3, s3, 1")
E("s_cbranch_scc1 K1_GQ_OK")
E("s_sleep 2")
sv = list(vmq)
gather_q()
vmq[:] = sv
E("s_waitcnt vmcnt(0)")
E("s_branch K1_GQ_CHECK")
L("K1_GQ_OK:")
E(f"v_cmp_ne_u32 vcc, s{sXC}, v{vGa+32}")
E("s_cmp_eq_u64 vcc, 0")
E(f"s_cselect_b32 s{sSAME}, -1, 0")
for p in range(1, 8):
    E(f"v_add_f32 v{vGa}, v{vGa}, v{vGa+4*p}")
    E(f"v_add_f32 v{vGa+1}, v{vGa+1}, v{vGa+4*p+1}")
E(f"s_mul_i32 s{sT}, s{sW}, 18")
E(f"v_add_u32 v{vA}, s{sT}, v{vL}")
E(f"v_cvt_pk_bf16_f32 v{vA+1}, v{vGa}, v{vGa+1}")
E(f"v_lshlrev_b32 v{vA+2}, 2, v{vA}")
E(f"v_lshlrev_b32 v{vA+3}, 3, v{vA}")
E(f"v_cmp_gt_u32 vcc, 96, v{vA}")
E(f"s_and_saveexec_b64 s[{sE}:{sE+1}], vcc")
E(f"ds_write_b32 v{vA+2}, v{vA+1} offset:{QBF_OFF}")
E(f"s_andn2_b64 exec, s[{sE}:{sE+1}], vcc")
E(f"ds_write_b64 v{vA+3}, v[{vGa}:{vGa+1}] offset:{GU_OFF - 96*8}")
E("s_mov_b64 exec, -1")
E("s_waitcnt lgkmcnt(0)")
E("s_barrier")
stamp()
E(f"v_lshrrev_b32 v{vA+1}, 3, v{vJ}")
E(f"v_lshlrev_b32 v{vA+1}, 6, v{vA+1}")
E(f"v_lshl_add_u32 v{vA}, v{vG}, 4, v{vA+1}")
for s in range(3):
    E(f"ds_read_b128 {vr(vQ+4*s)}, v{vA} offset:{QBF_OFF + 128*s}")
E(f"v_xor_b32 v{vA+2}, 40, v{vL}")
E(f"v_lshlrev_b32 v{vA+2}, 2, v{vA+2}")
E("s_waitcnt lgkmcnt(0)")
vS = 16
vD = 16
vF = vQ + 12
for Q in range(2):
    for gi in range(4):
        WAIT(f"K{Q}{gi}")
        for s in range(3):
            b = vKB + ((Q * 4 + gi) * 3 + s) * 4
            mfma(vD + 4*gi, b, vQ + 4*s, None if s == 0 else vD + 4*gi)
    E("s_nop 7")
    for r in range(4):
        a, b_, c_, d = vD + r, vD + 4 + r, vD + 8 + r, vD + 12 + r
        u1, u2 = vA + 4, vA + 5
        E(f"v_cndmask_b32 v{u1}, v{b_}, v{a}, s[{sV2}:{sV2+1}]")
        E(f"v_cndmask_b32 v{u2}, v{d}, v{c_}, s[{sV2}:{sV2+1}]")
        E(f"v_cndmask_b32 v{vF+4*Q+r}, v{u1}, v{u2}, s[{sHF}:{sHF+1}]")
        E(f"v_cndmask_b32 v{a}, v{u2}, v{u1}, s[{sHF}:{sHF+1}]")
    for r in range(4):
        E(f"ds_bpermute_b32 v{vD+4+r}, v{vA+2}, v{vD+r}")
    E("s_waitcnt lgkmcnt(0)")
    for r in range(4):
        E(f"v_add_f32 v{vF+4*Q+r}, v{vF+4*Q+r}, v{vD+4+r}")
for r in range(8):
    E(f"v_mov_b32 v{vS+r}, v{vF+r}")
stamp()
for n in range(NV1, 24): vload(n)
oWO = vA
E(f"v_mul_u32_u24 v{oWO}, 1280, v{vG}")
E(f"v_lshl_add_u32 v{oWO}, v{vJ}, 4, v{oWO}")
E(f"v_mov_b32 v{vA+1}, 0x40000000")
E(f"v_cmp_gt_u32 vcc, 10, v{vJ}")
E("s_nop 1")
E(f"v_cndmask_b32 v{oWO}, v{vA+1}, v{oWO}, vcc")
E(f"s_mul_i32 s{sOFF}, s{sW}, 10240")
for k in range(3):
    E(f"s_add_u32 s{sT}, s{sOFF}, {k*81920}")
    VM(f"buffer_load_dwordx4 {vr(vKB+8*k)}, v{oWO}, {sr(sWO)}, s{sT} offen{ANT}", "WO")
    E(f"s_add_u32 s{sT}, s{sOFF}, {k*81920 + 5120}")
    VM(f"buffer_load_dwordx4 {vr(vKB+8*k+4)}, v{oWO}, {sr(sWO)}, s{sT} offen{ANT}", "WO")
E(f"s_cmp_lt_u32 s{sW}, 6")
E(f"s_cselect_b32 s{sT}, 0, 0x40000000")
E(f"v_add_u32 v{vA+1}, s{sT}, v{oWO}")
E(f"v_or_b32 v{vA+1}, v{vA+1}, v{oWO}")
VM(f"buffer_load_dwordx4 {vr(vKB+24)}, v{vA+1}, {sr(sWD)}, s{sOFF} offen{ANT}", "WO")
E(f"s_add_u32 s{sT}, s{sOFF}, 5120")
VM(f"buffer_load_dwordx4 {vr(vKB+28)}, v{vA+1}, {sr(sWD)}, s{sT} offen{ANT}", "WO")
t = vA + 1
E(f"v_max3_f32 v{t}, v{vS}, v{vS+1}, v{vS+2}")
E(f"v_max3_f32 v{t}, v{t}, v{vS+3}, v{vS+4}")
E(f"v_max3_f32 v{t}, v{t}, v{vS+5}, v{vS+6}")
E(f"v_max_f32 v{t}, v{t}, v{vS+7}")
E("s_nop 1")
E(f"v_max_f32_dpp v{t}, v{t}, v{t} row_ror:8 row_mask:0xf bank_mask:0xf")
E("s_nop 1")
for q in range(4):
    E(f"v_readlane_b32 s{sR0+q}, v{t}, {16*q}")
E("s_nop 1")
E(f"v_mov_b32 v{t}, s{sR0}")
E(f"v_max_f32 v{t}, s{sR0+1}, v{t}")
E(f"v_max_f32 v{t}, s{sR0+2}, v{t}")
E(f"v_max_f32 v{t}, s{sR0+3}, v{t}")
E(f"s_lshl_b32 s{sT}, s{sW}, 2")
E(f"v_mov_b32 v{t+1}, s{sT}")
E(f"ds_write_b32 v{t+1}, v{t} offset:{ST_OFF}")
E(f"v_mul_f32 v{t}, s{sSC}, v{t}")
for r in range(8):
    E(f"v_fma_f32 v{vS+r}, v{vS+r}, s{sSC}, -v{t}")
for r in range(8):
    E(f"v_exp_f32 v{vS+r}, v{vS+r}")
E("s_nop 0")
t2 = vA + 3
E(f"v_add_f32 v{t2}, v{vS}, v{vS+1}")
for r in range(2, 8):
    E(f"v_add_f32 v{t2}, v{t2}, v{vS+r}")
E("s_nop 1")
E(f"v_add_f32_dpp v{t2}, v{t2}, v{t2} row_ror:8 row_mask:0xf bank_mask:0xf")
E("s_nop 1")
for q in range(4):
    E(f"v_readlane_b32 s{sR0+q}, v{t2}, {16*q}")
E("s_nop 1")
E(f"v_mov_b32 v{t2}, s{sR0}")
E(f"v_add_f32 v{t2}, s{sR0+1}, v{t2}")
E(f"v_add_f32 v{t2}, s{sR0+2}, v{t2}")
E(f"v_add_f32 v{t2}, s{sR0+3}, v{t2}")
E(f"ds_write_b32 v{t+1}, v{t2} offset:{ST_OFF+32}")
for r in range(8):
    E(f"v_cvt_pk_bf16_f32 v{vS+r}, v{vS+r}, v{vS+r}")
E("s_waitcnt lgkmcnt(0)")
stamp()
vPA = vS + 8
vBP = vA
for k in range(8):
    expand(vS + k, vBP)
    WAIT(f"V{k}")
    E("s_nop 0")
    b = vVB + 12 * k
    for q in range(3):
        mfma(vPA + 4*q, b + 4*q, vBP, None if k == 0 else vPA + 4*q)
stamp()
a1, a2, tt = vS, vS+1, vS+2
E(f"v_lshrrev_b32 v{tt}, 3, v{vJ}")
E(f"s_lshl_b32 s{sT}, s{sW}, 1")
E(f"v_add_u32 v{tt}, s{sT}, v{tt}")
E(f"v_mul_u32_u24 v{a1}, {P2_STR}, v{tt}")
E(f"v_and_b32 v{tt}, 7, v{vJ}")
E(f"v_lshl_add_u32 v{a1}, v{tt}, 2, v{a1}")
E(f"v_and_b32 v{tt}, 1, v{vG}")
E(f"v_lshl_add_u32 v{a2}, v{tt}, 7, v{a1}")
E(f"v_lshl_add_u32 v{a1}, v{vG}, 7, v{a1}")
E("s_nop 7")
for r in range(4):
    E(f"v_cndmask_b32 v{vPA+r}, v{vPA+r}, v{vPA+4+r}, s[{sHF}:{sHF+1}]")
for r in range(4):
    E(f"ds_write_b32 v{a1}, v{vPA+r} offset:{P2_OFF + r*32}")
E(f"s_mov_b64 exec, s[{sV2}:{sV2+1}]")
for r in range(4):
    E(f"ds_write_b32 v{a2}, v{vPA+8+r} offset:{P2_OFF + 512 + r*32}")
E("s_mov_b64 exec, -1")
E("s_waitcnt lgkmcnt(0)")
E("s_barrier")
stamp()
vT = vVB
E(f"v_mov_b32 v{vT+1}, 0")
for w in range(5):
    E(f"ds_read_b32 v{vT+60+w}, v{vT+1} offset:{Z_OFF + 4*w}")
E(f"s_cmp_ge_u32 s{sW}, 3")
E("s_cbranch_scc1 K1_T_WAIT")
E(f"s_cmp_eq_u32 s{sW}, 2")
E("s_cbranch_scc1 K1_T_H")
E(f"v_lshlrev_b32 v{vT}, 3, v0")
E(f"ds_read_b128 {vr(vT+4)}, v{vT+1} offset:{ST_OFF}")
E(f"ds_read_b128 {vr(vT+8)}, v{vT+1} offset:{ST_OFF+16}")
E(f"ds_read_b128 {vr(vT+12)}, v{vT+1} offset:{ST_OFF+32}")
E(f"ds_read_b128 {vr(vT+16)}, v{vT+1} offset:{ST_OFF+48}")
for s in range(16):
    E(f"ds_read_b64 v[{vT+20+2*s}:{vT+21+2*s}], v{vT} offset:{P2_OFF + s*P2_STR}")
E("s_waitcnt lgkmcnt(0)")
mm, ll = vT + 2, vT + 3
E(f"v_max3_f32 v{mm}, v{vT+4}, v{vT+5}, v{vT+6}")
E(f"v_max3_f32 v{mm}, v{mm}, v{vT+7}, v{vT+8}")
E(f"v_max3_f32 v{mm}, v{mm}, v{vT+9}, v{vT+10}")
E(f"v_max_f32 v{mm}, v{mm}, v{vT+11}")
for w in range(8):
    E(f"v_sub_f32 v{vT+4+w}, v{vT+4+w}, v{mm}")
for w in range(8):
    E(f"v_mul_f32 v{vT+4+w}, s{sSC}, v{vT+4+w}")
for w in range(8):
    E(f"v_exp_f32 v{vT+4+w}, v{vT+4+w}")
E("s_nop 0")
E(f"v_mul_f32 v{ll}, v{vT+4}, v{vT+12}")
for w in range(1, 8):
    E(f"v_fmac_f32 v{ll}, v{vT+4+w}, v{vT+12+w}")
for w in range(8):
    for q in range(2):
        E(f"v_add_f32 v{vT+20+4*w+q}, v{vT+20+4*w+q}, v{vT+22+4*w+q}")
vO = vT + 52
for q in range(2):
    E(f"v_mul_f32 v{vO+q}, v{vT+4}, v{vT+20+q}")
    for w in range(1, 8):
        E(f"v_fmac_f32 v{vO+q}, v{vT+4+w}, v{vT+20+4*w+q}")
E("v_cmp_eq_u32 vcc, 96, v0")
E(f"v_lshlrev_b32 v{vT+56}, 4, v0")
E(f"v_add_u32 v{vT+56}, 16, v{vT+56}")
E(f"v_cndmask_b32 v{vO}, v{vO}, v{mm}, vcc")
E(f"v_cndmask_b32 v{vO+1}, v{vO+1}, v{ll}, vcc")
E(f"v_cndmask_b32 v{vT+57}, v{vT+56}, 0, vcc")
E(f"v_mov_b32 v{vO+2}, s{sTAG}")
E(f"v_mov_b32 v{vO+3}, s{sTAG+1}")
E(f"s_lshl_b32 s{sT}, s{sROW}, 11")
E(f"s_add_u32 s{sT}, s{sT}, {WS_G2}")
E("v_cmp_gt_u32 vcc, 97, v0")
E(f"s_and_saveexec_b64 s[{sE}:{sE+1}], vcc")
E(f"s_add_u32 s{sOFF}, s{sT}, {WS_G2A - WS_G2}")
E(f"buffer_store_dwordx4 {vr(vO)}, v{vT+57}, {sr(sWS)}, s{sOFF} offen")
E(f"buffer_store_dwordx4 {vr(vO)}, v{vT+57}, {sr(sWS)}, s{sT} offen sc1")
E(f"s_mov_b64 exec, s[{sE}:{sE+1}]")
stamp()
def calc_g(dst, z):
    for w in range(1, 5):
        E(f"v_add_f32 v{z}, v{z}, v{z+w}")
    E(f"v_mul_f32 v{dst}, 0xbfb8aa3b, v{z}")
    E(f"v_exp_f32 v{dst}, v{dst}")
    E("s_nop 0")
    E(f"v_add_f32 v{dst}, 1.0, v{dst}")
    E(f"v_rcp_f32 v{dst}, v{dst}")
    E("s_nop 0")
vGg = vT + 58
calc_g(vGg, vT + 60)
E(f"s_lshl_b32 s{sR0}, s{sH}, 14")
E(f"s_add_u32 s{sR0}, s{sR0}, {WS_G2}")
vGo = vKB + 32
sm = vGo + 32
E(f"v_min_u32 v{vT+56}, {96*16}, v{vT+56}")
E(f"v_and_b32 v{vT+59}, 7, v{vL}")
E(f"v_lshlrev_b32 v{vT+59}, 11, v{vT+59}")
L("K1_GO_LOOP:")
E("s_and_b32 s92, s3, 3")
E("s_cmp_eq_u32 s92, 0")
E(f"s_cselect_b32 s92, 0, {WS_G2A - WS_G2}")
E(f"s_and_b32 s92, s92, s{sSAME}")
E(f"s_add_u32 s92, s92, s{sR0}")
E(f"buffer_load_dwordx4 {vr(sm)}, v{vT+59}, {sr(sWS)}, s92 offen sc1")
for p in range(8):
    E(f"buffer_load_dwordx4 {vr(vGo+4*p)}, v{vT+56}, {sr(sWS)}, s92 offen offset:{(p*2048) % 4096} sc1" if p < 2 else
      f"buffer_load_dwordx4 {vr(vGo+4*p)}, v{vT+56}, {sr(sWS)}, s91 offen offset:{(p*2048) % 4096} sc1")
    if p % 2 == 1 and p < 7:
        E(f"s_add_u32 s91, s92, {(p+1)*2048}")
E("s_waitcnt vmcnt(0)")
E(f"s_mov_b64 s[{sBAD}:{sBAD+1}], 0")
for p in range(9):
    E(f"v_cmp_ne_u64 vcc, s[{sTAG}:{sTAG+1}], v[{vGo+4*p+2}:{vGo+4*p+3}]")
    E(f"s_or_b64 s[{sBAD}:{sBAD+1}], s[{sBAD}:{sBAD+1}], vcc")
E(f"s_cmp_eq_u64 s[{sBAD}:{sBAD+1}], 0")
E("s_cbranch_scc1 K1_GO_OK")
E("s_sub_u32 s3, s3, 1")
E("s_cbranch_scc1 K1_GO_OK")
E("s_branch K1_GO_LOOP")
L("K1_GO_OK:")
stamp()
E(f"v_max_f32_dpp v{mm}, v{sm}, v{sm} quad_perm:[1,0,3,2] row_mask:0xf bank_mask:0xf")
E("s_nop 1")
E(f"v_max_f32_dpp v{mm}, v{mm}, v{mm} quad_perm:[2,3,0,1] row_mask:0xf bank_mask:0xf")
E("s_nop 1")
E(f"v_max_f32_dpp v{mm}, v{mm}, v{mm} row_half_mirror row_mask:0xf bank_mask:0xf")
E("s_nop 0")
E(f"v_sub_f32 v{sm}, v{sm}, v{mm}")
E(f"v_mul_f32 v{sm}, s{sSC}, v{sm}")
E(f"v_exp_f32 v{sm}, v{sm}")
E("s_nop 0")
E(f"v_mul_f32 v{ll}, v{sm}, v{sm+1}")
E("s_nop 1")
E(f"v_add_f32_dpp v{ll}, v{ll}, v{ll} quad_perm:[1,0,3,2] row_mask:0xf bank_mask:0xf")
E("s_nop 1")
E(f"v_add_f32_dpp v{ll}, v{ll}, v{ll} quad_perm:[2,3,0,1] row_mask:0xf bank_mask:0xf")
E("s_nop 1")
E(f"v_add_f32_dpp v{ll}, v{ll}, v{ll} row_half_mirror row_mask:0xf bank_mask:0xf")
for p in range(8):
    E(f"v_readlane_b32 s{40+p}, v{sm}, {p}")
E(f"v_rcp_f32 v{ll}, v{ll}")
for q in range(2):
    E(f"v_mul_f32 v{vO+q}, s40, v{vGo+q}")
    for p in range(1, 8):
        E(f"v_fmac_f32 v{vO+q}, s{40+p}, v{vGo+4*p+q}")
E(f"v_mul_f32 v{ll}, v{ll}, v{vGg}")
E(f"v_mul_f32 v{vO}, v{vO}, v{ll}")
E(f"v_mul_f32 v{vO+1}, v{vO+1}, v{ll}")
E("v_cmp_gt_u32 vcc, 96, v0")
E(f"s_and_saveexec_b64 s[{sE}:{sE+1}], vcc")
E(f"v_cvt_pk_bf16_f32 v{vO}, v{vO}, v{vO+1}")
E(f"v_lshlrev_b32 v{vT}, 2, v0")
E(f"ds_write_b32 v{vT}, v{vO} offset:{OBF_OFF}")
E(f"s_mov_b64 exec, s[{sE}:{sE+1}]")
E("s_branch K1_T_WAIT")
L("K1_T_H:")
E(f"v_lshlrev_b32 v{vT}, 3, v{vL}")
E(f"ds_read_b64 v[{vT+4}:{vT+5}], v{vT} offset:{GU_OFF}")
E(f"ds_read_b64 v[{vT+6}:{vT+7}], v{vT} offset:{GU_OFF + 192}")
E("s_waitcnt lgkmcnt(0)")
calc_g(vGg, vT + 60)
E(f"v_sub_f32 v{vGg}, 1.0, v{vGg}")
E(f"v_cvt_pk_bf16_f32 v{vT+4}, v{vT+4}, v{vT+5}")
E(f"v_cvt_pk_bf16_f32 v{vT+6}, v{vT+6}, v{vT+7}")
E(f"v_lshlrev_b32 v{vT+8}, 16, v{vT+4}")
E(f"v_and_b32 v{vT+9}, 0xffff0000, v{vT+4}")
E(f"v_lshlrev_b32 v{vT+10}, 16, v{vT+6}")
E(f"v_and_b32 v{vT+11}, 0xffff0000, v{vT+6}")
E(f"v_max_f32 v{vT+8}, 0, v{vT+8}")
E(f"v_max_f32 v{vT+9}, 0, v{vT+9}")
E(f"v_mul_f32 v{vT+8}, v{vT+8}, v{vT+10}")
E(f"v_mul_f32 v{vT+9}, v{vT+9}, v{vT+11}")
E(f"v_cvt_pk_bf16_f32 v{vT+8}, v{vT+8}, v{vT+9}")
E(f"v_lshlrev_b32 v{vT+10}, 16, v{vT+8}")
E(f"v_and_b32 v{vT+11}, 0xffff0000, v{vT+8}")
E(f"v_mul_f32 v{vT+10}, v{vT+10}, v{vGg}")
E(f"v_mul_f32 v{vT+11}, v{vT+11}, v{vGg}")
E(f"v_cvt_pk_bf16_f32 v{vT+8}, v{vT+10}, v{vT+11}")
E(f"v_cmp_gt_u32 vcc, 24, v{vL}")
E("s_nop 1")
E(f"v_cndmask_b32 v{vT+8}, 0, v{vT+8}, vcc")
E(f"v_lshlrev_b32 v{vT}, 2, v{vL}")
E("s_mov_b64 exec, 0xffffffff")
E(f"ds_write_b32 v{vT}, v{vT+8} offset:{OBF_OFF + 384}")
E("s_mov_b64 exec, -1")
L("K1_T_WAIT:")
E("s_waitcnt lgkmcnt(0)")
E("s_barrier")
stamp()
vB = vT + 4
E(f"v_lshrrev_b32 v{vT}, 3, v{vJ}")
E(f"v_lshl_add_u32 v{vT}, v{vT}, 2, v{vG}")
E(f"v_lshlrev_b32 v{vT}, 1, v{vT}")
E(f"s_lshl_b32 s{sT}, s{sW}, 4")
E(f"v_add_u32 v{vT}, s{sT}, v{vT}")
for k in range(4):
    E(f"ds_read_u16 v{vT+20+k}, v{vT} offset:{OBF_OFF + 128*k}")
E("s_waitcnt lgkmcnt(0)")
for k in range(4):
    E(f"v_lshl_or_b32 v{vT+20+k}, v{vT+20+k}, 16, v{vT+20+k}")
for k in range(4):
    expand(vT + 20 + k, vB + 4*k)
E("s_waitcnt vmcnt(0)")
vY = vT + 24
for k in range(4):
    mfma(vY, vKB + 8*k, vB + 4*k, None if k == 0 else vY)
    mfma(vY + 4, vKB + 8*k + 4, vB + 4*k, None if k == 0 else vY + 4)
E(f"v_lshrrev_b32 v{vT+1}, 3, v{vJ}")
E(f"s_lshl_b32 s{sT}, s{sW}, 1")
E(f"v_add_u32 v{vT+1}, s{sT}, v{vT+1}")
E(f"v_mul_u32_u24 v{vT}, {Y_STR}, v{vT+1}")
E(f"v_and_b32 v{vT+1}, 7, v{vJ}")
E(f"v_lshl_add_u32 v{vT}, v{vT+1}, 2, v{vT}")
E(f"v_lshl_add_u32 v{vT}, v{vG}, 7, v{vT}")
E("s_nop 7")
for r in range(4):
    E(f"v_cndmask_b32 v{vY+r}, v{vY+r}, v{vY+4+r}, s[{sHF}:{sHF+1}]")
for r in range(4):
    E(f"ds_write_b32 v{vT}, v{vY+r} offset:{Y_OFF + r*32}")
E("s_waitcnt lgkmcnt(0)")
E("s_barrier")
E(f"s_cmp_lg_u32 s{sW}, 0")
E("s_cbranch_scc1 K1_PUB3_DONE")
E("s_mov_b32 exec_lo, -1")
E("s_mov_b32 exec_hi, 0xff")
E(f"v_lshlrev_b32 v{vT}, 3, v0")
for s in range(16):
    E(f"ds_read_b64 v[{vT+4+2*s}:{vT+5+2*s}], v{vT} offset:{Y_OFF + s*Y_STR}")
E("s_waitcnt lgkmcnt(0)")
for st in (8, 4, 2, 1):
    for s in range(st):
        for q in range(2):
            E(f"v_add_f32 v{vT+4+2*s+q}, v{vT+4+2*s+q}, v{vT+4+2*(s+st)+q}")
E(f"v_mov_b32 v{vT+6}, s{sTAG}")
E(f"v_mov_b32 v{vT+7}, s{sTAG+1}")
E(f"v_lshlrev_b32 v{vT}, 4, v0")
E(f"s_lshl_b32 s{sT}, s{sC}, 5")
E(f"s_add_u32 s{sT}, s{sT}, s{sH}")
E(f"s_mul_i32 s{sT}, s{sT}, 640")
E(f"s_add_u32 s{sT}, s{sT}, {WS_G3}")
E(f"buffer_store_dwordx4 {vr(vT+4)}, v{vT}, {sr(sWS)}, s{sT} offen sc1")
E("s_mov_b64 exec, -1")
L("K1_PUB3_DONE:")
stamp()
E(f"s_lshl_b32 s{sT}, s{sC}, 2")
E(f"s_cmp_lg_u32 s{sT}, s{sH}")
E("s_cbranch_scc1 K1_STAMPS")
E(f"s_lshl_b32 s{sR0}, s{sC}, 5")
E(f"s_lshl_b32 s{sT}, s{sW}, 2")
E(f"s_add_u32 s{sR0}, s{sR0}, s{sT}")
E(f"s_mul_i32 s{sR0}, s{sR0}, 640")
E(f"s_add_u32 s{sR0}, s{sR0}, {WS_G3}")
E(f"v_lshlrev_b32 v{vT}, 4, v{vL}")
E("s_mov_b32 exec_lo, -1")
E("s_mov_b32 exec_hi, 0xff")
L("K1_GF_LOOP:")
for p in range(4):
    E(f"buffer_load_dwordx4 {vr(vT+4+4*p)}, v{vT}, {sr(sWS)}, s{sR0} offen offset:{640*p} sc1")
E("s_waitcnt vmcnt(0)")
E(f"s_mov_b64 s[{sBAD}:{sBAD+1}], 0")
for p in range(4):
    E(f"v_cmp_ne_u64 vcc, s[{sTAG}:{sTAG+1}], v[{vT+4+4*p+2}:{vT+4+4*p+3}]")
    E(f"s_or_b64 s[{sBAD}:{sBAD+1}], s[{sBAD}:{sBAD+1}], vcc")
E(f"s_cmp_eq_u64 s[{sBAD}:{sBAD+1}], 0")
E("s_cbranch_scc1 K1_GF_OK")
E("s_sub_u32 s3, s3, 1")
E("s_cbranch_scc1 K1_GF_OK")
E("s_sleep 1")
E("s_branch K1_GF_LOOP")
L("K1_GF_OK:")
for p in range(1, 4):
    E(f"v_add_f32 v{vT+4}, v{vT+4}, v{vT+4+4*p}")
    E(f"v_add_f32 v{vT+5}, v{vT+5}, v{vT+5+4*p}")
E(f"v_lshlrev_b32 v{vT}, 3, v{vL}")
E(f"s_mul_i32 s{sT}, s{sW}, 320")
E(f"v_add_u32 v{vT}, s{sT}, v{vT}")
E(f"ds_write_b64 v{vT}, v[{vT+4}:{vT+5}] offset:{FR_OFF}")
E("s_mov_b64 exec, -1")
E("s_waitcnt lgkmcnt(0)")
E("s_barrier")
E(f"s_cmp_lg_u32 s{sW}, 0")
E("s_cbranch_scc1 K1_STAMPS")
E("s_mov_b32 exec_lo, -1")
E("s_mov_b32 exec_hi, 0xff")
E(f"v_lshlrev_b32 v{vT}, 3, v{vL}")
for w in range(8):
    E(f"ds_read_b64 v[{vT+4+2*w}:{vT+5+2*w}], v{vT} offset:{FR_OFF + 320*w}")
E(f"s_mov_b32 s{sWG}, s28")
E(f"s_and_b32 s{sWG+1}, s29, 0xffff")
E(f"s_mov_b32 s{sWG+2}, 1280")
E(f"s_mov_b32 s{sWG+3}, 0x00020000")
E("s_waitcnt lgkmcnt(0)")
for st in (4, 2, 1):
    for s in range(st):
        for q in range(2):
            E(f"v_add_f32 v{vT+4+2*s+q}, v{vT+4+2*s+q}, v{vT+4+2*(s+st)+q}")
E(f"v_cvt_pk_bf16_f32 v{vT+4}, v{vT+4}, v{vT+5}")
E(f"v_lshlrev_b32 v{vT}, 2, v{vL}")
E(f"s_mul_i32 s{sT}, s{sC}, 160")
E(f"buffer_store_dword v{vT+4}, v{vT}, {sr(sWG)}, s{sT} offen")
E(f"s_cmp_lg_u32 s{sC}, 0")
E("s_cbranch_scc1 K1_NOEP")
E("s_mov_b64 exec, 1")
E(f"v_mov_b32 v{vT+6}, s{sTAG}")
E(f"v_mov_b32 v{vT+7}, s{sTAG+1}")
E(f"v_mov_b32 v{vT}, 0")
E(f"buffer_store_dwordx2 v[{vT+6}:{vT+7}], v{vT}, {sr(sWS)}, 0 offen")
L("K1_NOEP:")
E("s_mov_b64 exec, -1")
L("K1_STAMPS:")
if DBG:
    E("s_mov_b64 exec, -1")
    E("s_waitcnt vmcnt(0) lgkmcnt(0)")
    E(f"s_cmp_lg_u32 s{sW}, 0")
    E("s_cbranch_scc1 K1_END")
    E("s_cmp_lg_u32 s93, 0")
    E("s_cbranch_scc1 K1_END")
    E("s_memrealtime s[2:3]")
    E("s_memtime s[6:7]")
    E("s_waitcnt lgkmcnt(0)")
    E("s_sub_u32 s6, s6, s95")
    E("s_sub_u32 s2, s2, s94")
    E("v_mov_b32 v10, 0")
    E("v_writelane_b32 v10, s6, 0")
    E("v_writelane_b32 v10, s2, 1")
    for i in range(1, stamp_n[0]):
        r = stamp_regs[i]
        E(f"s_sub_u32 s6, s{r}, s94")
        E(f"v_writelane_b32 v10, s6, {i+1}")
    E("v_lshlrev_b32 v11, 2, v1")
    E("v_cmp_gt_u32 vcc, 16, v1")
    E("s_and_saveexec_b64 s[86:87], vcc")
    E("global_store_dword v11, v10, s[30:31]")
elif ST:
    E("s_mov_b64 exec, -1")
    E("s_waitcnt vmcnt(0) lgkmcnt(0)")
    E(f"s_cmp_lg_u32 s{sW}, {STW}")
    E("s_cbranch_scc1 K1_END")
    E("s_memrealtime s[2:3]")
    E("s_waitcnt lgkmcnt(0)")
    regs = stamp_regs[:stamp_n[0]]
    for i, r in enumerate(regs):
        E(f"v_writelane_b32 v10, s{r}, {2*i}")
        E(f"v_writelane_b32 v10, s{r+1}, {2*i+1}")
    n = len(regs)
    E(f"v_writelane_b32 v10, s2, {2*n}")
    E(f"v_writelane_b32 v10, s3, {2*n+1}")
    E("v_lshlrev_b32 v11, 2, v1")
    E(f"s_lshl_b32 s39, s93, 7")
    E("s_add_u32 s39, s39, 0x300000")
    E(f"v_cmp_gt_u32 vcc, {2*n+2}, v1")
    E("s_and_saveexec_b64 s[86:87], vcc")
    E(f"buffer_store_dword v10, v11, {sr(sWS)}, s39 offen")
L("K1_END:")
E("s_endpgm")

L('.section .rodata,"a"')
L(".p2align 6")
L(f".amdhsa_kernel {K1}")
L(f"  .amdhsa_next_free_vgpr 256")
L(f"  .amdhsa_next_free_sgpr 102")
L(f"  .amdhsa_accum_offset 256")
L("  .amdhsa_group_segment_fixed_size 0")
L("  .amdhsa_kernarg_size 104")
L("  .amdhsa_user_sgpr_count 2")
L("  .amdhsa_user_sgpr_kernarg_segment_ptr 1")
L("  .amdhsa_system_sgpr_workgroup_id_x 1")
L(".end_amdhsa_kernel")
open(sys.argv[1], 'w').write('\n'.join(out) + '\n')
```
